```python
import torch

def _softmax(x, axis=-1):
    return torch.softmax(x, dim=axis)
def _gelu(x):
    return torch.nn.functional.gelu(x, approximate="tanh")
def _silu(x):
    return torch.nn.functional.silu(x)
def _sigmoid(x):
    return torch.sigmoid(x)
def _layernorm(x, axis=-1, eps=1e-5):
    m = x.mean(dim=axis, keepdim=True)
    v = x.var(dim=axis, keepdim=True, unbiased=False)
    return (x - m) / torch.sqrt(v + eps)
def _scatter_add(tgt, idx, src, axis=0):
    return tgt.clone().index_add_(axis, idx, src)
def _segment_sum(src, seg, n):
    out = torch.zeros((n,) + src.shape[1:], dtype=src.dtype)
    return out.index_add_(0, seg, src)
def _pad(x, pw):
    flat = tuple(v for pair in reversed(pw) for v in pair)
    return torch.nn.functional.pad(x, flat)

kernel_name = 'standalone__layernorm_linear__sampling'

def setup_inputs():

    _w = (lambda a: (lambda t: t.to(torch.bfloat16) if t.is_floating_point() else t)(torch.as_tensor(a)))
    B, S, D = 1024, 32, 448
    return {
        "x": _w((lambda *s: torch.randn(*s, dtype=torch.bfloat16) * 0.05)(B, S, D)),
        "g": _w((lambda *s: torch.randn(*s, dtype=torch.bfloat16) * 0.05)(D) + 1.0),
        "b": _w((lambda *s: torch.randn(*s, dtype=torch.bfloat16) * 0.4)(D)),
        "w": _w((lambda *s: torch.randn(*s, dtype=torch.bfloat16) * 0.05)(D, D)),
    }

def reference(x, g, b, w):
    return (_layernorm(x, axis=-1) * g + b) @ w
```

```python
NAME = "standalone__layernorm_linear__sampling"
hdr = open('cdna_kernels/%s.s.ref' % NAME).read().split('\n')
top = [l for l in hdr if l.startswith(';') and '@launch' not in l]
L = []
def e(s): L.append(s)
for l in top: e(l)
e("; @launch grid=(2048,1,1) block=(64,1,1) lds=0")
e('.amdgcn_target "amdgcn-amd-amdhsa--gfx950"')
e(".text")
e(".globl %s_kernel" % NAME)
e(".p2align 8")
e(".type %s_kernel,@function" % NAME)
e("%s_kernel:" % NAME)
e("s_cmp_ge_u32 s2, 2048")
e("s_cbranch_scc1 L_done")
e("s_load_dwordx8 s[4:11], s[0:1], 0")
e("s_load_dwordx2 s[12:13], s[0:1], 32")
e("s_waitcnt lgkmcnt(0)")
def srd(d, b, n):
    e("s_mov_b32 s%d, s%d" % (d, b)); e("s_mov_b32 s%d, s%d" % (d+1, b+1))
    e("s_mov_b32 s%d, %d" % (d+2, n)); e("s_mov_b32 s%d, 0x20000" % (d+3))
srd(16, 4, 32768*896)
srd(20, 6, 896)
srd(24, 8, 896)
srd(28, 10, 448*896)
srd(32, 12, 32768*896)
e("v_and_b32 v1, 15, v0")
e("v_lshrrev_b32 v2, 4, v0")
e("s_mul_i32 s3, s2, %d" % (16*896))
e("v_mul_u32_u24 v3, 896, v1")
e("v_lshlrev_b32 v4, 4, v2")
e("v_add_u32 v5, v3, v4")
XR, GR, BR = 16, 72, 128
for s in range(14):
    e("buffer_load_dwordx4 v[%d:%d], v5, s[16:19], s3 offen offset:%d" % (XR+4*s, XR+4*s+3, 64*s))
for s in range(14):
    e("buffer_load_dwordx4 v[%d:%d], v4, s[20:23], 0 offen offset:%d" % (GR+4*s, GR+4*s+3, 64*s))
for s in range(14):
    e("buffer_load_dwordx4 v[%d:%d], v4, s[24:27], 0 offen offset:%d" % (BR+4*s, BR+4*s+3, 64*s))
e("s_waitcnt vmcnt(0)")
e("v_mov_b32 v6, 0")
for i in range(56):
    e("v_lshlrev_b32 v8, 16, v%d" % (XR+i))
    e("v_and_b32 v9, 0xffff0000, v%d" % (XR+i))
    e("v_add_f32 v6, v6, v8")
    e("v_add_f32 v6, v6, v9")
def red(r, t):
    e("v_mov_b32 v%d, v%d" % (t, r))
    e("s_nop 1")
    e("v_permlane16_swap_b32 v%d, v%d" % (r, t))
    e("s_nop 1")
    e("v_add_f32 v%d, v%d, v%d" % (r, r, t))
    e("v_mov_b32 v%d, v%d" % (t, r))
    e("s_nop 1")
    e("v_permlane32_swap_b32 v%d, v%d" % (r, t))
    e("s_nop 1")
    e("v_add_f32 v%d, v%d, v%d" % (r, r, t))
red(6, 10)
import struct
def f2u(f): return struct.unpack('<I', struct.pack('<f', f))[0]
e("v_mul_f32 v6, 0x%08x, v6" % f2u(1.0/448))
e("v_mov_b32 v7, 0")
for i in range(56):
    e("v_lshlrev_b32 v8, 16, v%d" % (XR+i))
    e("v_and_b32 v9, 0xffff0000, v%d" % (XR+i))
    e("v_sub_f32 v8, v8, v6")
    e("v_sub_f32 v9, v9, v6")
    e("v_fmac_f32 v7, v8, v8")
    e("v_fmac_f32 v7, v9, v9")
red(7, 10)
e("v_mul_f32 v7, 0x%08x, v7" % f2u(1.0/448))
def rbf(r):
    e("v_cvt_pk_bf16_f32 v%d, v%d, v%d" % (r, r, r))
    e("v_and_b32 v%d, 0xffff0000, v%d" % (r, r))
rbf(6); rbf(7)
e("v_add_f32 v7, 0x%08x, v7" % f2u(1e-5))
rbf(7)
e("v_sqrt_f32 v7, v7")
e("s_nop 0")
rbf(7)
e("v_rcp_f32 v7, v7")
e("s_nop 0")
for i in range(56):
    e("v_lshlrev_b32 v8, 16, v%d" % (XR+i))
    e("v_and_b32 v9, 0xffff0000, v%d" % (XR+i))
    e("v_sub_f32 v8, v8, v6")
    e("v_sub_f32 v9, v9, v6")
    e("v_mul_f32 v8, v8, v7")
    e("v_mul_f32 v9, v9, v7")
    e("v_lshlrev_b32 v10, 16, v%d" % (GR+i))
    e("v_and_b32 v11, 0xffff0000, v%d" % (GR+i))
    e("v_lshlrev_b32 v12, 16, v%d" % (BR+i))
    e("v_and_b32 v13, 0xffff0000, v%d" % (BR+i))
    e("v_fma_f32 v8, v8, v10, v12")
    e("v_fma_f32 v9, v9, v11, v13")
    e("v_cvt_pk_bf16_f32 v%d, v8, v9" % (XR+i))
e("v_mul_u32_u24 v6, 7168, v2")
e("v_lshlrev_b32 v7, 1, v1")
e("v_add_u32 v6, v6, v7")
e("v_add_u32 v7, 3584, v6")
e("v_lshlrev_b32 v8, 3, v2")
e("v_add_u32 v8, v8, v3")
e("s_mov_b32 s36, 0")
WR = 72
e("L_t:")
for s in range(14):
    e("s_add_u32 s37, s36, %d" % (s*28672))
    for j in range(8):
        base = 6 if j < 4 else 7
        r = (WR+4*s+j//2) if j % 2 == 0 else (128+4*s+j//2)
        e("buffer_load_ushort v%d, v%d, s[28:31], s37 offen offset:%d" % (r, base, (j % 4)*896))
    if s % 6 == 5:
        e("s_waitcnt vmcnt(0)")
e("s_waitcnt vmcnt(0)")
for i in range(56):
    e("v_lshl_or_b32 v%d, v%d, 16, v%d" % (WR+i, 128+i, WR+i))
e("s_nop 1")
e("s_waitcnt vmcnt(0)")
for s in range(14):
    c = "0" if s == 0 else "v[12:15]"
    e("v_mfma_f32_16x16x32_bf16 v[12:15], v[%d:%d], v[%d:%d], %s" % (WR+4*s, WR+4*s+3, XR+4*s, XR+4*s+3, c))
e("s_nop 7")
e("v_cvt_pk_bf16_f32 v10, v12, v13")
e("v_cvt_pk_bf16_f32 v11, v14, v15")
e("s_add_u32 s37, s36, s3")
e("buffer_store_dwordx2 v[10:11], v8, s[32:35], s37 offen")
e("s_add_u32 s36, s36, 32")
e("s_cmp_lt_u32 s36, 896")
e("s_cbranch_scc1 L_t")
e("s_waitcnt vmcnt(0)")
e("L_done:")
e("s_endpgm")
e('.section .rodata,"a"')
e(".p2align 6")
e(".amdhsa_kernel %s_kernel" % NAME)
e("  .amdhsa_next_free_vgpr 184")
e("  .amdhsa_next_free_sgpr 48")
e("  .amdhsa_accum_offset 184")
e("  .amdhsa_group_segment_fixed_size 0")
e("  .amdhsa_kernarg_size 56")
e("  .amdhsa_user_sgpr_count 2")
e("  .amdhsa_user_sgpr_kernarg_segment_ptr 1")
e("  .amdhsa_system_sgpr_workgroup_id_x 1")
e(".end_amdhsa_kernel")
open('v0.s', 'w').write('\n'.join(L) + '\n')
```

```python
import re
class Op:
    __slots__ = ("text", "kind", "tag", "needs", "wl", "wv", "nl", "nv", "at", "cost")
    def __init__(self, text, kind=None, tag=None, needs=(), wl=None, wv=None, at=None, cost=None):
        self.text = text; self.tag = tag; self.needs = tuple(needs)
        self.wl = wl; self.wv = wv
        self.nl = None; self.nv = None
        self.at = at
        self.kind = kind or classify(text)
        self.cost = cost
    def render(self):
        if self.kind == "W":
            parts = []
            if self.nv is not None: parts.append("vmcnt(%d)" % min(self.nv, 63))
            if self.nl is not None: parts.append("lgkmcnt(%d)" % min(self.nl, 15))
            if not parts: return "s_nop 0"
            return "s_waitcnt " + " ".join(parts)
        return self.text
def classify(t):
    m = t.split()[0]
    if m.endswith(":") or m.startswith(".") or m.startswith(";"): return "L"
    if m.startswith("v_mfma"): return "M"
    if m.startswith("v_"): return "V"
    if m.startswith("ds_"): return "D"
    if m.startswith("buffer_") or m.startswith("global_"): return "G"
    if m.startswith("s_load") or m.startswith("s_memtime") or m.startswith("s_memrealtime"): return "K"
    return "S"
def WAIT(l=None, v=None, **kw):
    return Op("s_waitcnt", kind="W", wl=l, wv=v, **kw)
RE_REG = re.compile(r"\b([va])(?:\[(\d+):(\d+)\]|(\d+)\b)")
def regs_of(s):
    out = []
    for m in RE_REG.finditer(s):
        p = m.group(1)
        if m.group(2) is not None: out += [(p, i) for i in range(int(m.group(2)), int(m.group(3))+1)]
        else: out.append((p, int(m.group(4))))
    return out
def rw(op):
    t = op.text
    if op.kind in ("L", "W", "S", "K"): return [], []
    mn, _, rest = t.partition(" ")
    ops = [x.strip() for x in rest.split(",")]
    if op.kind == "D":
        if mn.startswith("ds_read"): return regs_of(",".join(ops[1:])), regs_of(ops[0])
        return regs_of(rest), []
    if op.kind == "G":
        if "load" in mn and not t.rstrip().endswith(" lds") and "_lds_" not in mn: return regs_of(",".join(ops[1:])), regs_of(ops[0])
        return regs_of(rest), []
    if mn.startswith("v_cmp") or mn.startswith("v_readfirstlane") or mn.startswith("v_readlane"): return regs_of(",".join(ops[1:])), []
    w = regs_of(ops[0]); r = regs_of(",".join(ops[1:]))
    if mn.startswith("v_fmac") or mn.startswith("v_writelane") or "_dpp" in mn and "bank_mask:0xf" not in t: r = r + w
    if mn.startswith("v_permlane"): r = r + w; w = w + regs_of(ops[1])
    if "op_sel_hi" in t and mn.startswith("v_pk"):
        pass
    return r, w
TRANS = ("v_rsq", "v_rcp", "v_sqrt", "v_exp", "v_log")
def resolve_and_verify(trace, name=""):
    for op in trace:
        if op.kind == "W": op.nl = None; op.nv = None
    lastD = {}; lastG = {}; nD = 0; nG = 0
    for op in trace:
        if op.kind == "D":
            nD += 1
            if op.tag: lastD[op.tag] = nD
        elif op.kind == "G":
            nG += 1
            if op.tag: lastG[op.tag] = nG
        elif op.kind == "W":
            if op.wl is not None:
                if isinstance(op.wl, int): n = op.wl
                elif op.wl in lastD: n = nD - lastD[op.wl]
                else: n = None
                if n is not None: op.nl = n if op.nl is None else min(op.nl, n)
            if op.wv is not None:
                if isinstance(op.wv, int): n = op.wv
                elif op.wv in lastG: n = nG - lastG[op.wv]
                else: n = None
                if n is not None: op.nv = n if op.nv is None else min(op.nv, n)
    errs = []
    outD = []; outG = []
    hist = []
    st = 0
    lastw = {}
    lastC = {}
    laststore = {}
    m0w = -10
    sccw = [None]
    for idx, op in enumerate(trace):
        if op.kind == "L": continue
        if op.kind == "W":
            if op.nl is not None:
                n = min(op.nl, 15); outD = outD[len(outD)-n:] if n < len(outD) else outD
                if n == 0: outD = []
            if op.nv is not None:
                n = min(op.nv, 63); outG = outG[len(outG)-n:] if n < len(outG) else outG
                if n == 0: outG = []
            st += 1
            continue
        t = op.text; mn = t.split()[0]
        if mn == "s_waitcnt":
            m = re.search(r"lgkmcnt\((\d+)\)", t)
            if m:
                n = int(m.group(1)); outD = outD[len(outD)-n:] if 0 < n < len(outD) else ([] if n == 0 else outD)
            m = re.search(r"vmcnt\((\d+)\)", t)
            if m:
                n = int(m.group(1)); outG = outG[len(outG)-n:] if 0 < n < len(outG) else ([] if n == 0 else outG)
            st += 1; continue
        if op.kind == "S":
            if mn.startswith(("s_cselect", "s_cbranch_scc", "s_addc")):
                want = [x for x in op.needs if x.startswith("scc:")]
                if not want: errs.append("%s[%d] scc consumer without id '%s'" % (name, idx, t))
                elif sccw[0] != want[0]: errs.append("%s[%d] scc clobbered: '%s' wants %s has %s" % (name, idx, t, want[0], sccw[0]))
            if mn.startswith(("s_cmp", "s_add", "s_sub", "s_and", "s_or", "s_xor", "s_lshl", "s_lshr", "s_min", "s_max", "s_bfe")): sccw[0] = op.tag
        r, w = rw(op)
        pend = {}
        for o, ww in outD + outG:
            for x in ww: pend[x] = o
        for x in r + w:
            if x in pend: errs.append("%s[%d] '%s' touches %s pending from '%s'" % (name, idx, t, x, pend[x].text)); break
        for tg in op.needs:
            for o, ww in outD + outG:
                if o.tag == tg or (isinstance(o.tag, str) and o.tag.startswith(tg + "#")): errs.append("%s[%d] '%s' needs tag %s still outstanding" % (name, idx, t, tg)); break
        def dist(x): return st - lastw[x][0] - 1 if x in lastw else 99
        if op.kind == "M":
            ops = [x.strip() for x in t.partition(" ")[2].split(",")]
            D = regs_of(ops[0]); A = regs_of(ops[1]); B = regs_of(ops[2]); C = regs_of(ops[3])
            for x in A + B + C:
                if x in lastw and lastw[x][1] == "V" and dist(x) < 2: errs.append("%s[%d] VALU->MFMA hazard %s '%s'" % (name, idx, x, t))
            for x in A + B:
                if x in lastw and lastw[x][1] == "M" and dist(x) < 8: errs.append("%s[%d] MFMA->MFMA AB hazard '%s'" % (name, idx, t))
            if C and C != D:
                for x in C:
                    if x in lastw and lastw[x][1] == "M" and dist(x) < 6: errs.append("%s[%d] MFMA C overlap hazard '%s'" % (name, idx, t))
            for x in C: lastC[x] = st
        else:
            for x in r + w:
                if x in lastw and lastw[x][1] == "M" and dist(x) < 8: errs.append("%s[%d] MFMA->use hazard %s dist %d '%s'" % (name, idx, x, dist(x), t)); break
            if op.kind == "V":
                for x in w:
                    if x in lastC and st - lastC[x] - 1 < 3: errs.append("%s[%d] MFMA srcC WAR '%s'" % (name, idx, t))
                    if x in laststore and st - laststore[x] - 1 < 2: errs.append("%s[%d] store data WAR '%s'" % (name, idx, t))
                if "_dpp" in mn or mn.startswith("v_permlane"):
                    for x in r:
                        if x in lastw and lastw[x][1] == "V" and dist(x) < 2: errs.append("%s[%d] DPP/permlane hazard %s '%s'" % (name, idx, x, t))
                if mn.startswith("v_readfirstlane") or mn.startswith("v_readlane"):
                    for x in r:
                        if x in lastw and lastw[x][1] == "V" and dist(x) < 1: errs.append("%s[%d] readlane hazard '%s'" % (name, idx, t))
                for x in r:
                    if x in lastw and lastw[x][2].startswith(TRANS) and dist(x) < 1 and not mn.startswith(TRANS): errs.append("%s[%d] trans hazard '%s'" % (name, idx, t))
        if op.kind == "M" or (op.kind in ("D", "G") and w):
            for x in w:
                if x in laststore and st - laststore[x] - 1 < 2: errs.append("%s[%d] store data WAR(2) '%s'" % (name, idx, t))
        if op.kind == "G" and t.rstrip().endswith(" lds") and st - m0w - 1 < 1: errs.append("%s[%d] M0 hazard '%s'" % (name, idx, t))
        if op.kind == "S" and re.match(r"s_\w+ m0,", t): m0w = st
        if op.kind == "G" and "store" in mn and ("x4" in mn or "x3" in mn):
            for x in regs_of(t.partition(" ")[2].split(",")[0]): laststore[x] = st
        if op.kind == "D": outD.append((op, w))
        if op.kind == "G": outG.append((op, w))
        if op.kind in ("V", "M"):
            for x in w: lastw[x] = (st, op.kind, mn)
        elif w:
            for x in w: lastw.pop(x, None)
        if mn == "s_nop": st += int(t.split()[1]) + 1
        else: st += 1
        if len(outD) > 15 and False: errs.append("too many DS outstanding at %d" % idx)
    return errs
```

```python
import sys, struct
from gen_core import *
NAME = "standalone__layernorm_linear__sampling"
def f2u(f): return struct.unpack('<I', struct.pack('<f', f))[0]
NB = 32768*896

class Cfg:
    stamps = False
    early = "G X w3 X w4 X | w3 X | w4 w7 | T0 w7 |"
    xpol = " nt"
    spol = " sc1"
    interleave = True
cfg = Cfg()

XR, LW, XA, XB, GA, ST, OW, OR, OS = 0, 1, 5, 6, 7, 8, 9, 10, 11
F = [12, 16]
ACC0, ACC1, ACC2 = 20, 64, 92
RAW = 48; TR1, TR2 = 62, 63
U = 64; PK = 92; OT = 106; GT = [110, 92]
SS, SQ, SR, SN = 118, 119, 62, 63
RAWE = [120, 136, 152, 168]; GE = 184; BE = 212; VO = 249
sW, sMASK, sWO, sWLIM, sRING, sXO, sOO, sT, sRET, sDELTA, sCNT, sOD, sT2, sBIG = 32, 33, 34, 35, 36, 37, 38, 39, 40, 42, 43, 44, 45, 46
SX, SG, SWd, SO = 16, 20, 24, 28
XBUF = [0x8000, 0xB800, 0x0000, 0x4000]
GTAB = 0x3800; BTAB = 0x7800
ODD = 0xF000; RING = 0x13000; NR = 3
def wf(j, t, half=None):
    f = 7*j + t
    p, r = ("a", 4*f) if f < 64 else ("v", 120 + 4*(f-64))
    if half is None: return "%s[%d:%d]" % (p, r, r+3)
    return "%s[%d:%d]" % (p, r+2*half, r+2*half+1)
def vr(a, n): return "v[%d:%d]" % (a, a+n-1)
O = Op
stampn = [0]
def stamp():
    if not cfg.stamps: return []
    i = stampn[0]; stampn[0] += 1
    return [O("s_memrealtime s[%d:%d]" % (60+2*i, 61+2*i), kind="S")]

def mfma(acc, j, t, fb):
    a = vr(acc+4*t, 4)
    return O("v_mfma_f32_16x16x32_bf16 %s, %s, %s, %s" % (a, wf(j, t), vr(fb, 4), "0" if j == 0 else a))
def xload(raw, tag):
    L = [O("buffer_load_dwordx4 %s, v%d, s[%d:%d], s%d offen offset:%d%s" % (vr(raw+4*c, 4), XA, SX, SX+3, sXO, 256*c, cfg.xpol), tag=tag+"#%d" % c) for c in range(3)]
    L.append(O("buffer_load_dwordx2 %s, v%d, s[%d:%d], s%d offen offset:768%s" % (vr(raw+12, 2), XB, SX, SX+3, sXO, cfg.xpol), tag=tag))
    return L
wn = [0]
def wdma(n):
    L = []
    for _ in range(n):
        j, i = divmod(wn[0], 7); wn[0] += 1
        if i == 0 or i == 4:
            L.append(O("s_add_u32 m0, s%d, %d" % (sRING, (j % NR)*7168 + (4096 if i == 4 else 0))))
            if i == 0 and j > 0:
                L.append(O("s_add_u32 s%d, s%d, 28672" % (sWO, sWO)))
                L.append(O("s_cmp_ge_u32 s%d, s%d" % (sWO, sWLIM), tag="scc:w"))
                L.append(O("s_cselect_b32 s%d, s%d, s%d" % (sWO, sT2, sWO), needs=["scc:w"]))
            else:
                L.append(O("s_nop 0"))
        needs = ["tr%d" % (j-NR)] if j >= NR else []
        L.append(O("buffer_load_dwordx4 v%d, s[%d:%d], s%d offen offset:%d lds" % (VO+i, SWd, SWd+3, sWO, 1024*(i % 4)),
                   tag=("w%d" % j if i == 6 else "w%d#%d" % (j, i)), needs=needs))
    return L
def trreads(j):
    L = []
    for t in range(7):
        for h in range(2):
            off = (j % NR)*7168 + h*3584 + (64*(t >> 1) + 8*(t & 1) if t < 6 else 0)
            last = (t == 6 and h == 1)
            L.append(O("ds_read_b64_tr_b16 %s, v%d offset:%d" % (wf(j, t, h), TR1 if t < 6 else TR2, off),
                       tag=("tr%d" % j if last else "tr%d#%d" % (j, 2*t+h)), needs=["w%d" % j]))
    return L
def unpack(raw, i):
    return [O("v_lshlrev_b32 v%d, 16, v%d" % (U+2*i, raw+i)), O("v_and_b32 v%d, s%d, v%d" % (U+2*i+1, sMASK, raw+i))]
def dpp(r, n): return O("v_add_f32_dpp v%d, v%d, v%d row_ror:%d row_mask:0xf bank_mask:0xf" % (r, r, r, n))
def statmath(S, Q, R, N, pad):
    L = []
    for n in (8, 4, 2, 1):
        L += [dpp(S, n), dpp(Q, n)] + ([O("s_nop 0")] if pad else [])
    L += [O("v_mul_f32 v%d, 0x%08x, v%d" % (S, f2u(1.0/448), S)),
          O("v_mul_f32 v%d, 0x%08x, v%d" % (Q, f2u(1.0/448), Q)),
          O("v_fma_f32 v%d, -v%d, v%d, v%d" % (Q, S, S, Q)),
          O("v_max_f32 v%d, 0, v%d" % (Q, Q)),
          O("v_add_f32 v%d, 0x%08x, v%d" % (Q, f2u(1e-5), Q)),
          O("v_rsq_f32 v%d, v%d" % (R, Q)),
          O("s_nop 0"),
          O("v_mul_f32 v%d, -v%d, v%d" % (N, S, R).__class__((N, S, R))) if False else O("v_mul_f32_e64 v%d, -v%d, v%d" % (N, S, R))]
    return L
def lnwrite(c, tag=None):
    if c < 3: return O("ds_write_b128 v%d, %s" % (LW+c, vr(U+8*c, 4)), tag=tag, cost=5)
    return O("ds_write_b64 v%d, %s" % (LW+3, vr(U+24, 2)), tag=tag, cost=3)

def ln_sub():
    S, Q, R, N = 92, 94, 96, 98
    L = [O("L_ln:")]
    p = lambda a: vr(a, 2)
    L += [O("v_pk_add_f32 %s, %s, %s" % (p(S), p(U), p(U+2))), O("v_pk_mul_f32 %s, %s, %s" % (p(Q), p(U), p(U)))]
    L += [O("v_pk_fma_f32 %s, %s, %s, %s" % (p(Q), p(U+2), p(U+2), p(Q)))]
    for i in range(2, 14):
        L += [O("v_pk_add_f32 %s, %s, %s" % (p(S), p(S), p(U+2*i))), O("v_pk_fma_f32 %s, %s, %s, %s" % (p(Q), p(U+2*i), p(U+2*i), p(Q)))]
    L += [O("v_add_f32 v%d, v%d, v%d" % (S, S, S+1)), O("v_add_f32 v%d, v%d, v%d" % (Q, Q, Q+1)), O("s_nop 0")]
    L += statmath(S, Q, R, N, True)
    for c in range(4):
        n = 4 if c < 3 else 2
        for i in range(4*c, 4*c+n):
            L.append(O("v_pk_fma_f32 %s, %s, %s, %s op_sel_hi:[1,0,0]" % (p(U+2*i), p(U+2*i), p(R), p(N))))
        for i in range(4*c, 4*c+n):
            L.append(O("v_pk_fma_f32 %s, %s, %s, %s" % (p(U+2*i), p(U+2*i), p(GE+2*i), p(BE+2*i))))
        for i in range(n):
            L.append(O("v_cvt_pk_bf16_f32 v%d, v%d, v%d" % (U+8*c+i, U+8*c+2*i, U+8*c+2*i+1)))
        L.append(lnwrite(c, tag="lnw"))
    for c in range(4): L.append(O("v_add_u32 v%d, s%d, v%d" % (LW+c, sDELTA, LW+c)))
    L.append(O("s_setpc_b64 s[%d:%d]" % (sRET, sRET+1)))
    return L

def cost(op):
    if op.cost: return op.cost
    return {"V": 1, "S": 1, "W": 1, "D": 2, "G": 2, "K": 1, "L": 0}[op.kind]
def weave(mf, fixed, stream, g0, g1):
    n = len(mf)
    for ex in range(0, 400):
        extra = ex * 0.02
        gaps = [list(fixed.get(g, [])) for g in range(n)]
        si = 0; credit = 0.0
        for g in range(g0, g1+1):
            used = 0; hasV = False
            for o in gaps[g]:
                if o.kind == "V" and used == 0: used = 1
                used += cost(o); hasV |= o.kind == "V"
            credit += extra
            while si < len(stream):
                o = stream[si]
                if o.at is not None and o.at > g: break
                u = used
                if o.kind == "V" and u == 0: u = 1
                if o.kind in ("D", "G") and used > 0 and hasV: break
                u += cost(o)
                over = max(0, u-3) - max(0, used-3)
                if over > 0:
                    if used == 0: pass
                    elif credit >= over: credit -= over
                    else: break
                gaps[g].append(o); used = u; hasV |= o.kind == "V"; si += 1
        if si == len(stream): break
    else:
        raise Exception("weave failed")
    out = []
    tot = 0
    for g in range(n):
        out.append(mf[g]); out += gaps[g]
        u = 0
        for o in gaps[g]:
            if o.kind == "V" and u == 0: u = 1
            u += cost(o)
        tot += max(4, 1+u)
    print("weave: n=%d extra=%.2f est cycles=%d (ideal %d)" % (n, extra, tot*4, n*16), file=sys.stderr)
    return out

def cvt(dst, a): return O("v_cvt_pk_bf16_f32 v%d, v%d, v%d" % (dst, a, a+1))
def store(src, P, tag=None):
    return O("buffer_store_dwordx4 %s, v%d, s[%d:%d], s%d offen offset:%d%s" % (vr(src, 4), ST, SO, SO+3, sOO, 64*P, cfg.spol), tag=tag)
def epi_inplace(acc):
    G = []
    for P in range(3):
        a0, a1 = acc+8*P, acc+8*P+4
        G.append([cvt(a1+3, a1+2), cvt(a1+2, a1), cvt(a1, a0), cvt(a1+1, a0+2), store(a1, P)])
    a = acc+24
    G.append([cvt(a, a), cvt(a+1, a+2), O("ds_write_b64 v%d, %s" % (OW, vr(a, 2)), cost=3), O("v_add_u32 v%d, 0x800, v%d" % (OW, OW)),
              O("s_add_u32 s%d, s%d, 14336" % (sOO, sOO))])
    return G
def pkcvt(t): return [cvt(PK+2*t, ACC0+4*t), cvt(PK+2*t+1, ACC0+4*t+2)]

def prologue():
    L = []
    a = lambda s, **k: L.append(O(s, **k))
    L += stamp()
    a("s_cmp_ge_u32 s2, 256", tag="scc:e"); a("s_cbranch_scc1 L_end", needs=["scc:e"])
    a("s_load_dwordx2 s[%d:%d], s[0:1], 0" % (SX, SX+1))
    a("s_load_dwordx4 s[4:7], s[0:1], 8")
    a("s_load_dwordx2 s[%d:%d], s[0:1], 24" % (SWd, SWd+1))
    a("s_load_dwordx2 s[%d:%d], s[0:1], 32" % (SO, SO+1))
    if cfg.stamps: a("s_load_dwordx2 s[48:49], s[0:1], 48")
    LN_, P_, RR = 20, 21, 22
    a("v_lshrrev_b32 v23, 6, v0")
    a("v_and_b32 v%d, 63, v0" % LN_)
    a("v_readfirstlane_b32 s%d, v23" % sW)
    a("v_and_b32 v%d, 15, v0" % P_)
    a("v_lshrrev_b32 v%d, 4, v%d" % (RR, LN_))
    a("v_mul_u32_u24 v23, 896, v%d" % RR)
    a("v_lshl_add_u32 v%d, v%d, 4, v23" % (XA, P_))
    a("v_lshl_add_u32 v%d, v%d, 3, v23" % (XB, P_))
    a("v_lshlrev_b32 v24, 4, v%d" % LN_)
    a("s_mov_b32 s%d, %d" % (SX+2, NB)); a("s_mov_b32 s%d, 0x20000" % (SX+3))
    a("s_mov_b32 s%d, 896" % (SG+2)); a("s_mov_b32 s%d, 0x20000" % (SG+3))
    a("s_mov_b32 s%d, %d" % (SWd+2, 448*896)); a("s_mov_b32 s%d, 0x20000" % (SWd+3))
    a("s_mov_b32 s%d, %d" % (SO+2, NB)); a("s_mov_b32 s%d, 0x20000" % (SO+3))
    a("s_mul_i32 s%d, s2, %d" % (sOO, 128*896))
    a("s_mul_i32 s%d, s%d, 3584" % (sXO, sW))
    a("s_add_u32 s%d, s%d, s%d" % (sXO, sXO, sOO))
    a("s_lshr_b32 s3, s2, 3")
    a("s_sub_u32 s%d, s3, 14" % sT); a("s_min_u32 s3, s3, s%d" % sT)
    a("s_sub_u32 s%d, s3, 14" % sT); a("s_min_u32 s3, s3, s%d" % sT)
    a("s_mul_i32 s%d, s%d, 224" % (sT2, sW))
    a("s_mul_i32 s%d, s3, 28672" % sWO)
    a("s_add_u32 s%d, s%d, s%d" % (sWO, sWO, sT2))
    a("s_add_u32 s%d, s%d, %d" % (sWLIM, sT2, 14*28672))
    a("s_mul_i32 s%d, s%d, %d" % (sRING, sW, NR*7168))
    a("s_add_u32 s%d, s%d, %d" % (sRING, sRING, RING))
    a("s_movk_i32 s8, 672"); a("s_movk_i32 s9, 896")
    a("v_mul_u32_u24 v25, 4682, v%d" % LN_)
    for i in range(7):
        const = 1024*i - 1024*(i % 4) - (10752 if i >= 4 else 0)
        if i: a("v_add_u32 v26, %d, v25" % (64*i*4682)); a("v_lshrrev_b32 v26, 16, v26")
        else: a("v_lshrrev_b32 v26, 16, v25")
        a("v_and_b32 v27, 12, v26")
        a("v_mad_u32_u24 v%d, v26, s8, v24" % (VO+i))
        a("v_mad_u32_u24 v%d, v27, s9, v%d" % (VO+i, VO+i))
        if i == 3:
            a("v_lshrrev_b32 v27, 4, v26"); a("v_mul_u32_u24 v27, 10752, v27"); a("v_sub_u32 v%d, v%d, v27" % (VO+i, VO+i))
        if const: a("v_add_u32 v%d, %d, v%d" % (VO+i, const & 0xffffffff, VO+i))
    a("s_and_b32 s10, s%d, 1" % sW, tag="scc:g")
    a("s_waitcnt lgkmcnt(0)")
    a("s_cselect_b32 s%d, s6, s4" % SG, needs=["scc:g"]); a("s_cselect_b32 s%d, s7, s5" % (SG+1), needs=["scc:g"])
    return L
def addr_math():
    L = []
    a = lambda s, **k: L.append(O(s, **k))
    LN_, P_, RR = 20, 21, 22
    a("s_mov_b32 s%d, 0xffff0000" % sMASK)
    a("s_mov_b32 s%d, 0x7fff0000" % sBIG)
    a("v_xor_b32 v25, v%d, v%d" % (P_, RR)); a("v_lshlrev_b32 v25, 4, v25"); a("v_lshl_add_u32 v%d, v%d, 8, v25" % (XR, RR))
    a("s_lshl_b32 s11, s%d, 2" % sW)
    a("v_add_u32 v25, s11, v%d" % RR)
    a("v_and_b32 v26, 3, v%d" % P_)
    a("v_xor_b32 v27, v25, v26"); a("v_lshlrev_b32 v27, 4, v27"); a("v_lshl_add_u32 v27, v26, 8, v27")
    a("v_add_u32 v27, %d, v27" % XBUF[0])
    a("v_lshrrev_b32 v26, 2, v%d" % P_); a("v_subrev_u32 v26, s3, v26")
    for c in range(3):
        if c: a("v_add_u32 v26, 4, v26")
        a("v_add_u32 v28, 14, v26"); a("v_min_u32 v28, v28, v26"); a("v_lshl_add_u32 v%d, v28, 10, v27" % (LW+c))
    a("v_bfe_u32 v26, v%d, 1, 2" % P_)
    a("v_xor_b32 v27, v25, v26"); a("v_lshlrev_b32 v27, 4, v27"); a("v_lshl_add_u32 v27, v26, 8, v27")
    a("v_and_b32 v26, 1, v%d" % P_); a("v_lshl_add_u32 v27, v26, 3, v27")
    a("v_add_u32 v27, %d, v27" % XBUF[0])
    a("v_lshrrev_b32 v26, 3, v%d" % P_); a("v_add_u32 v26, 12, v26"); a("v_subrev_u32 v26, s3, v26")
    a("v_add_u32 v28, 14, v26"); a("v_min_u32 v28, v28, v26"); a("v_lshl_add_u32 v%d, v28, 10, v27" % (LW+3))
    a("v_lshlrev_b32 v%d, 4, v%d" % (GA, P_))
    a("v_cmp_eq_u32 vcc, 3, v%d" % RR)
    a("v_lshlrev_b32 v25, 5, v%d" % P_)
    a("v_mov_b32 v26, 0x100")
    a("v_cndmask_b32 v25, v%d, v25, vcc" % GA)
    a("v_cndmask_b32 v26, v26, 16, vcc" if False else "v_cndmask_b32_e64 v26, v26, 16, vcc")
    a("s_lshl_b32 s11, s10, 14")
    a("v_lshl_add_u32 v30, v%d, 9, v25" % RR)
    a("v_add_u32 v30, s11, v30")
    a("v_add_u32 v31, v30, v26")
    a("v_mul_u32_u24 v25, 896, v%d" % P_); a("v_lshl_add_u32 v25, v%d, 4, v25" % RR)
    a("s_lshl_b32 s11, s10, 5"); a("s_add_u32 s12, s11, s%d" % sT2)
    a("v_add_u32 v%d, s12, v25" % ST)
    a("s_lshr_b32 s13, s%d, 1" % sW)
    a("s_mul_i32 s12, s13, 448"); a("s_mul_i32 s14, s10, 14336"); a("s_add_u32 s12, s12, s14"); a("s_add_u32 s12, s12, 192")
    a("v_add_u32 v%d, s12, v25" % OS)
    a("v_bfe_u32 v25, v%d, 1, 2" % P_)
    a("v_lshlrev_b32 v26, 6, v%d" % P_)
    a("s_lshl_b32 s12, s13, 10"); a("s_add_u32 s12, s12, %d" % ODD)
    a("v_add_u32 v26, s12, v26")
    a("v_xor_b32 v27, v%d, v25" % RR); a("v_lshl_add_u32 v%d, v27, 4, v26" % OR)
    a("s_lshl_b32 s12, s10, 11"); a("v_add_u32 v%d, s12, v%d" % (OR, OR))
    a("v_lshrrev_b32 v27, 1, v%d" % RR); a("s_lshl_b32 s12, s10, 1"); a("v_add_u32 v27, s12, v27")
    a("v_xor_b32 v27, v27, v25"); a("v_lshl_add_u32 v26, v27, 4, v26")
    a("v_and_b32 v27, 1, v%d" % RR); a("v_lshl_add_u32 v%d, v27, 3, v26" % OW)
    a("v_lshrrev_b32 v25, 2, v%d" % LN_); a("v_mul_u32_u24 v25, 224, v25"); a("v_and_b32 v26, 3, v%d" % LN_)
    a("v_add_u32 v25, s%d, v25" % sRING)
    a("v_lshl_add_u32 v%d, v26, 4, v25" % TR1); a("v_add_u32 v%d, s11, v%d" % (TR1, TR1))
    a("s_mul_i32 s12, s10, 192"); a("s_sub_u32 s12, 192, s12")
    a("v_lshl_add_u32 v%d, v26, 3, v25" % TR2); a("v_add_u32 v%d, s12, v%d" % (TR2, TR2))
    a("s_mov_b32 s%d, s%d" % (sOD, sOO))
    return L
def gbtable():
    L = [WAIT(v="gb")]
    for i in range(4):
        L += [O("v_lshlrev_b32 v%d, 16, v%d" % (32+2*i, 240+i)), O("v_and_b32 v%d, s%d, v%d" % (33+2*i, sMASK, 240+i))]
    L += [O("ds_write_b128 v30, v[32:35] offset:%d" % GTAB), O("ds_write_b128 v31, v[36:39] offset:%d" % GTAB), WAIT(l=0), O("s_barrier")]
    for v in range(7):
        L.append(O("ds_read_b128 %s, v%d offset:%d" % (vr(GE+4*v, 4), GA, GTAB+256*v)))
        L.append(O("ds_read_b128 %s, v%d offset:%d" % (vr(BE+4*v, 4), GA, BTAB+256*v), tag="gbr"))
    return L

def build():
    wn[0] = 0; stampn[0] = 0
    sub = ln_sub()
    code = []; trace = []
    def emit(L): code.extend(L); trace.extend(L)
    emit(prologue())
    xi = 0; li = 0; trdone = 0
    for tok in cfg.early.split():
        if tok == "G":
            emit([O("buffer_load_dwordx4 v[240:243], v24, s[%d:%d], 0 offen" % (SG, SG+3), tag="gb")])
        elif tok == "X":
            emit(xload(RAWE[xi], "x%d" % xi)); emit([O("s_add_u32 s%d, s%d, 14336" % (sXO, sXO))]); xi += 1
            if xi == 2: emit(addr_math())
        elif tok[0] == "w": emit(wdma(int(tok[1:])))
        elif tok[0] == "T":
            j = int(tok[1:]); emit([WAIT(v="w%d" % j)] + trreads(j) + [WAIT(l=0)]); trdone = j+1
        elif tok == "|":
            if li == 0: emit(stamp()); emit(gbtable())
            emit([WAIT(v="x%d" % li)])
            emit(stamp())
            for i in range(14): emit(unpack(RAWE[li], i))
            nxt = XBUF[li+1] if li < 3 else XBUF[2]
            emit([O("s_mov_b32 s%d, %d" % (sDELTA, (nxt - XBUF[li]) & 0xffffffff))])
            if li == 0: emit([WAIT(l="gbr")])
            emit([O("s_getpc_b64 s[%d:%d]" % (sRET, sRET+1)), O("s_add_u32 s%d, s%d, 12" % (sRET, sRET), tag="scc:r"), O("s_addc_u32 s%d, s%d, 0" % (sRET+1, sRET+1), needs=["scc:r"]), O("s_branch L_ln")])
            trace.extend(sub)
            li += 1
    assert xi == 4 and li == 4
    if trdone == 0:
        emit([WAIT(v="w0")] + trreads(0)); trdone = 1
    emit([WAIT(l=0), O("s_barrier")])
    emit(stamp())
    tiles = [(0, ACC2), (1, ACC1), (2, ACC0)]
    def xread(n, tag):
        j, t = divmod(n, 3)
        return O("ds_read_b128 %s, v%d offset:%d" % (vr(F[n & 1], 4), XR, XBUF[t] + 1024*j), tag=tag)
    emit([xread(0, "xf"), WAIT(l="xf")])
    for j in range(14):
        mf = [mfma(acc, j, t, F[(3*j+ti) & 1]) for ti, acc in tiles for t in range(7)]
        fixed = {}
        for ti in range(3):
            n = 3*j + ti
            if n < 41: fixed[7*ti] = [xread(n+1, "xf")]
            fixed[7*ti+6] = [WAIT(l="xf")]
        stream = []
        nd = min(98, 7*(trdone + NR)) - wn[0]
        d = wdma(nd)
        if wn[0] == 98 and nd > 0:
            d += xload(RAW, "xr") + [O("s_add_u32 s%d, s%d, 14336" % (sXO, sXO))]
        stream += d
        if trdone == j+1 and j < 13:
            stream += [WAIT(v="w%d" % (j+1))] + trreads(j+1); trdone += 1
            fixed[20] = [WAIT(l=0)]
        if j == 13:
            e0 = epi_inplace(ACC2); e1 = epi_inplace(ACC1)
            for k, G in enumerate(e0): fixed.setdefault(8+k+(k == 3), []).extend(G)
            fixed[13] = [WAIT(l=0)]
            fixed[14] = [O("s_barrier"), O("v_xor_b32 v%d, 0x4000, v%d" % (XR, XR)), O("ds_read_b128 %s, v%d" % (vr(F[0], 4), XR), tag="xf")]
            for k, G in enumerate(e1): fixed.setdefault(15+k, []).extend(G)
            for t in range(3): fixed.setdefault(18+t, []).extend(pkcvt(t))
        emit(weave(mf, fixed, stream, 0, 19))
    emit(stamp())
    emit([O("s_mov_b32 s%d, 0" % sCNT)])
    def body(ln, last):
        mf = [mfma(ACC0, j, t, F[j & 1]) for j in range(14) for t in range(7)]
        fixed = {}
        def fx(g, ops): fixed.setdefault(g, []).extend(ops)
        for j in range(13):
            fx(7*j, [O("ds_read_b128 %s, v%d offset:%d" % (vr(F[(j+1) & 1], 4), XR, 1024*(j+1)), tag="xf")])
            fx(7*j+6, [WAIT(l="xf") if j < 12 or last else WAIT(l=0)])
        for t in range(3, 7): fx([1, 2, 3, 4][t-3], pkcvt(t))
        fx(5, [store(PK, 0)]); fx(9, [store(PK+4, 1)]); fx(12, [store(PK+8, 2), O("s_add_u32 s%d, s%d, 14336" % (sOO, sOO))])
        fx(8, [O("ds_write_b64 v%d, %s" % (OW, vr(PK+12, 2)), cost=3)])
        fx(10, [O("v_add_u32 v%d, 0x800, v%d" % (OW, OW))])
        fx(11, [O("ds_read_b128 %s, v%d" % (vr(OT, 4), OR), tag="od")])
        if not last:
            fx(16, [O("s_sub_u32 s%d, s%d, 1" % (sT, sCNT))]); fx(17, [O("s_cmp_lt_u32 s%d, 2" % sT, tag="scc:o")])
            fx(18, [O("s_cselect_b32 s%d, s%d, s%d" % (sT, sOD, sBIG), needs=["scc:o"])]); fx(19, [O("s_cselect_b32 s11, 0x1000, 0", needs=["scc:o"])])
            fixed[1].insert(0, O("s_cmp_lt_u32 s%d, 3" % sCNT, tag="scc:x")); fixed[2].insert(0, O("s_cselect_b32 s%d, s%d, s%d" % (sXO, sXO, sBIG), needs=["scc:x"]))
            fx(22, [O("s_mul_i32 s12, s11, 7")])
            fx(23, [O("buffer_store_dwordx4 %s, v%d, s[%d:%d], s%d offen%s" % (vr(OT, 4), OS, SO, SO+3, sT, cfg.spol))])
            fx(24, [O("s_add_u32 s%d, s%d, s12" % (sOD, sOD)), O("v_add_u32 v%d, s11, v%d" % (OR, OR))])
        else:
            fx(23, [O("buffer_store_dwordx4 %s, v%d, s[%d:%d], s%d offen%s" % (vr(OT, 4), OS, SO, SO+3, sOD, cfg.spol))])
            fx(24, [O("s_add_u32 s%d, s%d, 28672" % (sOD, sOD)), O("v_add_u32 v%d, 0x1000, v%d" % (OR, OR))])
        if not last:
            fx(91, [O("s_barrier"), O("v_xor_b32 v%d, 0x4000, v%d" % (XR, XR)), O("ds_read_b128 %s, v%d" % (vr(F[0], 4), XR), tag="xf")])
            fx(92, [O("v_xor_b32 v%d, 0x4000, v%d" % (LW+c, LW+c)) for c in range(2)])
            fx(93, [O("v_xor_b32 v%d, 0x4000, v%d" % (LW+c, LW+c)) for c in range(2, 4)])
            fx(94, [O("s_add_u32 s%d, s%d, 1" % (sCNT, sCNT)), O("s_nop 0")])
            fx(96, [O("s_cmp_lt_u32 s%d, 4" % sCNT, tag="scc:l")])
            fx(97, [WAIT(l="xf")])
        else:
            fx(92, [O("s_nop 0")]); fx(93, [O("s_nop 0")]); fx(94, [O("s_nop 1")])
        for t in range(3): fx(95+t, pkcvt(t))
        st = []
        if ln:
            st.append(WAIT(v="xr"))
            for i in range(14):
                st += unpack(RAW, i)
                u0, u1 = U+2*i, U+2*i+1
                if i == 0: st += [O("v_add_f32 v%d, v%d, v%d" % (SS, u0, u1)), O("v_mul_f32 v%d, v%d, v%d" % (SQ, u0, u0)), O("v_fmac_f32 v%d, v%d, v%d" % (SQ, u1, u1))]
                else: st += [O("v_add_f32 v%d, v%d, v%d" % (SS, SS, u0)), O("v_fmac_f32 v%d, v%d, v%d" % (SQ, u0, u0)), O("v_add_f32 v%d, v%d, v%d" % (SS, SS, u1)), O("v_fmac_f32 v%d, v%d, v%d" % (SQ, u1, u1))]
                if i in (3, 7, 11, 13): st.append(xload(RAW, "xr")[i//4])
            st.append(O("s_add_u32 s%d, s%d, 14336" % (sXO, sXO)))
            def gbread(v):
                g = GT[v & 1]
                return [O("ds_read_b128 %s, v%d offset:%d" % (vr(g, 4), GA, GTAB+256*v)), O("ds_read_b128 %s, v%d offset:%d" % (vr(g+4, 4), GA, BTAB+256*v), tag="gb%d" % (v & 1))]
            sm = statmath(SS, SQ, SR, SN, False)
            r0 = gbread(0); r1 = gbread(1)
            st += [O("s_nop 0")] + sm[0:2] + [r0[0]] + sm[2:4] + [r0[1]] + sm[4:6] + [r1[0]] + sm[6:8] + [r1[1]] + sm[8:]
            for v in range(7):
                g = GT[v & 1]
                for i in range(4): st.append(O("v_fma_f32 v%d, v%d, v%d, v%d" % (U+4*v+i, U+4*v+i, SR, SN)))
                st.append(WAIT(l="gb%d" % (v & 1)))
                for i in range(4): st.append(O("v_fmac_f32 v%d, v%d, v%d" % (g+4+i, U+4*v+i, g+i)))
                d = U + 8*(v >> 1) + 2*(v & 1)
                st += [cvt(d, g+4), cvt(d+1, g+6)]
                if v+2 < 7: st += gbread(v+2)
                if v & 1 or v == 6: st.append(lnwrite(v >> 1))
        return weave(mf, fixed, st, 5, 88)
    b1 = [O("L_loop:")] + body(True, False) + [O("s_cbranch_scc1 L_loop", needs=["scc:l"])]
    code.extend(b1); trace.extend(b1*2)
    emit(stamp())
    emit(body(False, True))
    T = []
    T += [O("s_nop 1")] + pkcvt(3) + [store(PK, 0)] + pkcvt(4) + [store(PK+4, 1)] + pkcvt(5) + pkcvt(6)
    T += [O("ds_write_b64 v%d, %s" % (OW, vr(PK+12, 2))), store(PK+8, 2), WAIT(l=0), O("s_barrier"),
          O("ds_read_b128 %s, v%d" % (vr(OT, 4), OR)), WAIT(l=0),
          O("buffer_store_dwordx4 %s, v%d, s[%d:%d], s%d offen%s" % (vr(OT, 4), OS, SO, SO+3, sOD, cfg.spol))]
    emit(T)
    if cfg.stamps:
        emit(stamp()); emit([O("s_waitcnt vmcnt(0)")]); emit(stamp())
        S = [O("s_waitcnt lgkmcnt(0)"), O("s_mov_b32 s50, 0x10000000"), O("s_mov_b32 s51, 0x20000"), O("v_mov_b32 v20, 0")]
        for i in range(stampn[0]): S.append(O("v_writelane_b32 v20, s%d, %d" % (60+2*i, i)))
        S += [O("s_lshl_b32 s3, s2, 2"), O("s_add_u32 s3, s3, s%d" % sW), O("s_lshl_b32 s3, s3, 8"),
              O("v_mbcnt_lo_u32_b32 v21, -1, 0"), O("v_mbcnt_hi_u32_b32 v21, -1, v21"), O("v_lshlrev_b32 v21, 2, v21"),
              O("buffer_store_dword v20, v21, s[48:51], s3 offen")]
        emit(S)
    emit([O("L_end:"), O("s_endpgm")])
    code.extend(sub)
    errs = resolve_and_verify(trace)
    for e in errs[:40]: print("ERR", e, file=sys.stderr)
    if errs: raise Exception("verify failed: %d" % len(errs))
    return code

def write(path, kname=NAME+"_kernel"):
    code = build()
    hdr = open('cdna_kernels/%s.s.ref' % NAME).read().split('\n')
    L = [l for l in hdr if l.startswith(';') and '@launch' not in l]
    L += ["; @launch grid=(256,1,1) block=(256,1,1) lds=163840", '.amdgcn_target "amdgcn-amd-amdhsa--gfx950"', ".text",
          ".globl %s" % kname, ".p2align 8", ".type %s,@function" % kname, "%s:" % kname]
    L += [("" if o.kind == "L" else "    ") + o.render() for o in code]
    L += ['.section .rodata,"a"', ".p2align 6", ".amdhsa_kernel %s" % kname, "  .amdhsa_next_free_vgpr 512", "  .amdhsa_next_free_sgpr 96",
          "  .amdhsa_accum_offset 256", "  .amdhsa_group_segment_fixed_size 0", "  .amdhsa_kernarg_size 56", "  .amdhsa_user_sgpr_count 2",
          "  .amdhsa_user_sgpr_kernarg_segment_ptr 1", "  .amdhsa_system_sgpr_workgroup_id_x 1", ".end_amdhsa_kernel"]
    open(path, 'w').write('\n'.join(L) + '\n')
if __name__ == "__main__":
    write("v1.s")
    cfg.stamps = True
    write("v1s.s")
```

```python
import re
class Op:
    __slots__ = ("text", "kind", "tag", "needs", "needs2", "seen", "wl", "wv", "nl", "nv", "at", "cost", "sem")
    def __init__(self, text, kind=None, tag=None, needs=(), wl=None, wv=None, at=None, cost=None, needs2=(), sem=None):
        self.text = text; self.tag = tag; self.needs = tuple(needs)
        self.needs2 = tuple(needs2); self.seen = 0
        self.wl = wl; self.wv = wv
        self.nl = None; self.nv = None
        self.at = at
        self.kind = kind or classify(text)
        self.cost = cost
        self.sem = sem
    def render(self):
        if self.kind == "W":
            parts = []
            if self.nv is not None: parts.append("vmcnt(%d)" % min(self.nv, 63))
            if self.nl is not None: parts.append("lgkmcnt(%d)" % min(self.nl, 15))
            if not parts: return "s_nop 0"
            return "s_waitcnt " + " ".join(parts)
        return self.text
def classify(t):
    m = t.split()[0]
    if m.endswith(":") or m.startswith(".") or m.startswith(";"): return "L"
    if m.startswith("v_mfma"): return "M"
    if m.startswith("v_"): return "V"
    if m.startswith("ds_"): return "D"
    if m.startswith("buffer_") or m.startswith("global_"): return "G"
    if m.startswith("s_load") or m.startswith("s_memtime") or m.startswith("s_memrealtime"): return "K"
    return "S"
def WAIT(l=None, v=None, **kw):
    return Op("s_waitcnt", kind="W", wl=l, wv=v, **kw)
RE_REG = re.compile(r"\b([va])(?:\[(\d+):(\d+)\]|(\d+)\b)")
def regs_of(s):
    out = []
    for m in RE_REG.finditer(s):
        p = m.group(1)
        if m.group(2) is not None: out += [(p, i) for i in range(int(m.group(2)), int(m.group(3))+1)]
        else: out.append((p, int(m.group(4))))
    return out
def rw(op):
    t = op.text
    if op.kind in ("L", "W", "S", "K"): return [], []
    mn, _, rest = t.partition(" ")
    ops = [x.strip() for x in rest.split(",")]
    if op.kind == "D":
        if mn.startswith("ds_read"): return regs_of(",".join(ops[1:])), regs_of(ops[0])
        return regs_of(rest), []
    if op.kind == "G":
        if "load" in mn and not t.rstrip().endswith(" lds") and "_lds_" not in mn: return regs_of(",".join(ops[1:])), regs_of(ops[0])
        return regs_of(rest), []
    if mn.startswith("v_cmp") or mn.startswith("v_readfirstlane") or mn.startswith("v_readlane"): return regs_of(",".join(ops[1:])), []
    w = regs_of(ops[0]); r = regs_of(",".join(ops[1:]))
    if mn.startswith("v_fmac") or mn.startswith("v_writelane") or "_dpp" in mn and "bank_mask:0xf" not in t: r = r + w
    if mn.startswith("v_permlane"): r = r + w; w = w + regs_of(ops[1])
    if "op_sel_hi" in t and mn.startswith("v_pk"):
        pass
    return r, w
TRANS = ("v_rsq", "v_rcp", "v_sqrt", "v_exp", "v_log")
def resolve_and_verify(trace, name=""):
    for op in trace:
        if op.kind == "W": op.nl = None; op.nv = None
    lastD = {}; lastG = {}; nD = 0; nG = 0
    for op in trace:
        if op.kind == "D":
            nD += 1
            if op.tag: lastD[op.tag] = nD
        elif op.kind == "G":
            nG += 1
            if op.tag: lastG[op.tag] = nG
        elif op.kind == "W":
            if op.wl is not None:
                if isinstance(op.wl, int): n = op.wl
                elif op.wl in lastD: n = nD - lastD[op.wl]
                else: n = None
                if n is not None: op.nl = n if op.nl is None else min(op.nl, n)
            if op.wv is not None:
                if isinstance(op.wv, int): n = op.wv
                elif op.wv in lastG: n = nG - lastG[op.wv]
                else: n = None
                if n is not None: op.nv = n if op.nv is None else min(op.nv, n)
    errs = []
    outD = []; outG = []
    hist = []
    st = 0
    lastw = {}
    lastC = {}
    laststore = {}
    m0w = -10
    sccw = [None]
    seen_tags = set()
    for idx, op in enumerate(trace):
        if op.kind == "L": continue
        if op.kind == "W":
            if op.nl is not None:
                n = min(op.nl, 15); outD = outD[len(outD)-n:] if n < len(outD) else outD
                if n == 0: outD = []
            if op.nv is not None:
                n = min(op.nv, 63); outG = outG[len(outG)-n:] if n < len(outG) else outG
                if n == 0: outG = []
            st += 1
            continue
        t = op.text; mn = t.split()[0]
        if mn == "s_waitcnt":
            m = re.search(r"lgkmcnt\((\d+)\)", t)
            if m:
                n = int(m.group(1)); outD = outD[len(outD)-n:] if 0 < n < len(outD) else ([] if n == 0 else outD)
            m = re.search(r"vmcnt\((\d+)\)", t)
            if m:
                n = int(m.group(1)); outG = outG[len(outG)-n:] if 0 < n < len(outG) else ([] if n == 0 else outG)
            st += 1; continue
        if op.kind == "S":
            if mn.startswith(("s_cselect", "s_cbranch_scc", "s_addc")):
                want = [x for x in op.needs if x.startswith("scc:")]
                if not want: errs.append("%s[%d] scc consumer without id '%s'" % (name, idx, t))
                elif sccw[0] != want[0]: errs.append("%s[%d] scc clobbered: '%s' wants %s has %s" % (name, idx, t, want[0], sccw[0]))
            if mn.startswith(("s_cmp", "s_add", "s_sub", "s_and", "s_or", "s_xor", "s_lshl", "s_lshr", "s_min", "s_max", "s_bfe")): sccw[0] = op.tag
        r, w = rw(op)
        pend = {}
        for o, ww in outD + outG:
            for x in ww: pend[x] = o
        for x in r + w:
            if x in pend: errs.append("%s[%d] '%s' touches %s pending from '%s'" % (name, idx, t, x, pend[x].text)); break
        op.seen += 1
        for tg in op.needs + (op.needs2 if op.seen > 1 else ()):
            if not tg.startswith("scc:") and tg not in seen_tags: errs.append("%s[%d] needs tag %s never issued" % (name, idx, tg))
            for o, ww in outD + outG:
                if o.tag == tg or (isinstance(o.tag, str) and o.tag.startswith(tg + "#")): errs.append("%s[%d] '%s' needs tag %s still outstanding" % (name, idx, t, tg)); break
        def dist(x): return st - lastw[x][0] - 1 if x in lastw else 99
        if op.kind == "M":
            ops = [x.strip() for x in t.partition(" ")[2].split(",")]
            D = regs_of(ops[0]); A = regs_of(ops[1]); B = regs_of(ops[2]); C = regs_of(ops[3])
            for x in A + B + C:
                if x in lastw and lastw[x][1] == "V" and dist(x) < 2: errs.append("%s[%d] VALU->MFMA hazard %s '%s'" % (name, idx, x, t))
            for x in A + B:
                if x in lastw and lastw[x][1] == "M" and dist(x) < 8: errs.append("%s[%d] MFMA->MFMA AB hazard '%s'" % (name, idx, t))
            if C and C != D:
                for x in C:
                    if x in lastw and lastw[x][1] == "M" and dist(x) < 6: errs.append("%s[%d] MFMA C overlap hazard '%s'" % (name, idx, t))
            for x in C: lastC[x] = st
        else:
            for x in r + w:
                if x in lastw and lastw[x][1] == "M" and dist(x) < 8: errs.append("%s[%d] MFMA->use hazard %s dist %d '%s'" % (name, idx, x, dist(x), t)); break
            if op.kind == "V":
                for x in w:
                    if x in lastC and st - lastC[x] - 1 < 3: errs.append("%s[%d] MFMA srcC WAR '%s'" % (name, idx, t))
                    if x in laststore and st - laststore[x] - 1 < 2: errs.append("%s[%d] store data WAR '%s'" % (name, idx, t))
                if "_dpp" in mn or mn.startswith("v_permlane"):
                    for x in r:
                        if x in lastw and lastw[x][1] == "V" and dist(x) < 2: errs.append("%s[%d] DPP/permlane hazard %s '%s'" % (name, idx, x, t))
                if mn.startswith("v_readfirstlane") or mn.startswith("v_readlane"):
                    for x in r:
                        if x in lastw and lastw[x][1] == "V" and dist(x) < 1: errs.append("%s[%d] readlane hazard '%s'" % (name, idx, t))
                for x in r:
                    if x in lastw and lastw[x][2].startswith(TRANS) and dist(x) < 1 and not mn.startswith(TRANS): errs.append("%s[%d] trans hazard '%s'" % (name, idx, t))
        if op.kind == "M" or (op.kind in ("D", "G") and w):
            for x in w:
                if x in laststore and st - laststore[x] - 1 < 2: errs.append("%s[%d] store data WAR(2) '%s'" % (name, idx, t))
        if op.kind == "G" and t.rstrip().endswith(" lds") and st - m0w - 1 < 1: errs.append("%s[%d] M0 hazard '%s'" % (name, idx, t))
        if op.kind == "S" and re.match(r"s_\w+ m0,", t): m0w = st
        if op.kind == "G" and "store" in mn and ("x4" in mn or "x3" in mn):
            for x in regs_of(t.partition(" ")[2].split(",")[0]): laststore[x] = st
        if op.tag: seen_tags.add(op.tag); seen_tags.add(op.tag.split("#")[0] + "#")
        if op.kind == "D": outD.append((op, w))
        if op.kind == "G": outG.append((op, w))
        if op.kind in ("V", "M"):
            for x in w: lastw[x] = (st, op.kind, mn)
        elif w:
            for x in w: lastw.pop(x, None)
        if mn == "s_nop": st += int(t.split()[1]) + 1
        else: st += 1
        if len(outD) > 15 and False: errs.append("too many DS outstanding at %d" % idx)
    return errs

def semcheck(trace):
    lab = {}; errs = []; stored = set()
    m0 = None; adv = {}; so2 = None
    for idx, op in enumerate(trace):
        if op.kind == "S":
            m = re.match(r"s_add_u32 m0, s\d+, (\d+)", op.text)
            if m: m0 = int(m.group(1))
            if op.sem and op.sem[0] == "ADV": adv[op.sem[1]] = adv.get(op.sem[1], 0) + op.sem[2]
            if op.sem and op.sem[0] == "SO": so2 = op.sem[1]
        if op.kind in ("L", "W", "S", "K"): continue
        r, w = rw(op)
        sem = op.sem; new = {}
        if sem and sem[0] == "DM":
            if m0 != sem[1] or adv.get(sem[2], 0) != sem[3]: errs.append("[%d] %s DMA state m0=%s adv=%s want %s" % (idx, op.text, m0, adv, sem))
        if sem and sem[0] in ("ST", "OS") and so2 != (sem[0], sem[1]): errs.append("[%d] %s soffset is %s" % (idx, op.text, so2))
        ops = [x.strip() for x in op.text.partition(" ")[2].split(",")]
        if sem:
            k = sem[0]
            if k == "W":
                for i, x in enumerate(w): new[x] = ("W", sem[1], sem[2], 2*sem[3]+i)
            elif k == "X":
                for i, x in enumerate(w): new[x] = ("X", sem[1], sem[2], i)
            elif k == "M":
                _, tile, j, t = sem
                D = regs_of(ops[0]); A = regs_of(ops[1]); B = regs_of(ops[2]); C = regs_of(ops[3])
                for i, x in enumerate(A):
                    if lab.get(x) != ("W", j, t, i): errs.append("[%d] %s A %s has %s" % (idx, op.text, x, lab.get(x)))
                for i, x in enumerate(B):
                    if lab.get(x) != ("X", tile, j, i): errs.append("[%d] %s B %s has %s want tile %d j %d" % (idx, op.text, x, lab.get(x), tile, j))
                for i, x in enumerate(D):
                    if C:
                        l = lab.get(C[i])
                        if not l or l[:4] != ("A", tile, t, i) or j in l[4]: errs.append("[%d] %s C has %s" % (idx, op.text, l)); js = frozenset()
                        else: js = l[4]
                    else: js = frozenset()
                    new[x] = ("A", tile, t, i, js | {j})
            elif k == "C":
                a, b = lab.get(r[0]), lab.get(r[1])
                if not a or not b or a[0] != "A" or b[0] != "A" or len(a[4]) != 14 or len(b[4]) != 14 or a[1:3] != b[1:3] or a[3]+1 != b[3] or a[3] & 1:
                    errs.append("[%d] %s cvt of %s %s" % (idx, op.text, a, b))
                else: new[w[0]] = ("P", a[1], a[2], a[3]//2)
            elif k == "ST":
                for i, x in enumerate(regs_of(ops[0])):
                    if lab.get(x) != ("P", sem[1], 2*sem[2] + i//2, i & 1): errs.append("[%d] %s store has %s want tile %d P %d" % (idx, op.text, lab.get(x), sem[1], sem[2]))
                stored.add((sem[1], sem[2]))
            elif k == "OW":
                for i, x in enumerate(regs_of(ops[1].split()[0])):
                    if lab.get(x) != ("P", sem[1], 6, i): errs.append("[%d] %s oddw has %s" % (idx, op.text, lab.get(x)))
                stored.add((sem[1], 3))
        for x in w: lab.pop(x, None)
        lab.update(new)
    if len(stored) != 32: errs.append("stored only %d: missing %s" % (len(stored), [(t, p) for t in range(8) for p in range(4) if (t, p) not in stored]))
    return errs
```

```python
import sys, struct
from gen_core import *
NAME = "standalone__layernorm_linear__sampling"
def f2u(f): return struct.unpack('<I', struct.pack('<f', f))[0]
NB = 32768*896

class Cfg:
    stamps = False
    sites = "m"
    early = "G x12 A A2 x4 B C:x2@60 x2 d4 C:x2@60 x2 d4 C:x2@60 x2 d4 C:x2@60 x2 d4 C:w1@60 w2 d4 C:w1@60 w2 d4 Z C:w1@60 w2 d4 C:w3@50,w2@60,ta@70,tb@85"
    imgoff = [1536, 8704]*7
    worder = {}
    horder = {}
    xpol = " nt"
    spol = " sc1"
    cpf = 4
    plan = None
    cyc = False
    inw = True
    pace = 14
    endv = 2
    fo = 3
    lead = 7
    e13 = 14
    nostore = False
    nobar2 = False
    gw = 8
    gwstep = 2
    minp = 12
    lat = 3
    tro = 5
    ybar = 4
    nobar = False
    ywr = 8
    trn = 6
cfg = Cfg()

XR, ST, OW, OR, OS, TR1, TR2 = 0, 1, 2, 3, 4, 5, 23
F = [8, 12]
T = 16
VO = 16
ACC = {0: 36, 1: 64, 2: 92, 3: 228}
LWY, LWZ, RA, RB, VL, SS, SQ = 120, 1, 128, 129, 130, 132, 134
PARK = [24, 28, 32, 6]
U = 144; GE = 172; BE = 200
RAW = [228, 242, 106, 92, 78, 64, 50, 36]
sW, sMASK, sWO, sWLIM, sREG, sXO, sOO, sT, sRET, sT2, sO2, sPAR, sINV = 32, 33, 34, 35, 36, 37, 38, 39, 40, 45, 46, 47, 44
SX, SG, SWd, SO = 16, 20, 24, 28
WREG = 40960
IMG = {"A": 0, "B": 7168}
YO = 15872; ZO = YO + 14336
T7O = 0; ODDO = 3584
GTAB = 8704
def wf(j, t, half=None, tmp=None):
    f = 7*j + t
    p, r = ("a", 4*f) if f < 64 else ("v", 120 + 4*(f-64))
    if tmp is not None: p, r = "v", tmp
    if half is None: return "%s[%d:%d]" % (p, r, r+3)
    return "%s[%d:%d]" % (p, r+2*half, r+2*half+1)
def vr(a, n): return "v[%d:%d]" % (a, a+n-1)
O = Op
stampn = [0]; stampnames = []
def stamp(site="m"):
    if not cfg.stamps or site[0] not in cfg.sites + "z": return []
    i = stampn[0]; stampn[0] += 1; stampnames.append(site)
    assert 52+2*i+1 <= 101
    return [O("%s s[%d:%d]" % ("s_memtime" if cfg.cyc else "s_memrealtime", 52+2*i, 53+2*i), kind="S", cost=0.01)]
def mfma(acc, j, t, fb, tmp=None, tile=None):
    a = vr(acc+4*t, 4)
    return O("v_mfma_f32_16x16x32_bf16 %s, %s, %s, %s" % (a, wf(j, t, None, tmp), fb if isinstance(fb, str) else vr(fb, 4), "0" if j == 0 else a), sem=("M", tile, j, t))
m0state = [None]; TR2late = [False]
def setm0(off):
    if m0state[0] == off: return []
    m0state[0] = off
    return [O("s_add_u32 m0, s%d, %d" % (sREG, off))]
xn = [0]; wn = [0]
def xdma(n):
    L = []
    for _ in range(n):
        tl, c = divmod(xn[0], 4); xn[0] += 1
        if c == 0 and tl > 0: L.append(O("s_add_u32 s%d, s%d, 3584" % (sXO, sXO)))
        if c < 3: L.append(O("buffer_load_dwordx4 %s, v%d, s[%d:%d], s%d offen offset:%d%s" % (vr(RAW[tl]+4*c, 4), RA, SX, SX+3, sXO, 256*c, cfg.xpol), tag="x%d_%d" % (tl, c)))
        else: L.append(O("buffer_load_dwordx2 %s, v%d, s[%d:%d], s%d offen offset:768%s" % (vr(RAW[tl]+12, 2), RB, SX, SX+3, sXO, cfg.xpol), tag="x%d_%d" % (tl, c)))
    return L
def ioff(j): return cfg.imgoff[j]
def worder(j): return cfg.worder.get(j, list(range(7)))
def wland(j, h):
    o = worder(j); mem = range(0, 4) if h == 0 else range(3, 7)
    return "w%d_%d" % (j, max(mem, key=o.index))
def wneeds(j, i):
    a = ioff(j) + 1024*i; needs = []
    for k in range(j):
        for h in range(2):
            lo = ioff(k) + 3584*h
            if a < lo + 3584 and lo < a + 1024: needs.append((k, h))
    return needs
def wdma(n):
    L = []
    for _ in range(n):
        j, ii = divmod(wn[0], 7); wn[0] += 1
        i = worder(j)[ii]
        m0 = ioff(j) + (3072 if i >= 3 else 0)
        pre = setm0(m0)
        if ii == 0 and j > 0:
            pre.append(O("s_add_u32 s%d, s%d, 28672" % (sWO, sWO), sem=("ADV", "w", 0.5)))
            pre.append(O("s_cmp_ge_u32 s%d, s%d" % (sWO, sWLIM), tag="scc:w"))
            pre.append(O("s_cselect_b32 s%d, s%d, s%d" % (sWO, sT2, sWO), needs=["scc:w"], sem=("ADV", "w", 0.5)))
        if len(pre) == 1: pre.append(O("s_nop 0"))
        L += pre
        needs = ["tr%dh%d" % x for x in wneeds(j, i)]
        a = ioff(j) + 1024*i
        if GTAB <= a < GTAB + 4096: needs.append("gbr")
        L.append(O("buffer_load_dwordx4 v%d, s[%d:%d], s%d offen offset:%d lds" % (VO+i, SWd, SWd+3, sWO, 1024*(i-3 if i >= 3 else i)), tag="w%d_%d" % (j, i), needs=needs, sem=("DM", m0, "w", j)))
    return L
def trreads(j, h, ts=range(7), tmp=None, tag=None):
    L = []; ts = list(ts)
    for k, t in enumerate(ts):
        off = ioff(j) + h*3584 + (64*(t >> 1) + 8*(t & 1) if t < 6 else 0)
        tg = tag or "tr%dh%d" % (j, h)
        L.append(O("ds_read_b64_tr_b16 %s, v%d offset:%d" % (wf(j, t, h, None if tmp is None else tmp+4*k), TR1 if t < 6 else (6 if TR2late[0] else TR2), off),
                   tag=(tg if k == len(ts)-1 else tg + "#%d" % t), needs=["w%d_%d" % (j, i) for i in (range(0, 4) if h == 0 else range(3, 7))], sem=("W", j, t, h)))
    return L
def dpp(r, n): return O("v_add_f32_dpp v%d, v%d, v%d row_ror:%d row_mask:0xf bank_mask:0xf" % (r, r, r, n))
def ln_code(li):
    S, Q = SS, SQ; R, N = SQ+1, SS+1
    RW = RAW[li]
    dst = [RW, RW+4, RW+8, RW+12] if li < 7 else PARK
    p = lambda a: vr(a, 2)
    A = []
    for i in range(14):
        if i % 4 == 0: A.append(WAIT(v="x%d_%d" % (li, i//4)))
        if i == 12: A += stamp("r%d" % li)
        A += [O("v_lshlrev_b32 v%d, 16, v%d" % (U+2*i, RW+i)), O("v_and_b32 v%d, s%d, v%d" % (U+2*i+1, sMASK, RW+i))]
        if i == 1: A += [O("v_pk_add_f32 %s, %s, %s" % (p(S), p(U), p(U+2))), O("v_pk_mul_f32 %s, %s, %s" % (p(Q), p(U), p(U)))]
        if i >= 2:
            k = i-1
            if k >= 2: A.append(O("v_pk_add_f32 %s, %s, %s" % (p(S), p(S), p(U+2*k))))
            A.append(O("v_pk_fma_f32 %s, %s, %s, %s" % (p(Q), p(U+2*k), p(U+2*k), p(Q))))
    A += [O("v_pk_add_f32 %s, %s, %s" % (p(S), p(S), p(U+26))), O("v_pk_fma_f32 %s, %s, %s, %s" % (p(Q), p(U+26), p(U+26), p(Q)))]
    A += [O("v_add_f32 v%d, v%d, v%d" % (S, S, S+1)), O("v_add_f32 v%d, v%d, v%d" % (Q, Q, Q+1)), O("s_nop 0")]
    for n in (8, 4, 2, 1):
        A += [dpp(S, n), dpp(Q, n)] + ([O("s_nop 0")] if n != 1 else [])
    A += [O("v_mul_f32 v%d, 0x%08x, v%d" % (S, f2u(1.0/448), S)),
          O("v_mul_f32 v%d, v%d, v%d" % (N, S, S)),
          O("v_fma_f32 v%d, v%d, s%d, -v%d" % (Q, Q, sINV, N)),
          O("v_max_f32 v%d, 0, v%d" % (Q, Q)),
          O("v_add_f32 v%d, 0x%08x, v%d" % (Q, f2u(1e-5), Q)),
          O("v_rsq_f32 v%d, v%d" % (R, Q)),
          O("s_nop 0"),
          O("v_mul_f32_e64 v%d, -v%d, v%d" % (N, S, R))]
    if li == 0: A.append(WAIT(l="gbr"))
    for c in range(4):
        n = 4 if c < 3 else 2
        for i in range(4*c, 4*c+n):
            A.append(O("v_pk_fma_f32 %s, %s, %s, %s op_sel:[0,1,1] op_sel_hi:[1,1,1]" % (p(U+2*i), p(U+2*i), p(Q), p(S))))
        for i in range(4*c, 4*c+n):
            A.append(O("v_pk_fma_f32 %s, %s, %s, %s" % (p(U+2*i), p(U+2*i), p(GE+2*i), p(BE+2*i))))
        for i in range(n):
            A.append(O("v_cvt_pk_bf16_f32 v%d, v%d, v%d" % (dst[c]+i, U+8*c+2*i, U+8*c+2*i+1)))
    return A
def lnwrites(i):
    lw, off = (LWY, YO + 256*i) if i < 4 else (LWZ, ZO + 3584*(i-4))
    src = [RAW[i], RAW[i]+4, RAW[i]+8, RAW[i]+12]; nd = []
    if i == 7: off = T7O; src = PARK; nd = ["tr12h0"]
    return [O("ds_write_b128 v%d, %s offset:%d" % (lw+c, vr(src[c], 4), off), cost=5, needs=nd) for c in range(3)] + [O("ds_write_b64 v%d, %s offset:%d" % (lw+3, vr(src[3], 2), off), cost=3, needs=nd)]
def xoff(tile, j):
    if tile == 7: return T7O + 256*j
    return YO + 1024*j + 256*tile if tile < 4 else ZO + 3584*(tile-4) + 256*j

def cost(op):
    if op.cost: return op.cost
    return {"V": 1, "S": 1, "W": 1, "D": 2, "G": 3, "K": 1, "L": 0}[op.kind]
def weave(mf, fixed, stream, g0, g1):
    n = len(mf)
    for ex in range(0, 400):
        extra = ex * 0.02
        gaps = [list(fixed.get(g, [])) for g in range(n)]
        si = 0; credit = 0.0
        for g in range(g0, g1+1):
            used = 0; hasV = False
            for o in gaps[g]:
                if o.kind == "V" and used < 1: used = 1
                used += cost(o); hasV |= o.kind == "V"
            credit += extra
            while si < len(stream):
                o = stream[si]
                if o.at is not None and o.at > g: break
                u = used
                if o.kind == "V" and u < 1: u = 1
                if o.kind in ("D", "G") and hasV: break
                u += cost(o)
                over = max(0, u-3.1) - max(0, used-3.1)
                if over > 0:
                    if used < 0.5: pass
                    elif credit >= over: credit -= over
                    else: break
                gaps[g].append(o); used = u; hasV |= o.kind == "V"; si += 1
        if si == len(stream): break
    else:
        raise Exception("weave failed")
    out = []; tot = 0
    for g in range(n):
        out.append(mf[g]); out += gaps[g]
        u = 0
        for o in gaps[g]:
            if o.kind == "V" and u < 1: u = 1
            u += cost(o)
        tot += max(4, 1+u)
    print("weave: n=%d extra=%.2f est cycles=%d (ideal %d)" % (n, extra, tot*4, n*16), file=sys.stderr)
    return out
def cvt(dst, a): return O("v_cvt_pk_bf16_f32 v%d, v%d, v%d" % (dst, a, a+1), sem=("C",))

def prologue():
    L = []
    a = lambda s, **k: L.append(O(s, **k))
    L += stamp("z")
    a("s_load_dwordx2 s[%d:%d], s[0:1], 0" % (SX, SX+1))
    a("s_load_dwordx4 s[4:7], s[0:1], 8")
    a("s_load_dwordx2 s[%d:%d], s[0:1], 24" % (SWd, SWd+1))
    a("s_load_dwordx2 s[%d:%d], s[0:1], 32" % (SO, SO+1))
    if cfg.stamps: a("s_load_dwordx2 s[48:49], s[0:1], 48")
    a("s_cmp_ge_u32 s2, 256", tag="scc:e"); a("s_cbranch_scc1 L_end", needs=["scc:e"])
    LN_ = 40
    a("v_lshrrev_b32 v43, 6, v0")
    a("v_and_b32 v%d, 63, v0" % LN_)
    a("v_readfirstlane_b32 s%d, v43" % sW)
    a("s_lshr_b32 s3, s2, 3")
    if cfg.cpf:
        nl = 176 // (4*cfg.cpf)
        a("s_getpc_b64 s[12:13]")
        a("s_and_b32 s11, s3, %d" % (cfg.cpf-1)); a("s_lshl_b32 s11, s11, 2"); a("s_add_u32 s11, s11, s%d" % sW)
        a("s_mul_i32 s11, s11, %d" % (nl*128)); a("s_add_u32 s12, s12, s11", tag="scc:c"); a("s_addc_u32 s13, s13, 0", needs=["scc:c"])
        a("v_min_u32 v48, %d, v%d" % (nl-1, LN_)); a("v_lshlrev_b32 v48, 7, v48")
        a("v_mov_b32 v49, s13"); a("v_add_co_u32 v48, vcc, s12, v48")
    a("v_lshlrev_b32 v%d, 4, v%d" % (VL, LN_))
    a("s_mul_i32 s%d, s2, %d" % (sOO, 128*896))
    if cfg.cpf:
        a("v_addc_co_u32 v49, vcc, 0, v49, vcc")
        a("global_load_dword v44, v[48:49], off")
    a("s_mov_b32 s%d, %d" % (SX+2, NB)); a("s_mov_b32 s%d, 0x20000" % (SX+3))
    a("s_mul_i32 s%d, s%d, 28672" % (sXO, sW))
    a("s_add_u32 s%d, s%d, s%d" % (sXO, sXO, sOO))
    a("s_mul_i32 s%d, s%d, %d" % (sREG, sW, WREG))
    a("s_movk_i32 s%d, 896" % (SG+2)); a("s_mov_b32 s%d, 0x20000" % (SG+3))
    a("s_movk_i32 s10, 896"); a("s_mov_b32 s11, 0x20000")
    a("s_mov_b32 s%d, %d" % (SWd+2, 448*896)); a("s_mov_b32 s%d, 0x20000" % (SWd+3))
    a("v_and_b32 v41, 15, v%d" % LN_); a("v_lshrrev_b32 v42, 4, v%d" % LN_)
    a("v_mul_u32_u24 v45, 896, v42")
    a("v_lshl_add_u32 v%d, v41, 4, v45" % RA); a("v_lshl_add_u32 v%d, v41, 3, v45" % RB)
    a("s_waitcnt lgkmcnt(0)")
    return L
def gbload():
    return [O("s_mov_b32 s%d, s4" % SG), O("s_mov_b32 s%d, s5" % (SG+1)), O("s_mov_b32 s8, s6"), O("s_mov_b32 s9, s7"),
            O("buffer_load_dwordx4 v[136:139], v%d, s[%d:%d], 0 offen" % (VL, SG, SG+3)),
            O("buffer_load_dwordx4 v[140:143], v%d, s[8:11], 0 offen" % VL, tag="gb")]
def wsetup():
    L = []
    a = lambda s, **k: L.append(O(s, **k))
    LN_ = 40
    a("s_mul_i32 s%d, s3, 28672" % sWO)
    a("s_add_u32 s%d, s%d, s%d" % (sWO, sWO, sT2))
    a("s_add_u32 s%d, s%d, %d" % (sWLIM, sT2, 14*28672))
    a("s_movk_i32 s12, 672"); a("s_movk_i32 s13, 896")
    a("v_mul_u32_u24 v45, 4682, v%d" % LN_)
    for i in range(7):
        const = (3072 if i >= 3 else 0) - (10752 if i >= 4 else 0)
        if i: a("v_add_u32 v46, %d, v45" % (64*i*4682)); a("v_lshrrev_b32 v46, 16, v46")
        else: a("v_lshrrev_b32 v46, 16, v45")
        a("v_and_b32 v47, 12, v46")
        a("v_mad_u32_u24 v%d, v46, s12, v%d" % (VO+i, VL))
        a("v_mad_u32_u24 v%d, v47, s13, v%d" % (VO+i, VO+i))
        if i == 3:
            a("v_lshrrev_b32 v47, 4, v46"); a("v_mul_u32_u24 v47, 10752, v47"); a("v_sub_u32 v%d, v%d, v47" % (VO+i, VO+i))
        if const: a("v_add_u32 v%d, %d, v%d" % (VO+i, const & 0xffffffff, VO+i))
    return L
FTAB = 0x1e
def addr_math(part):
    L = []
    a = lambda s, **k: L.append(O(s, **k))
    LN_, P_, RR, GA = 40, 41, 42, 52
    a("s_mov_b32 s%d, %d" % (SO+2, NB)); a("s_mov_b32 s%d, 0x20000" % (SO+3))
    a("s_mov_b32 s%d, 0xffff0000" % sMASK)
    a("s_and_b32 s15, s%d, 1" % sW)
    a("s_mov_b32 s%d, 0x%08x" % (sINV, f2u(1.0/448)))
    a("s_sub_u32 s%d, s3, 14" % sT); a("s_min_u32 s3, s3, s%d" % sT)
    a("s_sub_u32 s%d, s3, 14" % sT); a("s_min_u32 s3, s3, s%d" % sT)
    a("s_mul_i32 s%d, s%d, 224" % (sT2, sW))
    a("v_lshlrev_b32 v%d, 4, v%d" % (GA, P_))
    a("v_cmp_eq_u32 vcc, 3, v%d" % RR)
    a("v_lshlrev_b32 v45, 5, v%d" % P_)
    a("v_mov_b32 v46, 0x100")
    a("v_cndmask_b32 v45, v%d, v45, vcc" % GA)
    a("v_cndmask_b32_e64 v46, v46, 16, vcc")
    a("v_lshl_add_u32 v50, v%d, 9, v45" % RR)
    a("v_add_u32 v50, s%d, v50" % sREG); a("v_add_u32 v%d, s%d, v%d" % (GA, sREG, GA))
    a("v_add_u32 v51, v50, v46")
    a("s_movk_i32 s12, 0x78")
    a("v_lshrrev_b32 v45, 2, v%d" % P_)
    a("v_lshlrev_b32 v46, 1, v45"); a("v_bfe_u32 v46, s12, v46, 2")
    a("v_xor_b32 v46, v46, v%d" % RR)
    a("v_lshrrev_b32 v47, 1, v46"); a("v_and_b32 v48, 3, v%d" % P_); a("v_xor_b32 v47, v47, v48")
    a("v_lshlrev_b32 v47, 4, v47"); a("v_lshl_add_u32 v47, v46, 6, v47")
    a("v_mul_u32_u24 v45, %d, v45" % WREG); a("v_add_u32 v%d, v45, v47" % XR)
    a("s_lshl_b32 s41, s%d, 1" % sW); a("s_lshr_b32 s41, s12, s41"); a("s_and_b32 s41, s41, 3")
    def common(qexpr_ops):
        for s in qexpr_ops: a(s)
        a("v_xor_b32 v46, s41, v46")
        a("v_lshrrev_b32 v47, 1, v46"); a("v_xor_b32 v47, v47, v%d" % RR); a("v_lshlrev_b32 v47, 4, v47")
        a("v_lshl_add_u32 v47, v46, 6, v47"); a("v_add_u32 v47, s%d, v47" % sREG)
    common(["v_and_b32 v46, 3, v%d" % P_])
    a("v_lshrrev_b32 v46, 2, v%d" % P_); a("v_subrev_u32 v46, s3, v46")
    for c in range(3):
        if c: a("v_add_u32 v46, 4, v46")
        a("v_add_u32 v48, 14, v46"); a("v_min_u32 v48, v48, v46")
        a("v_lshl_add_u32 v%d, v48, 10, v47" % (LWY+c)); a("v_lshl_add_u32 v%d, v48, 8, v47" % (LWZ+c))
    common(["v_bfe_u32 v46, v%d, 1, 2" % P_])
    a("v_and_b32 v46, 1, v%d" % P_); a("v_lshl_add_u32 v47, v46, 3, v47")
    a("v_lshrrev_b32 v46, 3, v%d" % P_); a("v_add_u32 v46, 12, v46"); a("v_subrev_u32 v46, s3, v46")
    a("v_add_u32 v48, 14, v46"); a("v_min_u32 v48, v48, v46")
    a("v_lshl_add_u32 v%d, v48, 10, v47" % (LWY+3)); a("v_lshl_add_u32 v%d, v48, 8, v47" % (LWZ+3))
    if part == 1: return L[:]
    del L[:]
    a("s_lshl_b32 s41, s15, 5")
    a("v_lshrrev_b32 v45, 2, v%d" % LN_); a("v_mul_u32_u24 v45, 224, v45"); a("v_and_b32 v46, 3, v%d" % LN_)
    a("v_add_u32 v45, s%d, v45" % sREG)
    a("v_lshl_add_u32 v%d, v46, 4, v45" % TR1); a("v_add_u32 v%d, s41, v%d" % (TR1, TR1))
    a("s_mul_i32 s12, s15, 192"); a("s_sub_u32 s12, 192, s12")
    a("v_lshl_add_u32 v%d, v46, 3, v45" % TR2); a("v_add_u32 v%d, s12, v%d" % (TR2, TR2))
    return L
def late_addr():
    L = []
    a = lambda s, **k: L.append(O(s, **k))
    P_, RR = 16, 17
    ST, OS, OW, OR = 20, 21, 22, 16
    a("v_mbcnt_lo_u32_b32 v17, -1, 0"); a("v_mbcnt_hi_u32_b32 v17, -1, v17")
    a("v_and_b32 v16, 15, v17"); a("v_lshrrev_b32 v17, 4, v17")
    a("v_lshrrev_b32 v18, 2, v%d" % P_); a("v_and_b32 v19, 3, v%d" % P_); a("v_lshl_add_u32 v18, v18, 5, v19")
    a("v_mul_u32_u24 v18, 896, v18"); a("v_lshl_add_u32 v18, v%d, 4, v18" % RR)
    a("s_lshl_b32 s41, s15, 5"); a("s_add_u32 s12, s41, s%d" % sT2)
    a("v_add_u32 v%d, s12, v18" % ST)
    a("s_lshr_b32 s13, s%d, 1" % sW)
    a("s_mul_i32 s12, s13, 448"); a("s_mul_i32 s%d, s15, 3584" % sPAR); a("s_add_u32 s12, s12, 192")
    a("v_add_u32 v%d, s12, v18" % OS)
    a("v_lshlrev_b32 v18, 5, v%d" % P_)
    a("v_lshl_add_u32 v19, v%d, 3, v18" % RR); a("v_add_u32 v%d, s%d, v19" % (OW, sREG))
    a("v_and_b32 v19, 1, v%d" % RR); a("v_lshl_add_u32 v18, v19, 4, v18")
    a("v_lshrrev_b32 v19, 1, v%d" % RR); a("v_mul_u32_u24 v19, %d, v19" % WREG); a("v_add_u32 v18, v18, v19")
    a("s_mul_i32 s12, s13, %d" % (2*WREG)); a("s_lshl_b32 s42, s15, 9"); a("s_add_u32 s12, s12, s42")
    a("v_add_u32 v%d, s12, v18" % OR)
    return L
def gbtable():
    GA = 52
    L = [WAIT(v="gb")]
    for i in range(8):
        L += [O("v_lshlrev_b32 v%d, 16, v%d" % (56+2*i, 136+i)), O("v_and_b32 v%d, s%d, v%d" % (57+2*i, sMASK, 136+i))]
        if i == 3: L += [O("ds_write_b128 v50, v[56:59] offset:%d" % GTAB), O("ds_write_b128 v51, v[60:63] offset:%d" % GTAB)]
    L += [O("ds_write_b128 v50, v[64:67] offset:%d" % (GTAB+2048)), O("ds_write_b128 v51, v[68:71] offset:%d" % (GTAB+2048))]
    for v in range(7):
        L.append(O("ds_read_b128 %s, v%d offset:%d" % (vr(GE+4*v, 4), GA, GTAB+256*v)))
        L.append(O("ds_read_b128 %s, v%d offset:%d" % (vr(BE+4*v, 4), GA, GTAB+2048+256*v), tag="gbr" if v == 6 else None))
    return L

def half(n):
    j, x = divmod(n, 2)
    return j, cfg.horder.get(j, (0, 1))[x]
def build():
    wn[0] = 0; xn[0] = 0; stampn[0] = 0; del stampnames[:]; m0state[0] = None; TR2late[0] = False
    code = []; trace = []
    def emit(L): code.extend(L); trace.extend(L)
    emit(prologue())
    fb = [0]
    def xread(tile, j):
        return O("ds_read_b128 %s, v%d offset:%d" % (vr(F[fb[0] & 1], 4), XR, xoff(tile, j)), tag="xf", sem=("X", tile, j))
    pre = {}
    def units(seq, nxt):
        mf = []; fixed = {}; starts = []
        for k, u in enumerate(seq):
            tile, j = u[0], u[1]
            g = len(mf); starts.append(g)
            if (tile, j) in pre: cur = pre[(tile, j)]
            else: cur = F[fb[0] & 1]; fb[0] += 1
            n = seq[k+1] if k+1 < len(seq) else nxt
            acc = ACC[tile] if tile < 4 else ACC[2]
            ts = u[3] if len(u) > 3 else range(7)
            for t in ts: mf.append(mfma(acc, j, t, cur, None if len(u) < 3 or u[2] is None else u[2][t], tile))
            if n is not None and (n[0], n[1]) not in pre:
                fixed.setdefault(g, []).append(xread(n[0], n[1]))
                fixed.setdefault(len(mf)-1, []).append(WAIT(l="xf"))
        return mf, fixed, starts
    st8 = dict(ri=0, li=0, th=0, vis=0, wi=0)
    done = set(); waited = set()
    def simple(tok):
        if tok[0] in "xw" and "+" not in tok:
            out = []
            for o in (xdma if tok[0] == "x" else wdma)(int(tok[1:])):
                for tg in o.needs:
                    if tg.startswith("tr") and tg not in waited: waited.add(tg); out.append(WAIT(l=tg))
                out.append(o)
            return out
        if tok[0] == "t" and "+" not in tok:
            j, h = half(st8["th"]); st8["th"] += 1
            return [WAIT(v=wland(j, h))] + trreads(j, h)
        if tok == "y": return [WAIT(l=0)]
        if tok == "-": return []
        if tok[0] == "d" and "+" not in tok:
            out = []
            for _ in range(int(tok[1:] or 1)):
                i, c = divmod(st8["wi"], 4); st8["wi"] += 1; assert i < st8["li"]
                out.append(lnwrites(i)[c])
            return out
        if tok[0] == "s" and "+" not in tok: return stamp(tok)
        if "+" in tok: return [o for t in tok.split("+") for o in simple(t)]
        if tok[0] == "F":
            j = int(tok[1:]); assert st8["vis"] >= 4; out = []
            for t in range(4):
                pre[(t, j)] = wf(j + cfg.fo, t)
                out.append(O("ds_read_b128 %s, v%d offset:%d" % (pre[(t, j)], XR, xoff(t, j)), sem=("X", t, j)))
            return out
        if tok == "P": return [O("buffer_load_dword v54, v53, s[%d:%d], s14 offen" % (SWd, SWd+3))]
        raise Exception(tok)
    nz = 0
    for tok in cfg.early.split():
        head, _, spr = tok.partition(":")
        spr = spr.split(",") if spr else []
        if tok == "G": emit(gbload())
        elif tok == "P": emit([O("buffer_load_dword v54, v53, s[%d:%d], s14 offen" % (SWd, SWd+3))])
        elif tok == "A": emit(addr_math(1))
        elif tok == "A2": emit(addr_math(2) + wsetup())
        elif tok == "B": emit(stamp("mb")); emit(gbtable())
        elif head == "C":
            li = st8["li"]
            emit(stamp("c%d" % li))
            A = ln_code(li); out = []
            items = []
            for k, t in enumerate(spr):
                t, _, pct = t.partition("@")
                items.append(((int(pct)*len(A))//100 if pct else (k+1)*len(A)//(len(spr)+1), t))
            k = 0
            for idx, o in enumerate(A):
                ins = []
                while k < len(items) and idx >= items[k][0]: ins += simple(items[k][1]); k += 1
                out += ins
                if o.text == "s_nop 0" and ins: continue
                out.append(o)
            assert k == len(items)
            emit(out); emit(stamp("n%d" % li))
            st8["li"] += 1
        elif tok == "Z":
            bf = all((t, j) in done or (t, j) in pre for t in range(4) for j in range(2))
            emit([WAIT(l=0), O("s_barrier", tag="Bfree" if bf else "gbfree")]); st8["vis"] = st8["wi"]//4; st8["bf"] = bf
        elif head[0] == "U":
            tl, j = head[1:].split("@"); j = int(j); seq = [(int(c), j) for c in tl]
            for u in seq:
                assert u[0] < st8["vis"] and st8["th"] >= 2*j+2 and (j == 0 or (u[0], j-1) in done), tok
                done.add(u)
            emit([xread(*seq[0]), WAIT(l=0)])
            mf, fixed, _ = units(seq, None)
            stream = []
            for k, t in enumerate(spr):
                ops = simple(t)
                if ops: ops[0].at = (k*len(mf))//len(spr)
                stream += ops
            emit(weave(mf, fixed, stream, 0, len(mf)-1))
        else: emit(simple(tok))
    assert st8["wi"] == 28 and st8["li"] == 8 and xn[0] == 32 and st8["vis"] >= 5
    th = st8["th"]
    emit(stamp("mp"))
    bfree = [st8.get("bf", False)]
    def canissue():
        n = wn[0]; rd = set(half(x) for x in range(th))
        while n < 98:
            j, ii = divmod(n, 7); i = worder(j)[ii]
            if any(x not in rd for x in wneeds(j, i)): break
            n += 1
        return n - wn[0]
    order = [3, 0, 1, 2]
    seq = [(t, j) for j in range(12) for t in order if (t, j) not in done]
    j0 = seq[0][1]
    if th < 2*j0+2:
        emit([WAIT(l=0)] + wdma(canissue()))
        while th < 2*j0+2:
            j, h = half(th); th += 1
            emit([WAIT(v=wland(j, h))] + trreads(j, h))
    emit(([xread(*seq[0])] if seq[0] not in pre else []) + [WAIT(l=0)])
    HOLD = {}
    OSL = {t: t for t in range(8)}
    S2 = [4, 5, 6, 7]
    nreg = len(seq)
    a3 = ACC[3]; a0 = ACC[0]
    tmpB = [T, T+4, T+8, T+12, a3, a3+8, a0]
    seq += [(t, 12) for t in order]
    mf, fixed, starts = units(seq, (3, 13))
    FB3 = [F[fb[0] & 1], F[(fb[0]+1) & 1], T+16]
    R13 = [(t, range(4)) for t in order] + [(t, range(4, 7)) for t in order]
    E = []
    for k, (tl, ts) in enumerate(R13):
        E.append(len(mf))
        for t in ts: mf.append(mfma(ACC[tl], 13, t, FB3[k % 3], tmpB[t], tl))
    E.append(len(mf))
    def xr3(k):
        tl, j = (R13[k][0], 13) if k < 8 else (S2[0], 0)
        return O("ds_read_b128 %s, v%d offset:%d" % (vr(FB3[k % 3] if k < 8 else FB3[0], 4), XR, xoff(tl, j)), tag="x3_%d" % k, sem=("X", tl, j))
    fixed.setdefault(E[0]-3, []).append(xr3(2))
    fixed.setdefault(E[0], []).append(xr3(1))
    for k in range(3, 8): fixed.setdefault(E[k-2], []).append(xr3(k))
    fixed.setdefault(E[7], []).append(xr3(8))
    for k in range(1, 9):
        if k != 2: fixed.setdefault(E[k]-1, []).append(WAIT(l="x3_%d" % k))
    first = {}
    for k, u in enumerate(seq): first.setdefault(u[1], starts[k])
    def used(g):
        u = 0
        for o in fixed.get(g, []):
            if o.kind == "V" and u < 1: u = 1
            u += cost(o)
        return u
    def fx(g, ops, front=False):
        if front: fixed[g] = ops + fixed.get(g, [])
        else: fixed.setdefault(g, []).extend(ops)
    put = fx
    def putdma(g, d, gprep):
        pend = []; firstd = True
        for o in d:
            if o.kind != "G":
                if o.text != "s_nop 0": pend.append(o)
                continue
            while used(g) > 0: g += 1
            if pend:
                if firstd and gprep is not None:
                    gp = gprep
                    for p in pend:
                        while used(gp) >= 3 and gp < g-1: gp += 1
                        put(gp, [p])
                else: put(g-1, pend)
            put(g, [o]); pend = []; g += 1; firstd = False
        return g
    def puttr(g, ops, gend):
        ops = list(ops); assert gend >= g
        load = {x: used(x) for x in range(g, gend+1)}; cnt = {x: 0 for x in load}
        for _ in ops:
            x = min(load, key=lambda x: (max(load[x]+2-3, 0), x)); load[x] += 2; cnt[x] += 1
        last = g
        for x in range(g, gend+1):
            for _ in range(cnt[x]): put(x, [ops.pop(0)]); last = x
        return last + 1
    d0 = wdma(canissue())
    emit([o for o in d0[:4] if o.kind != "G" and d0.index(o) < next((i for i, x in enumerate(d0) if x.kind == "G"), 0)])
    k0 = next((i for i, x in enumerate(d0) if x.kind == "G"), 0)
    g = putdma(1, d0[k0:], None)
    while th < 26:
        k, h = half(th); second = th % 2; th += 1
        yt = first[k] - cfg.lead - (0 if second else 14)
        D = first[k] - 1 - (0 if second else cfg.minp)
        y = min(max(yt, g + 7 + cfg.lat), D)
        gs = max(min(g, y - cfg.lat - 4), y - 11, 0)
        while used(gs) > 0 and gs < y - cfg.lat - 6: gs += 1
        put(gs, [WAIT(v=wland(k, h))])
        ge = puttr(gs, trreads(k, h), y - cfg.lat)
        put(y, [WAIT(l="tr%dh%d" % (k, h))])
        if (k, h) == (12, 0): y12 = y
        nb = wn[0]
        g = putdma(max(g, y+1), wdma(canissue()), max(ge, g))
        if nb < 98 and wn[0] == 98: glast = g
    assert wn[0] == 98
    def putseq(gw, ops):
        for o in ops:
            while used(gw) + (1 if o.kind == "V" and used(gw) < 1 else 0) >= 3: gw += 1
            put(gw, [o])
        return gw
    gm = putseq(glast, late_addr())
    gw = max(y12 + 1, first[12] - cfg.gw)
    for o in lnwrites(7):
        while used(gw) > 0: gw += 1
        put(gw, [o]); gw += cfg.gwstep
    gw = putseq(max(gm, gw - cfg.gwstep + 1, first[12]), [O("v_mov_b32 v%d, v%d" % x) for x in ((6, TR2), (ST, 20), (OS, 21), (OW, 22), (OR, 16))])
    TR2late[0] = True
    glate = gw
    for j in sorted(first):
        if first[j] > 0: put(first[j]-1, stamp("p%d" % j))
    def oddw(tile, src): return O("ds_write_b64 v%d, %s offset:%d" % (OW, vr(src, 2), ODDO + 512*OSL[tile]), cost=3, needs=["tr12h0", "tr12h1"], sem=("OW", tile))
    def store(tile, P):
        return [O("s_add_u32 s%d, s%d, %d" % (sO2, sOO, 3584*tile), sem=("SO", ("ST", tile))),
                O("buffer_store_dwordx4 %s, v%d, s[%d:%d], s%d offen offset:%d%s" % (vr(HOLD[tile][P], 4), ST, SO, SO+3, sO2, 64*P, cfg.spol), sem=("ST", tile, P))]
    gs = max(g, E[0] - cfg.e13, gw + 1)
    put(gs, [WAIT(v=wland(13, 0))])
    g1 = puttr(gs, trreads(13, 0, range(4), T, "ta0"), gs+4)
    put(g1, [WAIT(v=wland(13, 1))])
    puttr(g1, trreads(13, 1, range(4), T, "ta1"), max(g1+1, E[0]-4))
    put(E[0]-1, [WAIT(l="ta1")])
    def pair_inplace(tile, P):
        x0, x1 = ACC[tile]+8*P, ACC[tile]+8*P+4
        return [cvt(x1+3, x1+2), cvt(x1+2, x1), cvt(x1, x0), cvt(x1+1, x0+2)]
    for tl in (3, 0, 1): HOLD[tl] = [ACC[tl]+4, ACC[tl]+12, ACC[tl]+20]
    def odd_inplace(tile):
        x = ACC[tile]+24
        return [cvt(x, x), cvt(x+1, x+2)], oddw(tile, x)
    put(E[0]+2, [O("s_nop 1")])
    p = pair_inplace(3, 0); put(E[1]+1, p[:2]); put(E[1]+2, p[2:])
    p = pair_inplace(3, 1); put(E[1]+3, p[:2]); put(E[2]+1, p[2:])
    p = pair_inplace(0, 0); put(E[2]+2, p)
    tb = lambda t: trreads(13, 0, [t], tmpB[t], "tb%d0" % t) + trreads(13, 1, [t], tmpB[t], "tb%d1" % t)
    put(E[2], tb(4)); put(E[2]+3, tb(5)); put(E[3]+1, tb(6))
    put(E[4]-1, [WAIT(l="tb51")]); put(E[4]+1, [WAIT(l="tb61")])
    DEST = {2: T, 4: ACC[1], 5: ACC[0], 6: ACC[1], 7: ACC[0]}
    for tl, b in DEST.items(): HOLD[tl] = [b, b+8, b+16]
    HOLD[2] = [T, T+4, T+8]
    def oddpos(tile): return T+12 if tile == 2 else DEST[tile]+26
    def pkcvt(tile, t):
        d = oddpos(tile) if t == 6 else HOLD[tile][t >> 1] + 2*(t & 1)
        return [cvt(d, ACC[2]+4*t), cvt(d+1, ACC[2]+4*t+2)]
    put(E[5]+1, pkcvt(2, 0)); put(E[5]+2, pkcvt(2, 1)); put(E[6]+1, pkcvt(2, 2)); put(E[6]+2, pkcvt(2, 3))
    sx = store(3, 0); put(E[4], sx[:1]); put(E[4]+2, sx[1:], front=True)
    sx = store(3, 1); put(E[7]+1, sx[1:], front=True)
    emit(weave(mf, fixed, [], 0, 0))
    emit(stamp("mq"))
    plan = cfg.plan or [[(0, 0), (0, 1), (0, 2), (1, 0), (1, 1), (1, 2)], [(2, 0), (2, 1), "o", (2, 2), (4, 0), "o", (4, 1)],
                        [(4, 2), (5, 0), (5, 1), (5, 2)], [(6, 0), (6, 1), (6, 2), "o"]]
    om = [0]
    OT = T+16
    PAIR = [(0, 1), (2, 3), (4, 5), (6, 7)]
    def oddso(m):
        t0, t1 = PAIR[m]
        if t1 - t0 == 1: return [O("s_add_u32 s%d, s%d, %d" % (sO2, sPAR, 3584*t0), sem=("SO", None)), O("s_add_u32 s%d, s%d, s%d" % (sO2, sO2, sOO), sem=("SO", ("OS", m)))]
        return [O("s_mul_i32 s%d, s%d, %d" % (sO2, sPAR, t1-t0), sem=("SO", None)), O("s_add_u32 s%d, s%d, s%d" % (sO2, sO2, sOO)), O("s_add_u32 s%d, s%d, %d" % (sO2, sO2, 3584*t0), sem=("SO", ("OS", m)))]
    for bi, tile in enumerate(S2):
        prev = 2 if bi == 0 else S2[bi-1]
        mf, fixed, _ = units([(tile, j) for j in range(14 if bi < 3 else 10)], (S2[bi+1], 0) if bi < 3 else None)
        if bi == 0:
            fx(0, [O("s_nop 0")]); fx(1, pair_inplace(3, 2)[:2]); fx(2, pkcvt(2, 4)); fx(3, pkcvt(2, 5)); fx(4, pkcvt(2, 6)); fx(5, pair_inplace(3, 2)[2:])
            fx(8, [oddw(2, oddpos(2))], front=True)
            c, o = odd_inplace(3); fx(9, c); fx(10, [o], front=True)
            sx = store(3, 2); fx(11, sx[1:], front=True)
            gq = 15
            for tl, Ps in ((0, (1, 2)), (1, (0, 1, 2))):
                for P in Ps:
                    p = pair_inplace(tl, P); fx(gq, p[:2]); fx(gq+1, p[2:]); gq += 2
                    if gq % 7 == 0: gq += 1
                c, o = odd_inplace(tl); fx(gq, c); fx(gq+1 + ((gq+1) % 7 == 0), [o], front=True); gq += 3
                if gq % 7 == 0: gq += 1
        else:
            for t in range(3, 7): fx(t-2, pkcvt(prev, t))
            fx(8, [oddw(prev, oddpos(prev))], front=True)
        items = plan[bi]; n = len(items)
        lo = 36 if bi == 0 else 10
        for k, it in enumerate(items):
            g = lo + ((88 if bi < 3 else 62)-lo)*k//n
            while g % 7 in (0, 6, 1, 2): g += 1
            if it == "o":
                m = om[0]; om[0] += 1
                gr = g - 9
                while gr % 7 in (0, 6): gr -= 1
                fx(gr, [O("ds_read_b128 %s, v%d offset:%d" % (vr(OT, 4), OR, ODDO + 1024*m), needs=["bar%d" % (0 if m < 2 else 2)], tag="od")], front=True)
                fx(g-2, oddso(m), front=True); fx(g-1, [WAIT(l="od")], front=True)
                fx(g, [O("buffer_store_dwordx4 %s, v%d, s[%d:%d], s%d offen%s" % (vr(OT, 4), OS, SO, SO+3, sO2, cfg.spol), sem=("OS", m))], front=True)
            else:
                s = store(*it); fx(g-1, s[:1], front=True); fx(g, s[1:], front=True)
        if bi == 0: puttr(50, trreads(13, 0) + trreads(13, 1), 82)
        if bi in (0, 2):
            fixed[90] = [WAIT(l=0)]
            fx(91, [O("s_barrier", tag="bar%d" % bi)], front=True)
        if bi < 3:
            fx(92, [O("s_nop 0")]); fx(93, [O("s_nop 0")]); fx(94, [O("s_nop 1")])
            for t in range(3): fx(95+t, pkcvt(tile, t))
        else:
            XF = [T, T+4, T+8, T+12]
            for k in range(4):
                fx(57+k+(k > 2), [O("ds_read_b128 %s, v%d offset:%d" % (vr(XF[k], 4), XR, xoff(tile, 10+k)), tag="xl", sem=("X", tile, 10+k))])
            fx(69, [WAIT(l="xl")])
            for ts in ([6], [0, 1], [2, 3], [4, 5]):
                for k in range(4):
                    for t in ts: mf.append(mfma(ACC[2], 10+k, t, XF[k], None, tile))
            fx(74, [O("s_nop 1")]); fx(75, [O("s_nop 1")]); fx(76, [O("s_nop 0")] + pkcvt(tile, 6)); fx(77, [oddw(tile, oddpos(tile))])
            fx(80, [WAIT(l=0), O("s_barrier")]); fx(81, [O("ds_read_b128 %s, v%d offset:%d" % (vr(OT, 4), OR, ODDO + 3072), tag="od")])
            fx(82, [O("s_nop 1")]); fx(83, [O("s_nop 1")]); fx(84, [O("s_nop 0")] + pkcvt(tile, 0)); fx(85, store(tile, 0)[:1] + pkcvt(tile, 1)); fx(86, store(tile, 0)[1:])
            fx(87, oddso(3)); fx(88, [WAIT(l="od")])
            fx(89, [O("buffer_store_dwordx4 %s, v%d, s[%d:%d], s%d offen%s" % (vr(OT, 4), OS, SO, SO+3, sO2, cfg.spol), sem=("OS", 3))])
            fx(90, [O("s_nop 1")]); fx(91, [O("s_nop 1")]); fx(92, [O("s_nop 0")] + pkcvt(tile, 2)); fx(93, store(tile, 1)[:1] + pkcvt(tile, 3)); fx(94, store(tile, 1)[1:])
        emit(weave(mf, fixed, [], 0, 0))
        emit(stamp("m%d" % (bi+4)))
    lt = S2[3]
    Tl = [O("s_nop 6")] + pkcvt(lt, 4) + pkcvt(lt, 5) + store(lt, 2)[1:]
    assert om[0] == 3
    emit(Tl)
    if cfg.stamps:
        emit(stamp("z1")); emit([O("s_waitcnt vmcnt(0)")]); emit(stamp("z2"))
        S = [O("s_waitcnt lgkmcnt(0)"), O("s_mov_b32 s50, 0x10000000"), O("s_mov_b32 s51, 0x20000"), O("v_mov_b32 v40, 0")]
        for i in range(stampn[0]): S.append(O("v_writelane_b32 v40, s%d, %d" % (52+2*i, i)))
        S += [O("s_lshl_b32 s3, s2, 2"), O("s_add_u32 s3, s3, s%d" % sW), O("s_lshl_b32 s3, s3, 8"),
              O("v_mbcnt_lo_u32_b32 v41, -1, 0"), O("v_mbcnt_hi_u32_b32 v41, -1, v41"), O("v_lshlrev_b32 v41, 2, v41"),
              O("buffer_store_dword v40, v41, s[48:51], s3 offen sc1")]
        emit(S)
    emit([O("L_end:"), O("s_endpgm")])
    errs = resolve_and_verify(trace) + semcheck(trace)
    for e in errs[:40]: print("ERR", e, file=sys.stderr)
    if errs: raise Exception("verify failed: %d" % len(errs))
    return code

def write(path, kname=NAME+"_kernel"):
    code = build()
    hdr = open('cdna_kernels/%s.s.ref' % NAME).read().split('\n')
    L = [l for l in hdr if l.startswith(';') and '@launch' not in l]
    L += ["; @launch grid=(256,1,1) block=(256,1,1) lds=163840", '.amdgcn_target "amdgcn-amd-amdhsa--gfx950"', ".text",
          ".globl %s" % kname, ".p2align 8", ".type %s,@function" % kname, "%s:" % kname]
    if cfg.nostore: code = [o for o in code if not (o.sem and o.sem[0] in ("ST", "OS"))]
    if cfg.nobar2: code = [o for o in code if not (o.text == "s_barrier" and o.tag and o.tag.startswith("bar"))]
    L += [("" if o.kind == "L" else "    ") + o.render() for o in code]
    if cfg.cpf: L += [".fill (22784 - (. - %s)) / 4, 4, 0xbf810000" % kname]
    L += ['.section .rodata,"a"', ".p2align 6", ".amdhsa_kernel %s" % kname, "  .amdhsa_next_free_vgpr 512", "  .amdhsa_next_free_sgpr 102",
          "  .amdhsa_accum_offset 256", "  .amdhsa_group_segment_fixed_size 0", "  .amdhsa_kernarg_size 56", "  .amdhsa_user_sgpr_count 2",
          "  .amdhsa_user_sgpr_kernarg_segment_ptr 1", "  .amdhsa_system_sgpr_workgroup_id_x 1", ".end_amdhsa_kernel"]
    open(path, 'w').write('\n'.join(L) + '\n')
if __name__ == "__main__":
    write("v10.s")
```

```python
import gen11, sys
p1 = [[(1, 0), (1, 1), (1, 2), (0, 0), (0, 1)], [(0, 2), "o", (2, 0), (2, 1), (2, 2), (4, 0)], [(4, 1), (4, 2), "o", (5, 0), (5, 1), (5, 2)], [(6, 0), (6, 1), "o", (6, 2)]]
X4n = "C:x1@n0,x1@n3,x1@85 d4 x1 "
g = "G x12 A A2 x4 B " + X4n*4 + "C:w1@n2 d4 w1 C:w1@n2 d4 w1 C:w1@n0,w1@80 d4 w1 C:w1@12,w1@24,w1@36,w1@46,w1@n0,w1@n3,ta@72,w1@80,w1@88,tb@96 w1 Z"
BASE = dict(wlate=True, e13=16, plan=p1, nl=8, lhi=46, cpf=16, cpl=176, early=g, twopass=3)
def make(path, **kw):
    c = gen11.Cfg(); gen11.cfg = c
    for k, v in dict(BASE, **kw).items(): setattr(c, k, v)
    gen11.write(path)
if __name__ == "__main__":
    make("f1.s")
```

```python
import sys, struct
from gen_core import *
NAME = "standalone__layernorm_linear__sampling"
def f2u(f): return struct.unpack('<I', struct.pack('<f', f))[0]
NB = 32768*896

class Cfg:
    stamps = False
    sites = "m"
    early = "G x12 A A2 x4 B C:x2@60 x2 d4 C:x2@60 x2 d4 C:x2@60 x2 d4 C:x2@60 x2 d4 C:w1@60 w2 d4 C:w1@60 w2 d4 Z C:w1@60 w2 d4 C:w3@50,w2@60,ta@70,tb@85"
    imgoff = [1536, 8704]*7
    worder = {}
    horder = {}
    xpol = " nt"
    spol = " sc1"
    cpf = 4
    plan = None
    cyc = False
    inw = True
    pace = 14
    endv = 2
    fo = 3
    lead = 7
    e13 = 14
    twopass = True
    alt = None
    gbit = 7
    cpl = 168
    sbar = 0
    joff = 0
    padskip = 0
    padoff = 0
    parkd = ()
    eager = 0
    nocf = False
    nl = 4
    lhi = 62
    lpol = None
    w64 = False
    wlate = False
    nostore = False
    nobar2 = False
    gw = 8
    gwstep = 2
    minp = 12
    lat = 3
    tro = 5
    ybar = 4
    nobar = False
    ywr = 8
    trn = 6
cfg = Cfg()

XR, ST, OW, OR, OS, TR1, TR2 = 0, 1, 2, 3, 4, 5, 23
F = [8, 12]
T = 16
VO = 16
ACC = {0: 36, 1: 64, 2: 92, 3: 228}
LWY, LWZ, RA, RB, VL, SS, SQ = 120, 1, 128, 129, 130, 132, 134
PARK = [24, 28, 32, 6]
U = 144; GE = 172; BE = 200; EPS = 127
RAW = [228, 242, 106, 92, 78, 64, 50, 36]
sW, sMASK, sWO, sWLIM, sREG, sXO, sOO, sT, sRET, sT2, sO2, sPAR, sINV = 32, 33, 34, 35, 36, 37, 38, 39, 40, 45, 46, 47, 44
SX, SG, SWd, SO = 16, 20, 24, 28
WREG = 40960
IMG = {"A": 0, "B": 7168}
YO = 15872; ZO = YO + 14336
T7O = 256; ODDO = 3840; FLAGO = 0
GTAB = 8704
def wf(j, t, half=None, tmp=None):
    f = 7*j + t
    p, r = ("a", 4*f) if f < 64 else ("v", 120 + 4*(f-64))
    if tmp is not None: p, r = "v", tmp
    if half is None: return "%s[%d:%d]" % (p, r, r+3)
    return "%s[%d:%d]" % (p, r+2*half, r+2*half+1)
def vr(a, n): return "v[%d:%d]" % (a, a+n-1)
O = Op
stampn = [0]; stampnames = []
def stamp(site="m"):
    if not cfg.stamps or site[0] not in cfg.sites + "z": return []
    i = stampn[0]; stampn[0] += 1; stampnames.append(site)
    assert 52+2*i+1 <= 101
    return [O("%s s[%d:%d]" % ("s_memtime" if cfg.cyc else "s_memrealtime", 52+2*i, 53+2*i), kind="S", cost=0.01)]
def mfma(acc, j, t, fb, tmp=None, tile=None):
    a = vr(acc+4*t, 4)
    return O("v_mfma_f32_16x16x32_bf16 %s, %s, %s, %s" % (a, wf(j, t, None, tmp), fb if isinstance(fb, str) else vr(fb, 4), "0" if j == 0 else a), sem=("M", tile, j, t))
m0state = [None]; TR2late = [False]
def setm0(off):
    if m0state[0] == off: return []
    m0state[0] = off
    return [O("s_add_u32 m0, s%d, %d" % (sREG, off))]
xn = [0]; wn = [0]
def xdma(n):
    L = []
    for _ in range(n):
        tl, c = divmod(xn[0], 4); xn[0] += 1
        if c == 0 and tl > 0: L.append(O("s_add_u32 s%d, s%d, 3584" % (sXO, sXO)))
        if c < 3: L.append(O("buffer_load_dwordx4 %s, v%d, s[%d:%d], s%d offen offset:%d%s" % (vr(RAW[tl]+4*c, 4), RA, SX, SX+3, sXO, 256*c, cfg.xpol), tag="x%d_%d" % (tl, c)))
        else: L.append(O("buffer_load_dwordx2 %s, v%d, s[%d:%d], s%d offen offset:768%s" % (vr(RAW[tl]+12, 2), RB, SX, SX+3, sXO, cfg.xpol), tag="x%d_%d" % (tl, c)))
    return L
def ioff(j): return cfg.imgoff[j]
def worder(j): return cfg.worder.get(j, list(range(7)))
def wland(j, h):
    o = worder(j); mem = range(0, 4) if h == 0 else range(3, 7)
    return "w%d_%d" % (j, max(mem, key=o.index))
def wneeds(j, i):
    a = ioff(j) + 1024*i; needs = []
    for k in range(j):
        for h in range(2):
            lo = ioff(k) + 3584*h
            if a < lo + 3584 and lo < a + 1024: needs.append((k, h))
    return needs
def wdma(n):
    L = []
    for _ in range(n):
        j, ii = divmod(wn[0], 7); wn[0] += 1
        i = worder(j)[ii]
        m0 = ioff(j) + (3072 if i >= 3 else 0)
        pre = setm0(m0)
        if ii == 0 and j > 0:
            pre.append(O("s_add_u32 s%d, s%d, 28672" % (sWO, sWO), sem=("ADV", "w", 0.5)))
            pre.append(O("s_cmp_ge_u32 s%d, s%d" % (sWO, sWLIM), tag="scc:w"))
            pre.append(O("s_cselect_b32 s%d, s%d, s%d" % (sWO, sT2, sWO), needs=["scc:w"], sem=("ADV", "w", 0.5)))
        if len(pre) == 1: pre.append(O("s_nop 0"))
        L += pre
        needs = ["tr%dh%d" % x for x in wneeds(j, i)]
        a = ioff(j) + 1024*i
        if GTAB <= a < GTAB + 4096: needs.append("gbr")
        L.append(O("buffer_load_dwordx4 v%d, s[%d:%d], s%d offen offset:%d lds" % (VO+i, SWd, SWd+3, sWO, 1024*(i-3 if i >= 3 else i)), tag="w%d_%d" % (j, i), needs=needs, sem=("DM", m0, "w", j)))
    return L
def trreads(j, h, ts=range(7), tmp=None, tag=None):
    L = []; ts = list(ts)
    for k, t in enumerate(ts):
        off = ioff(j) + h*3584 + ((32*t if cfg.nocf else 64*(t >> 1) + 8*(t & 1)) if t < 6 else 0)
        tg = tag or "tr%dh%d" % (j, h)
        L.append(O("ds_read_b64_tr_b16 %s, v%d offset:%d" % (wf(j, t, h, None if tmp is None else tmp+4*k), TR1 if t < 6 else (6 if TR2late[0] else TR2), off),
                   tag=(tg if k == len(ts)-1 else tg + "#%d" % t), needs=["w%d_%d" % (j, i) for i in (range(0, 4) if h == 0 else range(3, 7))], sem=("W", j, t, h)))
    return L
def dpp(r, n): return O("v_add_f32_dpp v%d, v%d, v%d row_ror:%d row_mask:0xf bank_mask:0xf" % (r, r, r, n))
def ln_code1(li):
    S, Q = SS, SQ; R, N = SQ+1, SS+1
    RW = RAW[li]
    dst = [RW, RW+4, RW+8, RW+12] if li < 7 and li not in cfg.parkd else PARK
    p = lambda a: vr(a, 2)
    A = []
    for i in range(14):
        if i % 4 == 0: A.append(WAIT(v="x%d_%d" % (li, i//4)))
        if i == 12: A += stamp("r%d" % li)
        A += [O("v_lshlrev_b32 v%d, 16, v%d" % (U+2*i, RW+i)), O("v_and_b32 v%d, s%d, v%d" % (U+2*i+1, sMASK, RW+i))]
        if i == 1: A += [O("v_pk_add_f32 %s, %s, %s" % (p(S), p(U), p(U+2))), O("v_pk_mul_f32 %s, %s, %s" % (p(Q), p(U), p(U)))]
        if i >= 2:
            k = i-1
            if k >= 2: A.append(O("v_pk_add_f32 %s, %s, %s" % (p(S), p(S), p(U+2*k))))
            A.append(O("v_pk_fma_f32 %s, %s, %s, %s" % (p(Q), p(U+2*k), p(U+2*k), p(Q))))
    A += [O("v_pk_add_f32 %s, %s, %s" % (p(S), p(S), p(U+26))), O("v_pk_fma_f32 %s, %s, %s, %s" % (p(Q), p(U+26), p(U+26), p(Q)))]
    A += [O("v_add_f32 v%d, v%d, v%d" % (S, S, S+1)), O("v_add_f32 v%d, v%d, v%d" % (Q, Q, Q+1)), O("s_nop 0")]
    for n in (8, 4, 2, 1):
        A += [dpp(S, n), dpp(Q, n)] + ([O("s_nop 0")] if n != 1 else [])
    A += [O("v_mul_f32 v%d, 0x%08x, v%d" % (S, f2u(1.0/448), S)),
          O("v_mul_f32 v%d, v%d, v%d" % (N, S, S)),
          O("v_fma_f32 v%d, v%d, s%d, -v%d" % (Q, Q, sINV, N)),
          O("v_max_f32 v%d, 0, v%d" % (Q, Q)),
          O("v_add_f32 v%d, 0x%08x, v%d" % (Q, f2u(1e-5), Q)),
          O("v_rsq_f32 v%d, v%d" % (R, Q)),
          O("s_nop 0"),
          O("v_mul_f32_e64 v%d, -v%d, v%d" % (N, S, R))]
    if li == 0: A.append(WAIT(l="gbr"))
    for c in range(4):
        n = 4 if c < 3 else 2
        for i in range(4*c, 4*c+n):
            A.append(O("v_pk_fma_f32 %s, %s, %s, %s op_sel:[0,1,1] op_sel_hi:[1,1,1]" % (p(U+2*i), p(U+2*i), p(Q), p(S))))
        for i in range(4*c, 4*c+n):
            A.append(O("v_pk_fma_f32 %s, %s, %s, %s" % (p(U+2*i), p(U+2*i), p(GE+2*i), p(BE+2*i))))
        for i in range(n):
            A.append(O("v_cvt_pk_bf16_f32 v%d, v%d, v%d" % (dst[c]+i, U+8*c+2*i, U+8*c+2*i+1)))
    return A
def ln_code3(li):
    S, Q = SS, SQ; R, N = SQ+1, SS+1
    C = 136
    RW = RAW[li]
    dst = [RW, RW+4, RW+8, RW+12] if li < 7 and li not in cfg.parkd else PARK
    p = lambda a: vr(a, 2)
    sub = lambda i: O("v_pk_add_f32 %s, %s, %s op_sel_hi:[1,0] neg_lo:[0,1] neg_hi:[0,1]" % (p(U+2*i), p(U+2*i), p(C)))
    def acc(k):
        if k == 0: return [O("v_pk_mul_f32 %s, %s, %s" % (p(Q), p(U), p(U)))]
        return [O("v_pk_add_f32 %s, %s, %s" % (p(S), p(U) if k == 1 else p(S), p(U+2*k))), O("v_pk_fma_f32 %s, %s, %s, %s" % (p(Q), p(U+2*k), p(U+2*k), p(Q)))]
    A = []
    for i in range(14):
        if i % 4 == 0: A.append(WAIT(v="x%d_%d" % (li, i//4)))
        if i == 12: A += stamp("r%d" % li)
        A += [O("v_lshlrev_b32 v%d, 16, v%d" % (U+2*i, RW+i)), O("v_and_b32 v%d, s%d, v%d" % (U+2*i+1, sMASK, RW+i))]
        if i == 1: A.append(O("v_mov_b32_dpp v%d, v%d row_newbcast:0 row_mask:0xf bank_mask:0xf" % (C, U)))
        if i >= 2: A.append(sub(i-2))
        if i >= 3: A += acc(i-3)
    A += [sub(12)] + acc(11) + [sub(13)] + acc(12) + acc(13)
    A += [O("v_add_f32 v%d, v%d, v%d" % (S, S, S+1)), O("v_add_f32 v%d, v%d, v%d" % (Q, Q, Q+1)), O("s_nop 0")]
    for n in (8, 4, 2, 1):
        A += [dpp(S, n), dpp(Q, n)] + ([O("s_nop 0")] if n != 1 else [])
    A += [O("v_mul_f32 v%d, s%d, v%d" % (S, sINV, S)),
          O("v_mul_f32 v%d, s%d, v%d" % (Q, sINV, Q)),
          O("v_add_f32 v%d, v%d, v%d" % (N, C, S)),
          O("v_fma_f32 v%d, -v%d, v%d, v%d" % (Q, S, S, Q)),
          O("v_cvt_pk_bf16_f32 v%d, v%d, v%d" % (N, N, N)),
          O("v_max_f32 v%d, 0, v%d" % (Q, Q)),
          O("v_and_b32 v%d, s%d, v%d" % (N, sMASK, N)),
          O("v_add_f32 v%d, v%d, v%d" % (Q, EPS, Q)),
          O("v_rsq_f32 v%d, v%d" % (R, Q)),
          O("v_sub_f32 v%d, v%d, v%d" % (N, C, N)),
          O("v_mul_f32 v%d, v%d, v%d" % (N, N, R))]
    if li == 0: A.append(WAIT(l="gbr"))
    for c in range(4):
        n = 4 if c < 3 else 2
        for i in range(4*c, 4*c+n):
            A.append(O("v_pk_fma_f32 %s, %s, %s, %s op_sel:[0,1,1] op_sel_hi:[1,1,1]" % (p(U+2*i), p(U+2*i), p(Q), p(S))))
        for i in range(4*c, 4*c+n):
            A.append(O("v_pk_fma_f32 %s, %s, %s, %s" % (p(U+2*i), p(U+2*i), p(GE+2*i), p(BE+2*i))))
        for i in range(n):
            A.append(O("v_cvt_pk_bf16_f32 v%d, v%d, v%d" % (dst[c]+i, U+8*c+2*i, U+8*c+2*i+1)))
    return A
def ln_code(li):
    if not cfg.twopass: return ln_code1(li)
    if cfg.twopass == 3: return ln_code3(li)
    S, Q = SS, SQ; R, N = SQ+1, SS+1
    S2 = 136
    RW = RAW[li]
    dst = [RW, RW+4, RW+8, RW+12] if li < 7 and li not in cfg.parkd else PARK
    p = lambda a: vr(a, 2)
    A = []
    for i in range(14):
        if i % 4 == 0: A.append(WAIT(v="x%d_%d" % (li, i//4)))
        if i == 12: A += stamp("r%d" % li)
        A += [O("v_lshlrev_b32 v%d, 16, v%d" % (U+2*i, RW+i)), O("v_and_b32 v%d, s%d, v%d" % (U+2*i+1, sMASK, RW+i))]
        if i == 2: A.append(O("v_pk_add_f32 %s, %s, %s" % (p(S), p(U), p(U+2))))
        if i >= 3: A.append(O("v_pk_add_f32 %s, %s, %s" % (p(S), p(S), p(U+2*(i-1)))))
    A += [O("v_pk_add_f32 %s, %s, %s" % (p(S), p(S), p(U+26))), O("v_add_f32 v%d, v%d, v%d" % (S, S, S+1))]
    for n in (8, 4, 2, 1): A += [O("s_nop 1"), dpp(S, n)]
    A += [O("v_mul_f32 v%d, 0x%08x, v%d" % (S, f2u(-1.0/448), S))]
    sub = lambda i: O("v_pk_add_f32 %s, %s, %s op_sel_hi:[1,0]" % (p(U+2*i), p(U+2*i), p(S)))
    def sq(i):
        q = Q if i % 2 == 0 else S2
        if i < 2: return O("v_pk_mul_f32 %s, %s, %s" % (p(q), p(U+2*i), p(U+2*i)))
        return O("v_pk_fma_f32 %s, %s, %s, %s" % (p(q), p(U+2*i), p(U+2*i), p(q)))
    A += [sub(0), sub(1)]
    for i in range(2, 14): A += [sub(i), sq(i-2)]
    A += [sq(12), sq(13)]
    A += [O("v_cvt_pk_bf16_f32 v%d, v%d, v%d" % (N, S, S)), O("v_pk_add_f32 %s, %s, %s" % (p(Q), p(Q), p(S2))),
          O("v_and_b32 v%d, s%d, v%d" % (N, sMASK, N)), O("v_add_f32 v%d, v%d, v%d" % (Q, Q, Q+1)),
          O("v_sub_f32 v%d, v%d, v%d" % (N, N, S)), O("s_nop 0"), dpp(Q, 8)]
    for n in (4, 2, 1): A += [O("s_nop 1"), dpp(Q, n)]
    A += [O("v_fma_f32 v%d, v%d, s%d, v%d" % (Q, Q, sINV, EPS)),
          O("v_rsq_f32 v%d, v%d" % (R, Q)),
          O("s_nop 0"),
          O("v_mul_f32 v%d, v%d, v%d" % (N, N, R))]
    if li == 0: A.append(WAIT(l="gbr"))
    for c in range(4):
        n = 4 if c < 3 else 2
        for i in range(4*c, 4*c+n):
            A.append(O("v_pk_fma_f32 %s, %s, %s, %s op_sel:[0,1,1] op_sel_hi:[1,1,1]" % (p(U+2*i), p(U+2*i), p(Q), p(S))))
        for i in range(4*c, 4*c+n):
            A.append(O("v_pk_fma_f32 %s, %s, %s, %s" % (p(U+2*i), p(U+2*i), p(GE+2*i), p(BE+2*i))))
        for i in range(n):
            A.append(O("v_cvt_pk_bf16_f32 v%d, v%d, v%d" % (dst[c]+i, U+8*c+2*i, U+8*c+2*i+1)))
    return A
def lnwrites(i):
    lw, off = (LWY, YO + 256*i) if i < 4 else (LWZ, ZO + 3584*(i-4))
    src = [RAW[i], RAW[i]+4, RAW[i]+8, RAW[i]+12]; nd = []
    if i in cfg.parkd: src = PARK
    if i == 7: off = T7O; src = PARK; nd = ["tr12h0"]
    if i == 7 and cfg.w64:
        return [O("ds_write_b64 v%d, %s offset:%d" % (lw+c//2, vr(src[c//2]+2*(c & 1), 2), off+8*(c & 1)), cost=3, needs=nd) for c in range(7)]
    return [O("ds_write_b128 v%d, %s offset:%d" % (lw+c, vr(src[c], 4), off), cost=5, needs=nd) for c in range(3)] + [O("ds_write_b64 v%d, %s offset:%d" % (lw+3, vr(src[3], 2), off), cost=3, needs=nd)]
def xoff(tile, j):
    if tile == 7: return T7O + 256*j
    return YO + 1024*j + 256*tile if tile < 4 else ZO + 3584*(tile-4) + 256*j

def cost(op):
    if op.cost: return op.cost
    return {"V": 1, "S": 1, "W": 1, "D": 2, "G": 3, "K": 1, "L": 0}[op.kind]
def weave(mf, fixed, stream, g0, g1):
    n = len(mf)
    for ex in range(0, 400):
        extra = ex * 0.02
        gaps = [list(fixed.get(g, [])) for g in range(n)]
        si = 0; credit = 0.0
        for g in range(g0, g1+1):
            used = 0; hasV = False
            for o in gaps[g]:
                if o.kind == "V" and used < 1: used = 1
                used += cost(o); hasV |= o.kind == "V"
            credit += extra
            while si < len(stream):
                o = stream[si]
                if o.at is not None and o.at > g: break
                u = used
                if o.kind == "V" and u < 1: u = 1
                if o.kind in ("D", "G") and hasV: break
                u += cost(o)
                over = max(0, u-3.1) - max(0, used-3.1)
                if over > 0:
                    if used < 0.5: pass
                    elif credit >= over: credit -= over
                    else: break
                gaps[g].append(o); used = u; hasV |= o.kind == "V"; si += 1
        if si == len(stream): break
    else:
        raise Exception("weave failed")
    out = []; tot = 0
    for g in range(n):
        out.append(mf[g]); out += gaps[g]
        u = 0
        for o in gaps[g]:
            if o.kind == "V" and u < 1: u = 1
            u += cost(o)
        tot += max(4, 1+u)
    print("weave: n=%d extra=%.2f est cycles=%d (ideal %d)" % (n, extra, tot*4, n*16), file=sys.stderr)
    return out
def cvt(dst, a): return O("v_cvt_pk_bf16_f32 v%d, v%d, v%d" % (dst, a, a+1), sem=("C",))

def prologue():
    L = []
    a = lambda s, **k: L.append(O(s, **k))
    L += stamp("z")
    a("s_load_dwordx2 s[%d:%d], s[0:1], 0" % (SX, SX+1))
    a("s_load_dwordx4 s[4:7], s[0:1], 8")
    a("s_load_dwordx2 s[%d:%d], s[0:1], 24" % (SWd, SWd+1))
    a("s_load_dwordx2 s[%d:%d], s[0:1], 32" % (SO, SO+1))
    if cfg.stamps: a("s_load_dwordx2 s[48:49], s[0:1], 48")
    a("s_cmp_ge_u32 s2, 256", tag="scc:e"); a("s_cbranch_scc1 L_end", needs=["scc:e"])
    LN_ = 40
    a("v_lshrrev_b32 v43, 6, v0")
    a("v_and_b32 v%d, 63, v0" % LN_)
    a("v_readfirstlane_b32 s%d, v43" % sW)
    a("s_lshr_b32 s3, s2, 3")
    if cfg.cpf:
        nl = -(-cfg.cpl // (4*cfg.cpf))
        a("s_getpc_b64 s[12:13]")
        if " J " in cfg.early:
            a("L_pc:"); a("s_add_u32 s12, s12, L_main-L_pc", tag="scc:c"); a("s_addc_u32 s13, s13, 0", needs=["scc:c"])
        a("s_and_b32 s11, s3, %d" % (cfg.cpf-1)); a("s_lshl_b32 s11, s11, 2"); a("s_add_u32 s11, s11, s%d" % sW)
        a("s_mul_i32 s11, s11, %d" % (nl*128)); a("s_add_u32 s12, s12, s11", tag="scc:c"); a("s_addc_u32 s13, s13, 0", needs=["scc:c"])
        a("v_min_u32 v48, %d, v%d" % (nl-1, LN_)); a("v_lshlrev_b32 v48, 7, v48")
        a("v_mov_b32 v49, s13"); a("v_add_co_u32 v48, vcc, s12, v48")
    a("v_lshlrev_b32 v%d, 4, v%d" % (VL, LN_))
    a("s_mul_i32 s%d, s2, %d" % (sOO, 128*896))
    if cfg.cpf:
        a("v_addc_co_u32 v49, vcc, 0, v49, vcc")
        a("global_load_dword v44, v[48:49], off")
    a("s_mov_b32 s%d, %d" % (SX+2, NB)); a("s_mov_b32 s%d, 0x20000" % (SX+3))
    a("s_mul_i32 s%d, s%d, 28672" % (sXO, sW))
    a("s_add_u32 s%d, s%d, s%d" % (sXO, sXO, sOO))
    a("s_mul_i32 s%d, s%d, %d" % (sREG, sW, WREG))
    a("s_movk_i32 s%d, 896" % (SG+2)); a("s_mov_b32 s%d, 0x20000" % (SG+3))
    a("s_movk_i32 s10, 896"); a("s_mov_b32 s11, 0x20000")
    a("s_mov_b32 s%d, %d" % (SWd+2, 448*896)); a("s_mov_b32 s%d, 0x20000" % (SWd+3))
    a("v_and_b32 v41, 15, v%d" % LN_); a("v_lshrrev_b32 v42, 4, v%d" % LN_)
    a("v_mul_u32_u24 v45, 896, v42")
    a("v_lshl_add_u32 v%d, v41, 4, v45" % RA); a("v_lshl_add_u32 v%d, v41, 3, v45" % RB)
    a("s_waitcnt lgkmcnt(0)")
    return L
def gbload():
    return [O("s_mov_b32 s%d, s4" % SG), O("s_mov_b32 s%d, s5" % (SG+1)), O("s_mov_b32 s8, s6"), O("s_mov_b32 s9, s7"),
            O("buffer_load_dwordx4 v[136:139], v%d, s[%d:%d], 0 offen" % (VL, SG, SG+3)),
            O("buffer_load_dwordx4 v[140:143], v%d, s[8:11], 0 offen" % VL, tag="gb")]
def wsetup():
    L = []
    a = lambda s, **k: L.append(O(s, **k))
    LN_ = 40
    a("s_mul_i32 s%d, s3, 28672" % sWO)
    a("s_add_u32 s%d, s%d, s%d" % (sWO, sWO, sT2))
    a("s_add_u32 s%d, s%d, %d" % (sWLIM, sT2, 14*28672))
    a("s_lshr_b32 s14, s2, 3"); a("s_lshl_b32 s14, s14, 2"); a("s_add_u32 s14, s14, s%d" % sW); a("s_mul_i32 s14, s14, 3200")
    a("v_min_u32 v131, 24, v%d" % LN_); a("v_lshlrev_b32 v131, 7, v131")
    a("s_movk_i32 s12, 672"); a("s_movk_i32 s13, 896")
    a("v_mul_u32_u24 v45, 4682, v%d" % LN_)
    for i in range(7):
        const = (3072 if i >= 3 else 0) - (10752 if i >= 4 else 0)
        if i: a("v_add_u32 v46, %d, v45" % (64*i*4682)); a("v_lshrrev_b32 v46, 16, v46")
        else: a("v_lshrrev_b32 v46, 16, v45")
        a("v_and_b32 v47, 12, v46")
        a("v_mad_u32_u24 v%d, v46, s12, v%d" % (VO+i, VL))
        a("v_mad_u32_u24 v%d, v47, s13, v%d" % (VO+i, VO+i))
        if i == 3:
            a("v_lshrrev_b32 v47, 4, v46"); a("v_mul_u32_u24 v47, 10752, v47"); a("v_sub_u32 v%d, v%d, v47" % (VO+i, VO+i))
        if const: a("v_add_u32 v%d, %d, v%d" % (VO+i, const & 0xffffffff, VO+i))
    return L
FTAB = 0x1e
def addr_math(part):
    L = []
    a = lambda s, **k: L.append(O(s, **k))
    LN_, P_, RR, GA = 40, 41, 42, 52
    a("s_mov_b32 s%d, %d" % (SO+2, NB)); a("s_mov_b32 s%d, 0x20000" % (SO+3))
    a("s_mov_b32 s%d, 0xffff0000" % sMASK)
    a("s_and_b32 s15, s%d, 1" % sW)
    a("s_mov_b32 s%d, 0x%08x" % (sINV, f2u(1.0/448)))
    a("v_mov_b32 v%d, 0x%08x" % (EPS, f2u(1e-5)))
    a("s_sub_u32 s%d, s3, 14" % sT); a("s_min_u32 s3, s3, s%d" % sT)
    a("s_sub_u32 s%d, s3, 14" % sT); a("s_min_u32 s3, s3, s%d" % sT)
    a("s_mul_i32 s%d, s%d, 224" % (sT2, sW))
    a("v_lshlrev_b32 v%d, 4, v%d" % (GA, P_))
    a("v_cmp_eq_u32 vcc, 3, v%d" % RR)
    a("v_lshlrev_b32 v45, 5, v%d" % P_)
    a("v_mov_b32 v46, 0x100")
    a("v_cndmask_b32 v45, v%d, v45, vcc" % GA)
    a("v_cndmask_b32_e64 v46, v46, 16, vcc")
    a("v_lshl_add_u32 v50, v%d, 9, v45" % RR)
    a("v_add_u32 v50, s%d, v50" % sREG); a("v_add_u32 v%d, s%d, v%d" % (GA, sREG, GA))
    a("v_add_u32 v51, v50, v46")
    a("s_movk_i32 s12, 0x78")
    a("v_lshrrev_b32 v45, 2, v%d" % P_)
    a("v_lshlrev_b32 v46, 1, v45"); a("v_bfe_u32 v46, s12, v46, 2")
    a("v_xor_b32 v46, v46, v%d" % RR)
    a("v_lshrrev_b32 v47, 1, v46"); a("v_and_b32 v48, 3, v%d" % P_); a("v_xor_b32 v47, v47, v48")
    a("v_lshlrev_b32 v47, 4, v47"); a("v_lshl_add_u32 v47, v46, 6, v47")
    a("v_mul_u32_u24 v45, %d, v45" % WREG); a("v_add_u32 v%d, v45, v47" % XR)
    a("s_lshl_b32 s41, s%d, 1" % sW); a("s_lshr_b32 s41, s12, s41"); a("s_and_b32 s41, s41, 3")
    def common(qexpr_ops):
        for s in qexpr_ops: a(s)
        a("v_xor_b32 v46, s41, v46")
        a("v_lshrrev_b32 v47, 1, v46"); a("v_xor_b32 v47, v47, v%d" % RR); a("v_lshlrev_b32 v47, 4, v47")
        a("v_lshl_add_u32 v47, v46, 6, v47"); a("v_add_u32 v47, s%d, v47" % sREG)
    common(["v_and_b32 v46, 3, v%d" % P_])
    a("v_lshrrev_b32 v46, 2, v%d" % P_); a("v_subrev_u32 v46, s3, v46")
    for c in range(3):
        if c: a("v_add_u32 v46, 4, v46")
        a("v_add_u32 v48, 14, v46"); a("v_min_u32 v48, v48, v46")
        a("v_lshl_add_u32 v%d, v48, 10, v47" % (LWY+c)); a("v_lshl_add_u32 v%d, v48, 8, v47" % (LWZ+c))
    common(["v_bfe_u32 v46, v%d, 1, 2" % P_])
    a("v_and_b32 v46, 1, v%d" % P_); a("v_lshl_add_u32 v47, v46, 3, v47")
    a("v_lshrrev_b32 v46, 3, v%d" % P_); a("v_add_u32 v46, 12, v46"); a("v_subrev_u32 v46, s3, v46")
    a("v_add_u32 v48, 14, v46"); a("v_min_u32 v48, v48, v46")
    a("v_lshl_add_u32 v%d, v48, 10, v47" % (LWY+3)); a("v_lshl_add_u32 v%d, v48, 8, v47" % (LWZ+3))
    if part == 1: return L[:]
    del L[:]
    a("s_lshl_b32 s41, s15, 5")
    a("v_lshrrev_b32 v45, 2, v%d" % LN_); a("v_mul_u32_u24 v45, 224, v45"); a("v_and_b32 v46, 3, v%d" % LN_)
    a("v_add_u32 v45, s%d, v45" % sREG)
    a("v_lshl_add_u32 v%d, v46, %d, v45" % (TR1, 3 if cfg.nocf else 4)); a("v_add_u32 v%d, s41, v%d" % (TR1, TR1))
    a("s_mul_i32 s12, s15, 192"); a("s_sub_u32 s12, 192, s12")
    a("v_lshl_add_u32 v%d, v46, 3, v45" % TR2); a("v_add_u32 v%d, s12, v%d" % (TR2, TR2))
    return L
def late_addr():
    L = []
    a = lambda s, **k: L.append(O(s, **k))
    P_, RR = 16, 17
    ST, OS, OW, OR = 20, 21, 22, 16
    a("v_mbcnt_lo_u32_b32 v17, -1, 0"); a("v_mbcnt_hi_u32_b32 v17, -1, v17")
    a("v_and_b32 v16, 15, v17"); a("v_lshrrev_b32 v17, 4, v17")
    a("v_lshrrev_b32 v18, 2, v%d" % P_); a("v_and_b32 v19, 3, v%d" % P_); a("v_lshl_add_u32 v18, v18, 5, v19")
    a("v_mul_u32_u24 v18, 896, v18"); a("v_lshl_add_u32 v18, v%d, 4, v18" % RR)
    a("s_lshl_b32 s41, s15, 5"); a("s_add_u32 s12, s41, s%d" % sT2)
    a("v_add_u32 v%d, s12, v18" % ST)
    a("s_lshr_b32 s13, s%d, 1" % sW)
    a("s_mul_i32 s12, s13, 448"); a("s_mul_i32 s%d, s15, 3584" % sPAR); a("s_add_u32 s12, s12, 192")
    a("v_add_u32 v%d, s12, v18" % OS)
    a("v_lshlrev_b32 v18, 5, v%d" % P_)
    a("v_lshl_add_u32 v19, v%d, 3, v18" % RR); a("v_add_u32 v%d, s%d, v19" % (OW, sREG))
    a("v_and_b32 v19, 1, v%d" % RR); a("v_lshl_add_u32 v18, v19, 4, v18")
    a("v_lshrrev_b32 v19, 1, v%d" % RR); a("v_mul_u32_u24 v19, %d, v19" % WREG); a("v_add_u32 v18, v18, v19")
    a("s_mul_i32 s12, s13, %d" % (2*WREG)); a("s_lshl_b32 s42, s15, 9"); a("s_add_u32 s12, s12, s42")
    a("v_add_u32 v%d, s12, v18" % OR)
    return L
def gbtable():
    GA = 52
    L = [WAIT(v="gb")]
    for i in range(8):
        L += [O("v_lshlrev_b32 v%d, 16, v%d" % (56+2*i, 136+i)), O("v_and_b32 v%d, s%d, v%d" % (57+2*i, sMASK, 136+i))]
        if i == 3: L += [O("ds_write_b128 v50, v[56:59] offset:%d" % GTAB), O("ds_write_b128 v51, v[60:63] offset:%d" % GTAB)]
    L += [O("ds_write_b128 v50, v[64:67] offset:%d" % (GTAB+2048)), O("ds_write_b128 v51, v[68:71] offset:%d" % (GTAB+2048))]
    for v in range(7):
        L.append(O("ds_read_b128 %s, v%d offset:%d" % (vr(GE+4*v, 4), GA, GTAB+256*v)))
        L.append(O("ds_read_b128 %s, v%d offset:%d" % (vr(BE+4*v, 4), GA, GTAB+2048+256*v), tag="gbr" if v == 6 else None))
    return L

def half(n):
    j, x = divmod(n, 2)
    return j, cfg.horder.get(j, (0, 1))[x]
def build():
    wn[0] = 0; xn[0] = 0; stampn[0] = 0; del stampnames[:]; m0state[0] = None; TR2late[0] = False
    code = []; trace = []
    def emit(L): code.extend(L); trace.extend(L)
    emit(prologue())
    fb = [0]
    def xread(tile, j):
        return O("ds_read_b128 %s, v%d offset:%d" % (vr(F[fb[0] & 1], 4), XR, xoff(tile, j)), tag="xf", sem=("X", tile, j))
    pre = {}
    def units(seq, nxt):
        mf = []; fixed = {}; starts = []
        for k, u in enumerate(seq):
            tile, j = u[0], u[1]
            g = len(mf); starts.append(g)
            if (tile, j) in pre: cur = pre[(tile, j)]
            else: cur = F[fb[0] & 1]; fb[0] += 1
            n = seq[k+1] if k+1 < len(seq) else nxt
            acc = ACC[tile] if tile < 4 else ACC[2]
            ts = u[3] if len(u) > 3 else range(7)
            for t in ts: mf.append(mfma(acc, j, t, cur, None if len(u) < 3 or u[2] is None else u[2][t], tile))
            if n is not None and (n[0], n[1]) not in pre:
                fixed.setdefault(g, []).append(xread(n[0], n[1]))
                fixed.setdefault(len(mf)-1, []).append(WAIT(l="xf"))
        return mf, fixed, starts
    st8 = dict(ri=0, li=0, th=0, vis=0, wi=0)
    done = set(); waited = set()
    def simple(tok):
        if tok[0] in "xw" and "+" not in tok:
            out = []
            for o in (xdma if tok[0] == "x" else wdma)(int(tok[1:])):
                for tg in o.needs:
                    if tg.startswith("tr") and tg not in waited: waited.add(tg); out.append(WAIT(l=tg))
                out.append(o)
            return out
        if tok[0] == "t" and "+" not in tok:
            j, h = half(st8["th"]); st8["th"] += 1
            return [WAIT(v=wland(j, h))] + trreads(j, h)
        if tok == "y": return [WAIT(l=0)]
        if tok == "-": return []
        if tok == "|": return [O("@SPLIT", kind="L")]
        if tok == "J": return [O("    s_branch L_main", kind="L"), O(".p2align 12", kind="L"), O(".fill %d, 4, 0xbf810000" % (cfg.joff//4), kind="L"), O("L_main:")]
        if tok == "H":
            L = [O("    s_mov_b64 vcc, 1", kind="L")]
            for k in range(4):
                L += [O("@H%d    s_cmp_eq_u32 s%d, %d" % (k, sW, k), kind="L"), O("@H%d    s_cbranch_scc1 L_pad%d" % (k, k), kind="L")]
            return L + [O("L_padret:"), O("s_mov_b64 vcc, 0")]
        if tok == "I":
            return [O("s_lshl_b32 s43, s%d, 2" % sW), O("v_mov_b32 v124, s43"), O("v_mov_b32 v125, 0"), O("v_mov_b32 v126, 1"),
                    O("ds_write_b32 v124, v125 offset:%d" % FLAGO), WAIT(l=0), O("s_barrier")]
        if tok == "S":
            st8["fvis"] = st8["wi"]//4
            return [WAIT(l=0), O("ds_write_b32 v124, v126 offset:%d" % FLAGO)]
        if tok == "Q": return [O("ds_read_b128 v[140:143], v125 offset:%d" % FLAGO, tag="fl")]
        if tok == "K":
            st8["vis"] = st8["fvis"]
            return [O("L_chk:"), WAIT(l="fl"), O("v_and_b32 v140, v140, v141"), O("v_and_b32 v142, v142, v143"), O("v_and_b32 v140, v140, v142"), O("s_nop 0"),
                    O("v_readfirstlane_b32 s43, v140"), O("s_cmp_eq_u32 s43, 1", tag="scc:k"), O("s_cbranch_scc1 L_ok", needs=["scc:k"]),
                    O("    ds_read_b128 v[140:143], v125 offset:%d" % FLAGO, kind="L"), O("    s_waitcnt lgkmcnt(0)", kind="L"), O("    s_branch L_chk", kind="L"), O("L_ok:")]
        if tok == "Z":
            st8["vis"] = st8["wi"]//4
            return [WAIT(l=0), O("s_barrier")]
        if tok[0] == "d" and "+" not in tok:
            out = []
            for _ in range(int(tok[1:] or 1)):
                i, c = divmod(st8["wi"], 4); st8["wi"] += 1; assert i < st8["li"]
                out.append(lnwrites(i)[c])
            return out
        if tok[0] == "s" and "+" not in tok: return stamp(tok)
        if "+" in tok: return [o for t in tok.split("+") for o in simple(t)]
        if tok[0] == "F":
            j = int(tok[1:]); assert st8["vis"] >= 4; out = []
            for t in range(4):
                pre[(t, j)] = wf(j + cfg.fo, t)
                out.append(O("ds_read_b128 %s, v%d offset:%d" % (pre[(t, j)], XR, xoff(t, j)), sem=("X", t, j)))
            return out
        if tok == "P": return [O("buffer_load_dword v136, v131, s[%d:%d], s14 offen" % (SWd, SWd+3))]
        raise Exception(tok)
    nz = 0
    for tok in cfg.early.split():
        head, _, spr = tok.partition(":")
        spr = spr.split(",") if spr else []
        if tok == "G": emit(gbload())
        elif tok == "P": emit([O("buffer_load_dword v136, v131, s[%d:%d], s14 offen" % (SWd, SWd+3))])
        elif tok == "A": emit(addr_math(1))
        elif tok == "A2": emit(addr_math(2) + wsetup())
        elif tok == "B": emit(stamp("mb")); emit(gbtable())
        elif head == "C":
            li = st8["li"]
            emit(stamp("c%d" % li))
            A = ln_code(li); out = []
            items = []
            for k, t in enumerate(spr):
                t, _, pct = t.partition("@")
                nops = [i for i, o in enumerate(A) if o.text == "s_nop 0"]
                items.append((nops[int(pct[1:])] if pct[:1] == "n" else (int(pct)*len(A))//100 if pct else (k+1)*len(A)//(len(spr)+1), t))
            k = 0
            for idx, o in enumerate(A):
                ins = []
                while k < len(items) and idx >= items[k][0]: ins += simple(items[k][1]); k += 1
                out += ins
                if o.text == "s_nop 0" and ins: continue
                out.append(o)
            assert k == len(items)
            emit(out); emit(stamp("n%d" % li))
            st8["li"] += 1
        elif tok == "Z":
            bf = all((t, j) in done or (t, j) in pre for t in range(4) for j in range(2))
            emit([WAIT(l=0), O("s_barrier", tag="Bfree" if bf else "gbfree")]); st8["vis"] = st8["wi"]//4; st8["bf"] = bf
        elif head[0] == "U":
            tl, js = head[1:].split("@"); js = [int(x) for x in js.split("-")]
            seq = [(int(c), j) for j in range(js[0], js[-1]+1) for c in tl]
            for u in seq:
                assert u[0] < st8["vis"] and (u[1] == 0 or (u[0], u[1]-1) in done), tok
                done.add(u)
            emit(stamp("u%d" % js[0]))
            emit([xread(*seq[0]), WAIT(l=0)])
            mf, fixed, starts = units(seq, None)
            for k, u in enumerate(seq):
                if k and u[1] != seq[k-1][1]: fixed[starts[k]-1] = [WAIT(l=0)]
            segs = ",".join(spr).split("/"); n = 7*len(tl)
            for si in range(js[-1]-js[0]+1):
                stream = []
                for t in (segs[si].split(",") if si < len(segs) and segs[si] else []):
                    t, _, gp = t.partition("@")
                    ops = [o for o in simple(t)]
                    if ops and gp: ops[0].at = int(gp)
                    stream += ops
                emit(weave(mf[si*n:(si+1)*n], {g-si*n: v for g, v in fixed.items() if si*n <= g < (si+1)*n}, stream, 0, n-3))
        else: emit(simple(tok))
    assert st8["wi"] == 28 and st8["li"] == 8 and xn[0] == 32 and st8["vis"] >= 5
    th = st8["th"]
    emit(stamp("mp"))
    bfree = [st8.get("bf", False)]
    def canissue():
        n = wn[0]; rd = set(half(x) for x in range(th))
        while n < 98:
            j, ii = divmod(n, 7); i = worder(j)[ii]
            if any(x not in rd for x in wneeds(j, i)): break
            n += 1
        return n - wn[0]
    order = [3, 0, 1, 2]
    seq = [(t, j) for j in range(12) for t in order if (t, j) not in done]
    j0 = seq[0][1]
    if th < 2*j0+2:
        emit([WAIT(l=0)] + wdma(canissue()))
        while th < 2*j0+2:
            j, h = half(th); th += 1
            emit([WAIT(v=wland(j, h))] + trreads(j, h))
    emit(([xread(*seq[0])] if seq[0] not in pre else []) + [WAIT(l=0)])
    HOLD = {}
    OSL = {t: t for t in range(8)}
    S2 = [4, 5, 6, 7]
    nreg = len(seq)
    a3 = ACC[3]; a0 = ACC[0]
    tmpB = [T, T+4, T+8, T+12, a3, a3+8, a0]
    seq += [(t, 12) for t in order]
    mf, fixed, starts = units(seq, (3, 13))
    FB3 = [F[fb[0] & 1], F[(fb[0]+1) & 1], T+16]
    R13 = [(t, range(4)) for t in order] + [(t, range(4, 7)) for t in order]
    E = []
    for k, (tl, ts) in enumerate(R13):
        E.append(len(mf))
        for t in ts: mf.append(mfma(ACC[tl], 13, t, FB3[k % 3], tmpB[t], tl))
    E.append(len(mf))
    def xr3(k):
        tl, j = (R13[k][0], 13) if k < 8 else (S2[0], 0)
        return O("ds_read_b128 %s, v%d offset:%d" % (vr(FB3[k % 3] if k < 8 else FB3[0], 4), XR, xoff(tl, j)), tag="x3_%d" % k, sem=("X", tl, j))
    fixed.setdefault(E[0]-3, []).append(xr3(2))
    fixed.setdefault(E[0], []).append(xr3(1))
    for k in range(3, 8): fixed.setdefault(E[k-2], []).append(xr3(k))
    fixed.setdefault(E[7], []).append(xr3(8))
    for k in range(1, 9):
        if k != 2: fixed.setdefault(E[k]-1, []).append(WAIT(l="x3_%d" % k))
    first = {}
    for k, u in enumerate(seq): first.setdefault(u[1], starts[k])
    def used(g):
        u = 0
        for o in fixed.get(g, []):
            if o.kind == "V" and u < 1: u = 1
            u += cost(o)
        return u
    def fx(g, ops, front=False):
        if front: fixed[g] = ops + fixed.get(g, [])
        else: fixed.setdefault(g, []).extend(ops)
    put = fx
    def putdma(g, d, gprep):
        pend = []; firstd = True
        for o in d:
            if o.kind != "G":
                if o.text != "s_nop 0": pend.append(o)
                continue
            while used(g) > 0: g += 1
            if pend:
                if firstd and gprep is not None:
                    gp = gprep
                    for p in pend:
                        while used(gp) >= 3 and gp < g-1: gp += 1
                        put(gp, [p])
                else: put(g-1, pend)
            put(g, [o]); pend = []; g += 1; firstd = False
        return g
    def puttr(g, ops, gend):
        ops = list(ops); assert gend >= g
        load = {x: used(x) for x in range(g, gend+1)}; cnt = {x: 0 for x in load}
        for _ in ops:
            x = min(load, key=lambda x: (max(load[x]+2-3, 0), x)); load[x] += 2; cnt[x] += 1
        last = g
        for x in range(g, gend+1):
            for _ in range(cnt[x]): put(x, [ops.pop(0)]); last = x
        return last + 1
    d0 = wdma(canissue())
    emit([o for o in d0[:4] if o.kind != "G" and d0.index(o) < next((i for i, x in enumerate(d0) if x.kind == "G"), 0)])
    k0 = next((i for i, x in enumerate(d0) if x.kind == "G"), 0)
    g = putdma(1, d0[k0:], None)
    yprev = -4
    while th < 26:
        k, h = half(th); second = th % 2; th += 1
        yt = first[k] - cfg.lead - (0 if second else 14)
        if cfg.eager: yt = min(yt, yprev + cfg.eager)
        D = first[k] - 1 - (0 if second else cfg.minp)
        y = min(max(yt, g + 7 + cfg.lat), D)
        gs = max(min(g, y - cfg.lat - 4), y - 11, 0)
        while used(gs) > 0 and gs < y - cfg.lat - 6: gs += 1
        put(gs, [WAIT(v=wland(k, h))])
        ge = puttr(gs, trreads(k, h), y - cfg.lat)
        put(y, [WAIT(l="tr%dh%d" % (k, h))]); yprev = y
        if cfg.sbar and th % cfg.sbar == 0 and th < 24: put(y, [O("s_barrier")])
        if (k, h) == (12, 0): y12 = y
        nb = wn[0]
        g = putdma(max(g, y+1), wdma(canissue()), max(ge, g))
        if nb < 98 and wn[0] == 98: glast = g
    assert wn[0] == 98
    def putseq(gw, ops):
        for o in ops:
            while used(gw) + (1 if o.kind == "V" and used(gw) < 1 else 0) >= 3: gw += 1
            put(gw, [o])
        return gw
    gm = putseq(glast, late_addr())
    late_mov = [O("v_mov_b32 v%d, v%d" % x) for x in ((6, TR2), (ST, 20), (OS, 21), (OW, 22), (OR, 16))]
    if cfg.wlate:
        gw = max(E[0] - cfg.e13, gm + 1, first[12])
        put(gw, [WAIT(v=wland(13, 1))]); gw += 1
        for o in lnwrites(7):
            while used(gw) > 0: gw += 1
            put(gw, [o]); gw += 1
        gw = putseq(gw, late_mov)
    else:
        gw = max(y12 + 1, first[12] - cfg.gw)
        for o in lnwrites(7):
            while used(gw) > 0: gw += 1
            put(gw, [o]); gw += cfg.gwstep
        gw = putseq(max(gm, gw - cfg.gwstep + 1, first[12]), late_mov)
    TR2late[0] = True
    glate = gw
    for j in sorted(first):
        if first[j] > 0: put(first[j]-1, stamp("p%d" % j))
    def oddw(tile, src): return O("ds_write_b64 v%d, %s offset:%d" % (OW, vr(src, 2), ODDO + 512*OSL[tile]), cost=3, needs=["tr12h0", "tr12h1"], sem=("OW", tile))
    def store(tile, P):
        return [O("s_add_u32 s%d, s%d, %d" % (sO2, sOO, 3584*tile), sem=("SO", ("ST", tile))),
                O("buffer_store_dwordx4 %s, v%d, s[%d:%d], s%d offen offset:%d%s" % (vr(HOLD[tile][P], 4), ST, SO, SO+3, sO2, 64*P, cfg.lpol if tile == 7 and cfg.lpol is not None else cfg.spol), sem=("ST", tile, P))]
    gs = max(g, E[0] - cfg.e13, gw + 1)
    put(gs, [WAIT(v=wland(13, 0))])
    g1 = puttr(gs, trreads(13, 0, range(4), T, "ta0"), min(gs+4, (gs+E[0]-4)//2))
    put(g1, [WAIT(v=wland(13, 1))])
    puttr(g1, trreads(13, 1, range(4), T, "ta1"), max(g1+1, E[0]-4))
    put(E[0]-1, [WAIT(l="ta1")])
    def pair_inplace(tile, P):
        x0, x1 = ACC[tile]+8*P, ACC[tile]+8*P+4
        return [cvt(x1+3, x1+2), cvt(x1+2, x1), cvt(x1, x0), cvt(x1+1, x0+2)]
    for tl in (3, 0, 1): HOLD[tl] = [ACC[tl]+4, ACC[tl]+12, ACC[tl]+20]
    def odd_inplace(tile):
        x = ACC[tile]+24
        return [cvt(x, x), cvt(x+1, x+2)], oddw(tile, x)
    put(E[0]+2, [O("s_nop 1")])
    p = pair_inplace(3, 0); put(E[1]+1, p[:2]); put(E[1]+2, p[2:])
    p = pair_inplace(3, 1); put(E[1]+3, p[:2]); put(E[2]+1, p[2:])
    p = pair_inplace(0, 0); put(E[2]+2, p)
    tb = lambda t: trreads(13, 0, [t], tmpB[t], "tb%d0" % t) + trreads(13, 1, [t], tmpB[t], "tb%d1" % t)
    put(E[2], tb(4)); put(E[2]+3, tb(5)); put(E[3]+1, tb(6))
    put(E[4]-1, [WAIT(l="tb51")]); put(E[4]+1, [WAIT(l="tb61")])
    DEST = {2: T, 4: ACC[1], 5: ACC[0], 6: ACC[1], 7: ACC[0]}
    for tl, b in DEST.items(): HOLD[tl] = [b, b+8, b+16]
    HOLD[2] = [T, T+4, T+8]
    def oddpos(tile): return T+12 if tile == 2 else DEST[tile]+26
    def pkcvt(tile, t):
        d = oddpos(tile) if t == 6 else HOLD[tile][t >> 1] + 2*(t & 1)
        return [cvt(d, ACC[2]+4*t), cvt(d+1, ACC[2]+4*t+2)]
    put(E[5]+1, pkcvt(2, 0)); put(E[5]+2, pkcvt(2, 1)); put(E[6]+1, pkcvt(2, 2)); put(E[6]+2, pkcvt(2, 3))
    sx = store(3, 0); put(E[4], sx[:1]); put(E[4]+2, sx[1:], front=True)
    sx = store(3, 1); put(E[7]+1, sx[1:], front=True)
    for k in range(4): put(first[12] + 7*k - 1, stamp("eu%d" % k))
    for k in range(9): put(E[k]-1, stamp("e%d" % k))
    emit(weave(mf, fixed, [], 0, 0))
    emit(stamp("mq"))
    plan = cfg.plan or [[(0, 0), (0, 1), (0, 2), (1, 0), (1, 1), (1, 2)], [(2, 0), (2, 1), "o", (2, 2), (4, 0), "o", (4, 1)],
                        [(4, 2), (5, 0), (5, 1), (5, 2)], [(6, 0), (6, 1), (6, 2), "o"]]
    om = [0]
    OT = T+16
    PAIR = [(0, 1), (2, 3), (4, 5), (6, 7)]
    def oddso(m):
        t0, t1 = PAIR[m]
        if t1 - t0 == 1: return [O("s_add_u32 s%d, s%d, %d" % (sO2, sPAR, 3584*t0), sem=("SO", None)), O("s_add_u32 s%d, s%d, s%d" % (sO2, sO2, sOO), sem=("SO", ("OS", m)))]
        return [O("s_mul_i32 s%d, s%d, %d" % (sO2, sPAR, t1-t0), sem=("SO", None)), O("s_add_u32 s%d, s%d, s%d" % (sO2, sO2, sOO)), O("s_add_u32 s%d, s%d, %d" % (sO2, sO2, 3584*t0), sem=("SO", ("OS", m)))]
    for bi, tile in enumerate(S2):
        prev = 2 if bi == 0 else S2[bi-1]
        mf, fixed, _ = units([(tile, j) for j in range(14 if bi < 3 else 14 - cfg.nl)], (S2[bi+1], 0) if bi < 3 else None)
        if bi == 0:
            fx(0, [O("s_nop 0")]); fx(1, pair_inplace(3, 2)[:2]); fx(2, pkcvt(2, 4)); fx(3, pkcvt(2, 5)); fx(4, pkcvt(2, 6)); fx(5, pair_inplace(3, 2)[2:])
            fx(8, [oddw(2, oddpos(2))], front=True)
            c, o = odd_inplace(3); fx(9, c); fx(10, [o], front=True)
            sx = store(3, 2); fx(11, sx[1:], front=True)
            gq = 15
            for tl, Ps in ((0, (1, 2)), (1, (0, 1, 2))):
                for P in Ps:
                    p = pair_inplace(tl, P); fx(gq, p[:2]); fx(gq+1, p[2:]); gq += 2
                    if gq % 7 == 0: gq += 1
                c, o = odd_inplace(tl); fx(gq, c); fx(gq+1 + ((gq+1) % 7 == 0), [o], front=True); gq += 3
                if gq % 7 == 0: gq += 1
        else:
            for t in range(3, 7): fx(t-2, pkcvt(prev, t))
            fx(8, [oddw(prev, oddpos(prev))], front=True)
        items = plan[bi]; n = len(items)
        lo = 36 if bi == 0 else 10
        for k, it in enumerate(items):
            g = lo + ((88 if bi < 3 else cfg.lhi)-lo)*k//n
            while g % 7 in (0, 6, 1, 2): g += 1
            if it == "o":
                m = om[0]; om[0] += 1
                gr = g - 9
                while gr % 7 in (0, 6): gr -= 1
                fx(gr, [O("ds_read_b128 %s, v%d offset:%d" % (vr(OT, 4), OR, ODDO + 1024*m), needs=["bar%d" % (0 if m < 2 else 2)], tag="od")], front=True)
                fx(g-2, oddso(m), front=True); fx(g-1, [WAIT(l="od")], front=True)
                fx(g, [O("buffer_store_dwordx4 %s, v%d, s[%d:%d], s%d offen%s" % (vr(OT, 4), OS, SO, SO+3, sO2, cfg.spol), sem=("OS", m))], front=True)
            else:
                s = store(*it); fx(g-1, s[:1], front=True); fx(g, s[1:], front=True)
        if bi == 0: puttr(50, trreads(13, 0) + trreads(13, 1), 82)
        if bi in (0, 2):
            fixed[90] = [WAIT(l=0)]
            fx(91, [O("s_barrier", tag="bar%d" % bi)], front=True)
        if bi < 3:
            fx(92, [O("s_nop 0")]); fx(93, [O("s_nop 0")]); fx(94, [O("s_nop 1")])
            for t in range(3): fx(95+t, pkcvt(tile, t))
        else:
            NL = cfg.nl; j0 = 14 - NL; G0 = 7*j0
            XF = [T, T+4, T+8, T+12, ACC[0]+4, ACC[0]+12, ACC[0]+20, ACC[1]+4, ACC[1]+12, ACC[1]+20][:NL]
            rd = [O("ds_read_b128 %s, v%d offset:%d" % (vr(XF[k], 4), XR, xoff(tile, j0+k)), tag="xl", sem=("X", tile, j0+k)) for k in range(NL)]
            puttr(max(5, G0 - 2*NL - 6), rd, G0 - 5)
            fx(G0-1, [WAIT(l="xl")])
            for ts in ([6], [0, 1], [2, 3], [4, 5]):
                for k in range(NL):
                    for t in ts: mf.append(mfma(ACC[2], j0+k, t, XF[k], None, tile))
            a6 = G0 + NL; a0_ = a6 + 2*NL; a1_ = a0_ + 2*NL
            fx(a6, [O("s_nop 1")]); fx(a6+1, [O("s_nop 1")]); fx(a6+2, [O("s_nop 0")] + pkcvt(tile, 6)); fx(a6+3, [oddw(tile, oddpos(tile))])
            fx(a6+6, [WAIT(l=0), O("s_barrier")]); fx(a6+7, [O("ds_read_b128 %s, v%d offset:%d" % (vr(OT, 4), OR, ODDO + 3072), tag="od")])
            fx(a0_, [O("s_nop 1")]); fx(a0_+1, [O("s_nop 1")]); fx(a0_+2, [O("s_nop 0")] + pkcvt(tile, 0)); fx(a0_+3, store(tile, 0)[:1] + pkcvt(tile, 1)); fx(a0_+4, store(tile, 0)[1:])
            go = a0_+5 if NL < 8 else a6+13
            fx(go, oddso(3)); fx(go+1, [WAIT(l="od")])
            fx(go+2, [O("buffer_store_dwordx4 %s, v%d, s[%d:%d], s%d offen%s" % (vr(OT, 4), OS, SO, SO+3, sO2, cfg.spol), sem=("OS", 3))])
            fx(a1_, [O("s_nop 1")]); fx(a1_+1, [O("s_nop 1")]); fx(a1_+2, [O("s_nop 0")] + pkcvt(tile, 2)); fx(a1_+3, store(tile, 1)[:1] + pkcvt(tile, 3)); fx(a1_+4, store(tile, 1)[1:])
        if bi == 0:
            for k in (13, 27, 41, 55, 69, 83, 89, 92): fx(k, stamp("eb%d" % k))
        if bi == 3:
            for k in (13, 27, 41, 55, 69, 75, 79, 81, 85, 89, 93): fx(k, stamp("lb%d" % k))
        emit(weave(mf, fixed, [], 0, 0))
        emit(stamp("m%d" % (bi+4)))
    lt = S2[3]
    Tl = [O("s_nop 6")] + pkcvt(lt, 4) + pkcvt(lt, 5) + store(lt, 2)[1:]
    assert om[0] == 3
    emit(Tl)
    if cfg.stamps:
        emit(stamp("z1")); emit([O("s_waitcnt vmcnt(0)")]); emit(stamp("z2"))
        S = [O("s_waitcnt lgkmcnt(0)"), O("s_mov_b32 s50, 0x10000000"), O("s_mov_b32 s51, 0x20000"), O("v_mov_b32 v40, 0")]
        for i in range(stampn[0]): S.append(O("v_writelane_b32 v40, s%d, %d" % (52+2*i, i)))
        S += [O("s_lshl_b32 s3, s2, 2"), O("s_add_u32 s3, s3, s%d" % sW), O("s_lshl_b32 s3, s3, 8"),
              O("v_mbcnt_lo_u32_b32 v41, -1, 0"), O("v_mbcnt_hi_u32_b32 v41, -1, v41"), O("v_lshlrev_b32 v41, 2, v41"),
              O("buffer_store_dword v40, v41, s[48:51], s3 offen sc1")]
        emit(S)
    emit([O("L_end:"), O("s_endpgm")])
    errs = resolve_and_verify(trace) + semcheck(trace)
    for e in errs[:40]: print("ERR", e, file=sys.stderr)
    if errs: raise Exception("verify failed: %d" % len(errs))
    return code

def render(code, kname):
    hdr = open('cdna_kernels/%s.s.ref' % NAME).read().split('\n')
    L = [l for l in hdr if l.startswith(';') and '@launch' not in l]
    L += ["; @launch grid=(256,1,1) block=(256,1,1) lds=163840", '.amdgcn_target "amdgcn-amd-amdhsa--gfx950"', ".text",
          ".globl %s" % kname, ".p2align 8", ".type %s,@function" % kname, "%s:" % kname]
    L += code
    if cfg.cpf: L += [".fill 1600, 4, 0xbf810000"]
    L += ['.section .rodata,"a"', ".p2align 6", ".amdhsa_kernel %s" % kname, "  .amdhsa_next_free_vgpr 512", "  .amdhsa_next_free_sgpr 102",
          "  .amdhsa_accum_offset 256", "  .amdhsa_group_segment_fixed_size 0", "  .amdhsa_kernarg_size 56", "  .amdhsa_user_sgpr_count 2",
          "  .amdhsa_user_sgpr_kernarg_segment_ptr 1", "  .amdhsa_system_sgpr_workgroup_id_x 1", ".end_amdhsa_kernel"]
    return '\n'.join(L) + '\n'
def addrs(lines, kname):
    import subprocess
    lab = []
    for i, l in enumerate(lines): lab += ["Lq%d:" % i, l]
    open("_a.s", "w").write(render(lab, kname))
    subprocess.run(["clang", "-x", "assembler", "-target", "amdgcn-amd-amdhsa", "-mcpu=gfx950", "-c", "_a.s", "-o", "_a.o"], check=True)
    out = subprocess.run(["llvm-objdump", "-t", "_a.o"], capture_output=True, text=True).stdout
    A = {}
    for l in out.splitlines():
        p = l.split()
        if p and p[-1].startswith("Lq"): A[int(p[-1][2:])] = int(p[0], 16)
    return [A[i] for i in range(len(lines))]
def write(path, kname=NAME+"_kernel"):
    code = build()
    if cfg.nostore: code = [o for o in code if not (o.sem and o.sem[0] in ("ST", "OS"))]
    lines = [("" if o.kind == "L" else "    ") + o.render() for o in code]
    if cfg.alt:
        import re as _re
        global stampnames
        names1 = list(stampnames)
        save = {k: getattr(cfg, k) for k in cfg.alt}
        for k, v in cfg.alt.items(): setattr(cfg, k, v)
        l2 = [("" if o.kind == "L" else "    ") + o.render() for o in build()]
        for k, v in save.items(): setattr(cfg, k, v)
        assert names1 == stampnames, (names1, stampnames)
        i = lines.index("@SPLIT"); assert lines[:i+1] == l2[:i+1]
        l2 = [_re.sub(r"\bL_(chk|ok|end)\b", r"L_\g<1>2", x) for x in l2[i+1:]]
        lines = lines[:i] + ["    s_bitcmp1_b32 s2, %d" % cfg.gbit, "    s_cbranch_scc1 L_alt"] + lines[i+1:] + [".p2align 6", "L_alt:"] + l2
    lines = [l for l in lines if l != "@SPLIT"]
    if any(l.startswith("@H") for l in lines):
        ret = lines.index("L_padret:")
        npad = 0
        for k in range(4):
            tmp = [(l[3:] if l.startswith("@H") else l) for l in lines] + ["L_pad%d:" % x for x in range(npad, 4)]
            A = addrs(tmp, kname)
            lastpad = max([ret] + [i for i, l in enumerate(lines) if l.startswith("L_pad") and l != "L_padret:"])
            bnd = (A[lastpad]//4096 + 1 + (cfg.padskip if k == 0 else 0))*4096
            i = next((i for i in range(lastpad+1, len(lines)) if A[i] >= bnd + cfg.padoff and "v_mfma" in lines[i-1] and "v_mfma" in lines[i]), None)
            j = next((i for i in range(lastpad+1, len(lines)) if A[i] >= bnd), None)
            if j is None: break
            if i is None or A[i] >= bnd + 56: i = next(i for i in range(j, len(lines)) if not lines[i].lstrip().startswith(("s_cselect", "s_cbranch", "L_", ".")))
            lines[i:i] = ["L_pad%d:" % k, "    s_cbranch_vccnz L_padret"]; npad += 1
        lines = [(l[3:] if int(l[2]) < npad else "    s_nop 0") if l.startswith("@H") else l for l in lines]
        print("pads:", npad, file=sys.stderr)
    open(path, 'w').write(render(lines, kname))
if __name__ == "__main__":
    write("v11.s")
```

```python
from final import *
make("k_a.s")
make("k_nl10.s", nl=10, lhi=36)
make("k_s01.s", spol=" sc0 sc1")
make("k_cpf4.s", cpf=4)
make("k_tp.s", twopass=True, early=g.replace("@n0", "@36").replace("@n3", "@66").replace("@n2", "@66").replace("w1@36,w1@46,w1@36", "w1@36,w1@46,w1@56"))
make("k_one.s", twopass=False)
```

```python
import sys, struct
from gen_core import *
NAME = "standalone__layernorm_linear__sampling"
def f2u(f): return struct.unpack('<I', struct.pack('<f', f))[0]
NB = 32768*896

class Cfg:
    stamps = False
    sites = "m"
    early = "G x12 A A2 x4 B C:x2@60 x2 d4 C:x2@60 x2 d4 C:x2@60 x2 d4 C:x2@60 x2 d4 C:w1@60 w2 d4 C:w1@60 w2 d4 Z C:w1@60 w2 d4 C:w3@50,w2@60,ta@70,tb@85"
    imgoff = [1536, 8704]*7
    worder = {}
    horder = {}
    xpol = " nt"
    spol = " sc1"
    cpf = 4
    plan = None
    cyc = False
    inw = True
    pace = 14
    endv = 2
    fo = 3
    lead = 7
    e13 = 14
    hwid = True
    twopass = True
    alt = None
    gbit = 7
    cpl = 168
    sbar = 0
    joff = 0
    padskip = 0
    padoff = 0
    parkd = ()
    eager = 0
    nocf = False
    nl = 4
    lhi = 62
    lpol = None
    w64 = False
    wlate = False
    nostore = False
    nobar2 = False
    gw = 8
    gwstep = 2
    minp = 12
    lat = 3
    tro = 5
    ybar = 4
    nobar = False
    ywr = 8
    trn = 6
cfg = Cfg()

XR, ST, OW, OR, OS, TR1, TR2 = 0, 1, 2, 3, 4, 5, 23
F = [8, 12]
T = 16
VO = 16
ACC = {0: 36, 1: 64, 2: 92, 3: 228}
LWY, LWZ, RA, RB, VL, SS, SQ = 120, 1, 128, 129, 130, 132, 134
PARK = [24, 28, 32, 6]
U = 144; GE = 172; BE = 200; EPS = 127
RAW = [228, 242, 106, 92, 78, 64, 50, 36]
sW, sMASK, sWO, sWLIM, sREG, sXO, sOO, sT, sRET, sT2, sO2, sPAR, sINV = 32, 33, 34, 35, 36, 37, 38, 39, 40, 45, 46, 47, 44
SX, SG, SWd, SO = 16, 20, 24, 28
WREG = 40960
IMG = {"A": 0, "B": 7168}
YO = 15872; ZO = YO + 14336
T7O = 256; ODDO = 3840; FLAGO = 0
GTAB = 8704
def wf(j, t, half=None, tmp=None):
    f = 7*j + t
    p, r = ("a", 4*f) if f < 64 else ("v", 120 + 4*(f-64))
    if tmp is not None: p, r = "v", tmp
    if half is None: return "%s[%d:%d]" % (p, r, r+3)
    return "%s[%d:%d]" % (p, r+2*half, r+2*half+1)
def vr(a, n): return "v[%d:%d]" % (a, a+n-1)
O = Op
stampn = [0]; stampnames = []
def stamp(site="m"):
    if not cfg.stamps or site[0] not in cfg.sites + "z": return []
    i = stampn[0]; stampn[0] += 1; stampnames.append(site)
    assert 52+2*i+1 <= 101
    return [O("%s s[%d:%d]" % ("s_memtime" if cfg.cyc else "s_memrealtime", 52+2*i, 53+2*i), kind="S", cost=0.01)]
def mfma(acc, j, t, fb, tmp=None, tile=None):
    a = vr(acc+4*t, 4)
    return O("v_mfma_f32_16x16x32_bf16 %s, %s, %s, %s" % (a, wf(j, t, None, tmp), fb if isinstance(fb, str) else vr(fb, 4), "0" if j == 0 else a), sem=("M", tile, j, t))
m0state = [None]; TR2late = [False]
def setm0(off):
    if m0state[0] == off: return []
    m0state[0] = off
    return [O("s_add_u32 m0, s%d, %d" % (sREG, off))]
xn = [0]; wn = [0]
def xdma(n):
    L = []
    for _ in range(n):
        tl, c = divmod(xn[0], 4); xn[0] += 1
        if c == 0 and tl > 0: L.append(O("s_add_u32 s%d, s%d, 3584" % (sXO, sXO)))
        if c < 3: L.append(O("buffer_load_dwordx4 %s, v%d, s[%d:%d], s%d offen offset:%d%s" % (vr(RAW[tl]+4*c, 4), RA, SX, SX+3, sXO, 256*c, cfg.xpol), tag="x%d_%d" % (tl, c)))
        else: L.append(O("buffer_load_dwordx2 %s, v%d, s[%d:%d], s%d offen offset:768%s" % (vr(RAW[tl]+12, 2), RB, SX, SX+3, sXO, cfg.xpol), tag="x%d_%d" % (tl, c)))
    return L
def ioff(j): return cfg.imgoff[j]
def worder(j): return cfg.worder.get(j, list(range(7)))
def wland(j, h):
    o = worder(j); mem = range(0, 4) if h == 0 else range(3, 7)
    return "w%d_%d" % (j, max(mem, key=o.index))
def wneeds(j, i):
    a = ioff(j) + 1024*i; needs = []
    for k in range(j):
        for h in range(2):
            lo = ioff(k) + 3584*h
            if a < lo + 3584 and lo < a + 1024: needs.append((k, h))
    return needs
def wdma(n):
    L = []
    for _ in range(n):
        j, ii = divmod(wn[0], 7); wn[0] += 1
        i = worder(j)[ii]
        m0 = ioff(j) + (3072 if i >= 3 else 0)
        pre = setm0(m0)
        if ii == 0 and j > 0:
            pre.append(O("s_add_u32 s%d, s%d, 28672" % (sWO, sWO), sem=("ADV", "w", 0.5)))
            pre.append(O("s_cmp_ge_u32 s%d, s%d" % (sWO, sWLIM), tag="scc:w"))
            pre.append(O("s_cselect_b32 s%d, s%d, s%d" % (sWO, sT2, sWO), needs=["scc:w"], sem=("ADV", "w", 0.5)))
        if len(pre) == 1: pre.append(O("s_nop 0"))
        L += pre
        needs = ["tr%dh%d" % x for x in wneeds(j, i)]
        a = ioff(j) + 1024*i
        if GTAB <= a < GTAB + 4096: needs.append("gbr")
        L.append(O("buffer_load_dwordx4 v%d, s[%d:%d], s%d offen offset:%d lds" % (VO+i, SWd, SWd+3, sWO, 1024*(i-3 if i >= 3 else i)), tag="w%d_%d" % (j, i), needs=needs, sem=("DM", m0, "w", j)))
    return L
def trreads(j, h, ts=range(7), tmp=None, tag=None):
    L = []; ts = list(ts)
    for k, t in enumerate(ts):
        off = ioff(j) + h*3584 + ((32*t if cfg.nocf else 64*(t >> 1) + 8*(t & 1)) if t < 6 else 0)
        tg = tag or "tr%dh%d" % (j, h)
        L.append(O("ds_read_b64_tr_b16 %s, v%d offset:%d" % (wf(j, t, h, None if tmp is None else tmp+4*k), TR1 if t < 6 else (6 if TR2late[0] else TR2), off),
                   tag=(tg if k == len(ts)-1 else tg + "#%d" % t), needs=["w%d_%d" % (j, i) for i in (range(0, 4) if h == 0 else range(3, 7))], sem=("W", j, t, h)))
    return L
def dpp(r, n): return O("v_add_f32_dpp v%d, v%d, v%d row_ror:%d row_mask:0xf bank_mask:0xf" % (r, r, r, n))
def ln_code1(li):
    S, Q = SS, SQ; R, N = SQ+1, SS+1
    RW = RAW[li]
    dst = [RW, RW+4, RW+8, RW+12] if li < 7 and li not in cfg.parkd else PARK
    p = lambda a: vr(a, 2)
    A = []
    for i in range(14):
        if i % 4 == 0: A.append(WAIT(v="x%d_%d" % (li, i//4)))
        if i == 12: A += stamp("r%d" % li)
        A += [O("v_lshlrev_b32 v%d, 16, v%d" % (U+2*i, RW+i)), O("v_and_b32 v%d, s%d, v%d" % (U+2*i+1, sMASK, RW+i))]
        if i == 1: A += [O("v_pk_add_f32 %s, %s, %s" % (p(S), p(U), p(U+2))), O("v_pk_mul_f32 %s, %s, %s" % (p(Q), p(U), p(U)))]
        if i >= 2:
            k = i-1
            if k >= 2: A.append(O("v_pk_add_f32 %s, %s, %s" % (p(S), p(S), p(U+2*k))))
            A.append(O("v_pk_fma_f32 %s, %s, %s, %s" % (p(Q), p(U+2*k), p(U+2*k), p(Q))))
    A += [O("v_pk_add_f32 %s, %s, %s" % (p(S), p(S), p(U+26))), O("v_pk_fma_f32 %s, %s, %s, %s" % (p(Q), p(U+26), p(U+26), p(Q)))]
    A += [O("v_add_f32 v%d, v%d, v%d" % (S, S, S+1)), O("v_add_f32 v%d, v%d, v%d" % (Q, Q, Q+1)), O("s_nop 0")]
    for n in (8, 4, 2, 1):
        A += [dpp(S, n), dpp(Q, n)] + ([O("s_nop 0")] if n != 1 else [])
    A += [O("v_mul_f32 v%d, 0x%08x, v%d" % (S, f2u(1.0/448), S)),
          O("v_mul_f32 v%d, v%d, v%d" % (N, S, S)),
          O("v_fma_f32 v%d, v%d, s%d, -v%d" % (Q, Q, sINV, N)),
          O("v_max_f32 v%d, 0, v%d" % (Q, Q)),
          O("v_add_f32 v%d, 0x%08x, v%d" % (Q, f2u(1e-5), Q)),
          O("v_rsq_f32 v%d, v%d" % (R, Q)),
          O("s_nop 0"),
          O("v_mul_f32_e64 v%d, -v%d, v%d" % (N, S, R))]
    if li == 0: A.append(WAIT(l="gbr"))
    for c in range(4):
        n = 4 if c < 3 else 2
        for i in range(4*c, 4*c+n):
            A.append(O("v_pk_fma_f32 %s, %s, %s, %s op_sel:[0,1,1] op_sel_hi:[1,1,1]" % (p(U+2*i), p(U+2*i), p(Q), p(S))))
        for i in range(4*c, 4*c+n):
            A.append(O("v_pk_fma_f32 %s, %s, %s, %s" % (p(U+2*i), p(U+2*i), p(GE+2*i), p(BE+2*i))))
        for i in range(n):
            A.append(O("v_cvt_pk_bf16_f32 v%d, v%d, v%d" % (dst[c]+i, U+8*c+2*i, U+8*c+2*i+1)))
    return A
def ln_code3(li):
    S, Q = SS, SQ; R, N = SQ+1, SS+1
    C = 136
    RW = RAW[li]
    dst = [RW, RW+4, RW+8, RW+12] if li < 7 and li not in cfg.parkd else PARK
    p = lambda a: vr(a, 2)
    sub = lambda i: O("v_pk_add_f32 %s, %s, %s op_sel_hi:[1,0] neg_lo:[0,1] neg_hi:[0,1]" % (p(U+2*i), p(U+2*i), p(C)))
    def acc(k):
        if k == 0: return [O("v_pk_mul_f32 %s, %s, %s" % (p(Q), p(U), p(U)))]
        return [O("v_pk_add_f32 %s, %s, %s" % (p(S), p(U) if k == 1 else p(S), p(U+2*k))), O("v_pk_fma_f32 %s, %s, %s, %s" % (p(Q), p(U+2*k), p(U+2*k), p(Q)))]
    A = []
    for i in range(14):
        if i % 4 == 0: A.append(WAIT(v="x%d_%d" % (li, i//4)))
        if i == 12: A += stamp("r%d" % li)
        A += [O("v_lshlrev_b32 v%d, 16, v%d" % (U+2*i, RW+i)), O("v_and_b32 v%d, s%d, v%d" % (U+2*i+1, sMASK, RW+i))]
        if i == 1: A.append(O("v_mov_b32_dpp v%d, v%d row_newbcast:0 row_mask:0xf bank_mask:0xf" % (C, U)))
        if i >= 2: A.append(sub(i-2))
        if i >= 3: A += acc(i-3)
    A += [sub(12)] + acc(11) + [sub(13)] + acc(12) + acc(13)
    A += [O("v_add_f32 v%d, v%d, v%d" % (S, S, S+1)), O("v_add_f32 v%d, v%d, v%d" % (Q, Q, Q+1)), O("s_nop 0")]
    for n in (8, 4, 2, 1):
        A += [dpp(S, n), dpp(Q, n)] + ([O("s_nop 0")] if n != 1 else [])
    A += [O("v_mul_f32 v%d, s%d, v%d" % (S, sINV, S)),
          O("v_mul_f32 v%d, s%d, v%d" % (Q, sINV, Q)),
          O("v_add_f32 v%d, v%d, v%d" % (N, C, S)),
          O("v_fma_f32 v%d, -v%d, v%d, v%d" % (Q, S, S, Q)),
          O("v_cvt_pk_bf16_f32 v%d, v%d, v%d" % (N, N, N)),
          O("v_max_f32 v%d, 0, v%d" % (Q, Q)),
          O("v_and_b32 v%d, s%d, v%d" % (N, sMASK, N)),
          O("v_add_f32 v%d, v%d, v%d" % (Q, EPS, Q)),
          O("v_rsq_f32 v%d, v%d" % (R, Q)),
          O("v_sub_f32 v%d, v%d, v%d" % (N, C, N)),
          O("v_mul_f32 v%d, v%d, v%d" % (N, N, R))]
    if li == 0: A.append(WAIT(l="gbr"))
    for c in range(4):
        n = 4 if c < 3 else 2
        for i in range(4*c, 4*c+n):
            A.append(O("v_pk_fma_f32 %s, %s, %s, %s op_sel:[0,1,1] op_sel_hi:[1,1,1]" % (p(U+2*i), p(U+2*i), p(Q), p(S))))
        for i in range(4*c, 4*c+n):
            A.append(O("v_pk_fma_f32 %s, %s, %s, %s" % (p(U+2*i), p(U+2*i), p(GE+2*i), p(BE+2*i))))
        for i in range(n):
            A.append(O("v_cvt_pk_bf16_f32 v%d, v%d, v%d" % (dst[c]+i, U+8*c+2*i, U+8*c+2*i+1)))
    return A
def ln_code(li):
    if not cfg.twopass: return ln_code1(li)
    if cfg.twopass == 3: return ln_code3(li)
    S, Q = SS, SQ; R, N = SQ+1, SS+1
    S2 = 136
    RW = RAW[li]
    dst = [RW, RW+4, RW+8, RW+12] if li < 7 and li not in cfg.parkd else PARK
    p = lambda a: vr(a, 2)
    A = []
    for i in range(14):
        if i % 4 == 0: A.append(WAIT(v="x%d_%d" % (li, i//4)))
        if i == 12: A += stamp("r%d" % li)
        A += [O("v_lshlrev_b32 v%d, 16, v%d" % (U+2*i, RW+i)), O("v_and_b32 v%d, s%d, v%d" % (U+2*i+1, sMASK, RW+i))]
        if i == 2: A.append(O("v_pk_add_f32 %s, %s, %s" % (p(S), p(U), p(U+2))))
        if i >= 3: A.append(O("v_pk_add_f32 %s, %s, %s" % (p(S), p(S), p(U+2*(i-1)))))
    A += [O("v_pk_add_f32 %s, %s, %s" % (p(S), p(S), p(U+26))), O("v_add_f32 v%d, v%d, v%d" % (S, S, S+1))]
    for n in (8, 4, 2, 1): A += [O("s_nop 1"), dpp(S, n)]
    A += [O("v_mul_f32 v%d, 0x%08x, v%d" % (S, f2u(-1.0/448), S))]
    sub = lambda i: O("v_pk_add_f32 %s, %s, %s op_sel_hi:[1,0]" % (p(U+2*i), p(U+2*i), p(S)))
    def sq(i):
        q = Q if i % 2 == 0 else S2
        if i < 2: return O("v_pk_mul_f32 %s, %s, %s" % (p(q), p(U+2*i), p(U+2*i)))
        return O("v_pk_fma_f32 %s, %s, %s, %s" % (p(q), p(U+2*i), p(U+2*i), p(q)))
    A += [sub(0), sub(1)]
    for i in range(2, 14): A += [sub(i), sq(i-2)]
    A += [sq(12), sq(13)]
    A += [O("v_cvt_pk_bf16_f32 v%d, v%d, v%d" % (N, S, S)), O("v_pk_add_f32 %s, %s, %s" % (p(Q), p(Q), p(S2))),
          O("v_and_b32 v%d, s%d, v%d" % (N, sMASK, N)), O("v_add_f32 v%d, v%d, v%d" % (Q, Q, Q+1)),
          O("v_sub_f32 v%d, v%d, v%d" % (N, N, S)), O("s_nop 0"), dpp(Q, 8)]
    for n in (4, 2, 1): A += [O("s_nop 1"), dpp(Q, n)]
    A += [O("v_fma_f32 v%d, v%d, s%d, v%d" % (Q, Q, sINV, EPS)),
          O("v_rsq_f32 v%d, v%d" % (R, Q)),
          O("s_nop 0"),
          O("v_mul_f32 v%d, v%d, v%d" % (N, N, R))]
    if li == 0: A.append(WAIT(l="gbr"))
    for c in range(4):
        n = 4 if c < 3 else 2
        for i in range(4*c, 4*c+n):
            A.append(O("v_pk_fma_f32 %s, %s, %s, %s op_sel:[0,1,1] op_sel_hi:[1,1,1]" % (p(U+2*i), p(U+2*i), p(Q), p(S))))
        for i in range(4*c, 4*c+n):
            A.append(O("v_pk_fma_f32 %s, %s, %s, %s" % (p(U+2*i), p(U+2*i), p(GE+2*i), p(BE+2*i))))
        for i in range(n):
            A.append(O("v_cvt_pk_bf16_f32 v%d, v%d, v%d" % (dst[c]+i, U+8*c+2*i, U+8*c+2*i+1)))
    return A
def lnwrites(i):
    lw, off = (LWY, YO + 256*i) if i < 4 else (LWZ, ZO + 3584*(i-4))
    src = [RAW[i], RAW[i]+4, RAW[i]+8, RAW[i]+12]; nd = []
    if i in cfg.parkd: src = PARK
    if i == 7: off = T7O; src = PARK; nd = ["tr12h0"]
    if i == 7 and cfg.w64:
        return [O("ds_write_b64 v%d, %s offset:%d" % (lw+c//2, vr(src[c//2]+2*(c & 1), 2), off+8*(c & 1)), cost=3, needs=nd) for c in range(7)]
    return [O("ds_write_b128 v%d, %s offset:%d" % (lw+c, vr(src[c], 4), off), cost=5, needs=nd) for c in range(3)] + [O("ds_write_b64 v%d, %s offset:%d" % (lw+3, vr(src[3], 2), off), cost=3, needs=nd)]
def xoff(tile, j):
    if tile == 7: return T7O + 256*j
    return YO + 1024*j + 256*tile if tile < 4 else ZO + 3584*(tile-4) + 256*j

def cost(op):
    if op.cost: return op.cost
    return {"V": 1, "S": 1, "W": 1, "D": 2, "G": 3, "K": 1, "L": 0}[op.kind]
def weave(mf, fixed, stream, g0, g1):
    n = len(mf)
    for ex in range(0, 400):
        extra = ex * 0.02
        gaps = [list(fixed.get(g, [])) for g in range(n)]
        si = 0; credit = 0.0
        for g in range(g0, g1+1):
            used = 0; hasV = False
            for o in gaps[g]:
                if o.kind == "V" and used < 1: used = 1
                used += cost(o); hasV |= o.kind == "V"
            credit += extra
            while si < len(stream):
                o = stream[si]
                if o.at is not None and o.at > g: break
                u = used
                if o.kind == "V" and u < 1: u = 1
                if o.kind in ("D", "G") and hasV: break
                u += cost(o)
                over = max(0, u-3.1) - max(0, used-3.1)
                if over > 0:
                    if used < 0.5: pass
                    elif credit >= over: credit -= over
                    else: break
                gaps[g].append(o); used = u; hasV |= o.kind == "V"; si += 1
        if si == len(stream): break
    else:
        raise Exception("weave failed")
    out = []; tot = 0
    for g in range(n):
        out.append(mf[g]); out += gaps[g]
        u = 0
        for o in gaps[g]:
            if o.kind == "V" and u < 1: u = 1
            u += cost(o)
        tot += max(4, 1+u)
    print("weave: n=%d extra=%.2f est cycles=%d (ideal %d)" % (n, extra, tot*4, n*16), file=sys.stderr)
    return out
def cvt(dst, a): return O("v_cvt_pk_bf16_f32 v%d, v%d, v%d" % (dst, a, a+1), sem=("C",))

def prologue():
    L = []
    a = lambda s, **k: L.append(O(s, **k))
    L += stamp("z")
    a("s_load_dwordx2 s[%d:%d], s[0:1], 0" % (SX, SX+1))
    a("s_load_dwordx4 s[4:7], s[0:1], 8")
    a("s_load_dwordx2 s[%d:%d], s[0:1], 24" % (SWd, SWd+1))
    a("s_load_dwordx2 s[%d:%d], s[0:1], 32" % (SO, SO+1))
    if cfg.stamps: a("s_load_dwordx2 s[48:49], s[0:1], 48")
    a("s_cmp_ge_u32 s2, 256", tag="scc:e"); a("s_cbranch_scc1 L_end", needs=["scc:e"])
    LN_ = 40
    a("v_lshrrev_b32 v43, 6, v0")
    a("v_and_b32 v%d, 63, v0" % LN_)
    a("v_readfirstlane_b32 s%d, v43" % sW)
    a("s_lshr_b32 s3, s2, 3")
    if cfg.cpf:
        nl = -(-cfg.cpl // (4*cfg.cpf))
        a("s_getpc_b64 s[12:13]")
        if " J " in cfg.early:
            a("L_pc:"); a("s_add_u32 s12, s12, L_main-L_pc", tag="scc:c"); a("s_addc_u32 s13, s13, 0", needs=["scc:c"])
        if cfg.hwid:
            assert cfg.cpf == 16
            a("s_getreg_b32 s11, hwreg(HW_REG_HW_ID, 8, 2)"); a("s_getreg_b32 s14, hwreg(HW_REG_HW_ID, 13, 2)")
            a("s_lshl2_add_u32 s11, s11, s14"); a("s_lshl2_add_u32 s11, s11, s%d" % sW)
        else:
            a("s_and_b32 s11, s3, %d" % (cfg.cpf-1)); a("s_lshl_b32 s11, s11, 2"); a("s_add_u32 s11, s11, s%d" % sW)
        a("s_mul_i32 s11, s11, %d" % (nl*128)); a("s_add_u32 s12, s12, s11", tag="scc:c"); a("s_addc_u32 s13, s13, 0", needs=["scc:c"])
        a("v_min_u32 v48, %d, v%d" % (nl-1, LN_)); a("v_lshlrev_b32 v48, 7, v48")
        a("v_mov_b32 v49, s13"); a("v_add_co_u32 v48, vcc, s12, v48")
    a("v_lshlrev_b32 v%d, 4, v%d" % (VL, LN_))
    a("s_mul_i32 s%d, s2, %d" % (sOO, 128*896))
    if cfg.cpf:
        a("v_addc_co_u32 v49, vcc, 0, v49, vcc")
        a("global_load_dword v44, v[48:49], off")
    a("s_mov_b32 s%d, %d" % (SX+2, NB)); a("s_mov_b32 s%d, 0x20000" % (SX+3))
    a("s_mul_i32 s%d, s%d, 28672" % (sXO, sW))
    a("s_add_u32 s%d, s%d, s%d" % (sXO, sXO, sOO))
    a("s_mul_i32 s%d, s%d, %d" % (sREG, sW, WREG))
    a("s_movk_i32 s%d, 896" % (SG+2)); a("s_mov_b32 s%d, 0x20000" % (SG+3))
    a("s_movk_i32 s10, 896"); a("s_mov_b32 s11, 0x20000")
    a("s_mov_b32 s%d, %d" % (SWd+2, 448*896)); a("s_mov_b32 s%d, 0x20000" % (SWd+3))
    a("v_and_b32 v41, 15, v%d" % LN_); a("v_lshrrev_b32 v42, 4, v%d" % LN_)
    a("v_mul_u32_u24 v45, 896, v42")
    a("v_lshl_add_u32 v%d, v41, 4, v45" % RA); a("v_lshl_add_u32 v%d, v41, 3, v45" % RB)
    a("s_waitcnt lgkmcnt(0)")
    return L
def gbload():
    return [O("s_mov_b32 s%d, s4" % SG), O("s_mov_b32 s%d, s5" % (SG+1)), O("s_mov_b32 s8, s6"), O("s_mov_b32 s9, s7"),
            O("buffer_load_dwordx4 v[136:139], v%d, s[%d:%d], 0 offen" % (VL, SG, SG+3)),
            O("buffer_load_dwordx4 v[140:143], v%d, s[8:11], 0 offen" % VL, tag="gb")]
def wsetup():
    L = []
    a = lambda s, **k: L.append(O(s, **k))
    LN_ = 40
    a("s_mul_i32 s%d, s3, 28672" % sWO)
    a("s_add_u32 s%d, s%d, s%d" % (sWO, sWO, sT2))
    a("s_add_u32 s%d, s%d, %d" % (sWLIM, sT2, 14*28672))
    a("s_lshr_b32 s14, s2, 3"); a("s_lshl_b32 s14, s14, 2"); a("s_add_u32 s14, s14, s%d" % sW); a("s_mul_i32 s14, s14, 3200")
    a("v_min_u32 v131, 24, v%d" % LN_); a("v_lshlrev_b32 v131, 7, v131")
    a("s_movk_i32 s12, 672"); a("s_movk_i32 s13, 896")
    a("v_mul_u32_u24 v45, 4682, v%d" % LN_)
    for i in range(7):
        const = (3072 if i >= 3 else 0) - (10752 if i >= 4 else 0)
        if i: a("v_add_u32 v46, %d, v45" % (64*i*4682)); a("v_lshrrev_b32 v46, 16, v46")
        else: a("v_lshrrev_b32 v46, 16, v45")
        a("v_and_b32 v47, 12, v46")
        a("v_mad_u32_u24 v%d, v46, s12, v%d" % (VO+i, VL))
        a("v_mad_u32_u24 v%d, v47, s13, v%d" % (VO+i, VO+i))
        if i == 3:
            a("v_lshrrev_b32 v47, 4, v46"); a("v_mul_u32_u24 v47, 10752, v47"); a("v_sub_u32 v%d, v%d, v47" % (VO+i, VO+i))
        if const: a("v_add_u32 v%d, %d, v%d" % (VO+i, const & 0xffffffff, VO+i))
    return L
FTAB = 0x1e
def addr_math(part):
    L = []
    a = lambda s, **k: L.append(O(s, **k))
    LN_, P_, RR, GA = 40, 41, 42, 52
    a("s_mov_b32 s%d, %d" % (SO+2, NB)); a("s_mov_b32 s%d, 0x20000" % (SO+3))
    a("s_mov_b32 s%d, 0xffff0000" % sMASK)
    a("s_and_b32 s15, s%d, 1" % sW)
    a("s_mov_b32 s%d, 0x%08x" % (sINV, f2u(1.0/448)))
    a("v_mov_b32 v%d, 0x%08x" % (EPS, f2u(1e-5)))
    a("s_sub_u32 s%d, s3, 14" % sT); a("s_min_u32 s3, s3, s%d" % sT)
    a("s_sub_u32 s%d, s3, 14" % sT); a("s_min_u32 s3, s3, s%d" % sT)
    a("s_mul_i32 s%d, s%d, 224" % (sT2, sW))
    a("v_lshlrev_b32 v%d, 4, v%d" % (GA, P_))
    a("v_cmp_eq_u32 vcc, 3, v%d" % RR)
    a("v_lshlrev_b32 v45, 5, v%d" % P_)
    a("v_mov_b32 v46, 0x100")
    a("v_cndmask_b32 v45, v%d, v45, vcc" % GA)
    a("v_cndmask_b32_e64 v46, v46, 16, vcc")
    a("v_lshl_add_u32 v50, v%d, 9, v45" % RR)
    a("v_add_u32 v50, s%d, v50" % sREG); a("v_add_u32 v%d, s%d, v%d" % (GA, sREG, GA))
    a("v_add_u32 v51, v50, v46")
    a("s_movk_i32 s12, 0x78")
    a("v_lshrrev_b32 v45, 2, v%d" % P_)
    a("v_lshlrev_b32 v46, 1, v45"); a("v_bfe_u32 v46, s12, v46, 2")
    a("v_xor_b32 v46, v46, v%d" % RR)
    a("v_lshrrev_b32 v47, 1, v46"); a("v_and_b32 v48, 3, v%d" % P_); a("v_xor_b32 v47, v47, v48")
    a("v_lshlrev_b32 v47, 4, v47"); a("v_lshl_add_u32 v47, v46, 6, v47")
    a("v_mul_u32_u24 v45, %d, v45" % WREG); a("v_add_u32 v%d, v45, v47" % XR)
    a("s_lshl_b32 s41, s%d, 1" % sW); a("s_lshr_b32 s41, s12, s41"); a("s_and_b32 s41, s41, 3")
    def common(qexpr_ops):
        for s in qexpr_ops: a(s)
        a("v_xor_b32 v46, s41, v46")
        a("v_lshrrev_b32 v47, 1, v46"); a("v_xor_b32 v47, v47, v%d" % RR); a("v_lshlrev_b32 v47, 4, v47")
        a("v_lshl_add_u32 v47, v46, 6, v47"); a("v_add_u32 v47, s%d, v47" % sREG)
    common(["v_and_b32 v46, 3, v%d" % P_])
    a("v_lshrrev_b32 v46, 2, v%d" % P_); a("v_subrev_u32 v46, s3, v46")
    for c in range(3):
        if c: a("v_add_u32 v46, 4, v46")
        a("v_add_u32 v48, 14, v46"); a("v_min_u32 v48, v48, v46")
        a("v_lshl_add_u32 v%d, v48, 10, v47" % (LWY+c)); a("v_lshl_add_u32 v%d, v48, 8, v47" % (LWZ+c))
    common(["v_bfe_u32 v46, v%d, 1, 2" % P_])
    a("v_and_b32 v46, 1, v%d" % P_); a("v_lshl_add_u32 v47, v46, 3, v47")
    a("v_lshrrev_b32 v46, 3, v%d" % P_); a("v_add_u32 v46, 12, v46"); a("v_subrev_u32 v46, s3, v46")
    a("v_add_u32 v48, 14, v46"); a("v_min_u32 v48, v48, v46")
    a("v_lshl_add_u32 v%d, v48, 10, v47" % (LWY+3)); a("v_lshl_add_u32 v%d, v48, 8, v47" % (LWZ+3))
    if part == 1: return L[:]
    del L[:]
    a("s_lshl_b32 s41, s15, 5")
    a("v_lshrrev_b32 v45, 2, v%d" % LN_); a("v_mul_u32_u24 v45, 224, v45"); a("v_and_b32 v46, 3, v%d" % LN_)
    a("v_add_u32 v45, s%d, v45" % sREG)
    a("v_lshl_add_u32 v%d, v46, %d, v45" % (TR1, 3 if cfg.nocf else 4)); a("v_add_u32 v%d, s41, v%d" % (TR1, TR1))
    a("s_mul_i32 s12, s15, 192"); a("s_sub_u32 s12, 192, s12")
    a("v_lshl_add_u32 v%d, v46, 3, v45" % TR2); a("v_add_u32 v%d, s12, v%d" % (TR2, TR2))
    return L
def late_addr():
    L = []
    a = lambda s, **k: L.append(O(s, **k))
    P_, RR = 16, 17
    ST, OS, OW, OR = 20, 21, 22, 16
    a("v_mbcnt_lo_u32_b32 v17, -1, 0"); a("v_mbcnt_hi_u32_b32 v17, -1, v17")
    a("v_and_b32 v16, 15, v17"); a("v_lshrrev_b32 v17, 4, v17")
    a("v_lshrrev_b32 v18, 2, v%d" % P_); a("v_and_b32 v19, 3, v%d" % P_); a("v_lshl_add_u32 v18, v18, 5, v19")
    a("v_mul_u32_u24 v18, 896, v18"); a("v_lshl_add_u32 v18, v%d, 4, v18" % RR)
    a("s_lshl_b32 s41, s15, 5"); a("s_add_u32 s12, s41, s%d" % sT2)
    a("v_add_u32 v%d, s12, v18" % ST)
    a("s_lshr_b32 s13, s%d, 1" % sW)
    a("s_mul_i32 s12, s13, 448"); a("s_mul_i32 s%d, s15, 3584" % sPAR); a("s_add_u32 s12, s12, 192")
    a("v_add_u32 v%d, s12, v18" % OS)
    a("v_lshlrev_b32 v18, 5, v%d" % P_)
    a("v_lshl_add_u32 v19, v%d, 3, v18" % RR); a("v_add_u32 v%d, s%d, v19" % (OW, sREG))
    a("v_and_b32 v19, 1, v%d" % RR); a("v_lshl_add_u32 v18, v19, 4, v18")
    a("v_lshrrev_b32 v19, 1, v%d" % RR); a("v_mul_u32_u24 v19, %d, v19" % WREG); a("v_add_u32 v18, v18, v19")
    a("s_mul_i32 s12, s13, %d" % (2*WREG)); a("s_lshl_b32 s42, s15, 9"); a("s_add_u32 s12, s12, s42")
    a("v_add_u32 v%d, s12, v18" % OR)
    return L
def gbtable():
    GA = 52
    L = [WAIT(v="gb")]
    for i in range(8):
        L += [O("v_lshlrev_b32 v%d, 16, v%d" % (56+2*i, 136+i)), O("v_and_b32 v%d, s%d, v%d" % (57+2*i, sMASK, 136+i))]
        if i == 3: L += [O("ds_write_b128 v50, v[56:59] offset:%d" % GTAB), O("ds_write_b128 v51, v[60:63] offset:%d" % GTAB)]
    L += [O("ds_write_b128 v50, v[64:67] offset:%d" % (GTAB+2048)), O("ds_write_b128 v51, v[68:71] offset:%d" % (GTAB+2048))]
    for v in range(7):
        L.append(O("ds_read_b128 %s, v%d offset:%d" % (vr(GE+4*v, 4), GA, GTAB+256*v)))
        L.append(O("ds_read_b128 %s, v%d offset:%d" % (vr(BE+4*v, 4), GA, GTAB+2048+256*v), tag="gbr" if v == 6 else None))
    return L

def half(n):
    j, x = divmod(n, 2)
    return j, cfg.horder.get(j, (0, 1))[x]
def build():
    wn[0] = 0; xn[0] = 0; stampn[0] = 0; del stampnames[:]; m0state[0] = None; TR2late[0] = False
    code = []; trace = []
    def emit(L): code.extend(L); trace.extend(L)
    emit(prologue())
    fb = [0]
    def xread(tile, j):
        return O("ds_read_b128 %s, v%d offset:%d" % (vr(F[fb[0] & 1], 4), XR, xoff(tile, j)), tag="xf", sem=("X", tile, j))
    pre = {}
    def units(seq, nxt):
        mf = []; fixed = {}; starts = []
        for k, u in enumerate(seq):
            tile, j = u[0], u[1]
            g = len(mf); starts.append(g)
            if (tile, j) in pre: cur = pre[(tile, j)]
            else: cur = F[fb[0] & 1]; fb[0] += 1
            n = seq[k+1] if k+1 < len(seq) else nxt
            acc = ACC[tile] if tile < 4 else ACC[2]
            ts = u[3] if len(u) > 3 else range(7)
            for t in ts: mf.append(mfma(acc, j, t, cur, None if len(u) < 3 or u[2] is None else u[2][t], tile))
            if n is not None and (n[0], n[1]) not in pre:
                fixed.setdefault(g, []).append(xread(n[0], n[1]))
                fixed.setdefault(len(mf)-1, []).append(WAIT(l="xf"))
        return mf, fixed, starts
    st8 = dict(ri=0, li=0, th=0, vis=0, wi=0)
    done = set(); waited = set()
    def simple(tok):
        if tok[0] in "xw" and "+" not in tok:
            out = []
            for o in (xdma if tok[0] == "x" else wdma)(int(tok[1:])):
                for tg in o.needs:
                    if tg.startswith("tr") and tg not in waited: waited.add(tg); out.append(WAIT(l=tg))
                out.append(o)
            return out
        if tok[0] == "t" and "+" not in tok:
            j, h = half(st8["th"]); st8["th"] += 1
            return [WAIT(v=wland(j, h))] + trreads(j, h)
        if tok == "y": return [WAIT(l=0)]
        if tok == "-": return []
        if tok == "|": return [O("@SPLIT", kind="L")]
        if tok == "J": return [O("    s_branch L_main", kind="L"), O(".p2align 12", kind="L"), O(".fill %d, 4, 0xbf810000" % (cfg.joff//4), kind="L"), O("L_main:")]
        if tok == "H":
            L = [O("    s_mov_b64 vcc, 1", kind="L")]
            for k in range(4):
                L += [O("@H%d    s_cmp_eq_u32 s%d, %d" % (k, sW, k), kind="L"), O("@H%d    s_cbranch_scc1 L_pad%d" % (k, k), kind="L")]
            return L + [O("L_padret:"), O("s_mov_b64 vcc, 0")]
        if tok == "I":
            return [O("s_lshl_b32 s43, s%d, 2" % sW), O("v_mov_b32 v124, s43"), O("v_mov_b32 v125, 0"), O("v_mov_b32 v126, 1"),
                    O("ds_write_b32 v124, v125 offset:%d" % FLAGO), WAIT(l=0), O("s_barrier")]
        if tok == "S":
            st8["fvis"] = st8["wi"]//4
            return [WAIT(l=0), O("ds_write_b32 v124, v126 offset:%d" % FLAGO)]
        if tok == "Q": return [O("ds_read_b128 v[140:143], v125 offset:%d" % FLAGO, tag="fl")]
        if tok == "K":
            st8["vis"] = st8["fvis"]
            return [O("L_chk:"), WAIT(l="fl"), O("v_and_b32 v140, v140, v141"), O("v_and_b32 v142, v142, v143"), O("v_and_b32 v140, v140, v142"), O("s_nop 0"),
                    O("v_readfirstlane_b32 s43, v140"), O("s_cmp_eq_u32 s43, 1", tag="scc:k"), O("s_cbranch_scc1 L_ok", needs=["scc:k"]),
                    O("    ds_read_b128 v[140:143], v125 offset:%d" % FLAGO, kind="L"), O("    s_waitcnt lgkmcnt(0)", kind="L"), O("    s_branch L_chk", kind="L"), O("L_ok:")]
        if tok == "Z":
            st8["vis"] = st8["wi"]//4
            return [WAIT(l=0), O("s_barrier")]
        if tok[0] == "d" and "+" not in tok:
            out = []
            for _ in range(int(tok[1:] or 1)):
                i, c = divmod(st8["wi"], 4); st8["wi"] += 1; assert i < st8["li"]
                out.append(lnwrites(i)[c])
            return out
        if tok[0] == "s" and "+" not in tok: return stamp(tok)
        if "+" in tok: return [o for t in tok.split("+") for o in simple(t)]
        if tok[0] == "F":
            j = int(tok[1:]); assert st8["vis"] >= 4; out = []
            for t in range(4):
                pre[(t, j)] = wf(j + cfg.fo, t)
                out.append(O("ds_read_b128 %s, v%d offset:%d" % (pre[(t, j)], XR, xoff(t, j)), sem=("X", t, j)))
            return out
        if tok == "P": return [O("buffer_load_dword v136, v131, s[%d:%d], s14 offen" % (SWd, SWd+3))]
        raise Exception(tok)
    nz = 0
    for tok in cfg.early.split():
        head, _, spr = tok.partition(":")
        spr = spr.split(",") if spr else []
        if tok == "G": emit(gbload())
        elif tok == "P": emit([O("buffer_load_dword v136, v131, s[%d:%d], s14 offen" % (SWd, SWd+3))])
        elif tok == "A": emit(addr_math(1))
        elif tok == "A2": emit(addr_math(2) + wsetup())
        elif tok == "B": emit(stamp("mb")); emit(gbtable())
        elif head == "C":
            li = st8["li"]
            emit(stamp("c%d" % li))
            A = ln_code(li); out = []
            items = []
            for k, t in enumerate(spr):
                t, _, pct = t.partition("@")
                nops = [i for i, o in enumerate(A) if o.text == "s_nop 0"]
                items.append((nops[int(pct[1:])] if pct[:1] == "n" else (int(pct)*len(A))//100 if pct else (k+1)*len(A)//(len(spr)+1), t))
            k = 0
            for idx, o in enumerate(A):
                ins = []
                while k < len(items) and idx >= items[k][0]: ins += simple(items[k][1]); k += 1
                out += ins
                if o.text == "s_nop 0" and ins: continue
                out.append(o)
            assert k == len(items)
            emit(out); emit(stamp("n%d" % li))
            st8["li"] += 1
        elif tok == "Z":
            bf = all((t, j) in done or (t, j) in pre for t in range(4) for j in range(2))
            emit([WAIT(l=0), O("s_barrier", tag="Bfree" if bf else "gbfree")]); st8["vis"] = st8["wi"]//4; st8["bf"] = bf
        elif head[0] == "U":
            tl, js = head[1:].split("@"); js = [int(x) for x in js.split("-")]
            seq = [(int(c), j) for j in range(js[0], js[-1]+1) for c in tl]
            for u in seq:
                assert u[0] < st8["vis"] and (u[1] == 0 or (u[0], u[1]-1) in done), tok
                done.add(u)
            emit(stamp("u%d" % js[0]))
            emit([xread(*seq[0]), WAIT(l=0)])
            mf, fixed, starts = units(seq, None)
            for k, u in enumerate(seq):
                if k and u[1] != seq[k-1][1]: fixed[starts[k]-1] = [WAIT(l=0)]
            segs = ",".join(spr).split("/"); n = 7*len(tl)
            for si in range(js[-1]-js[0]+1):
                stream = []
                for t in (segs[si].split(",") if si < len(segs) and segs[si] else []):
                    t, _, gp = t.partition("@")
                    ops = [o for o in simple(t)]
                    if ops and gp: ops[0].at = int(gp)
                    stream += ops
                emit(weave(mf[si*n:(si+1)*n], {g-si*n: v for g, v in fixed.items() if si*n <= g < (si+1)*n}, stream, 0, n-3))
        else: emit(simple(tok))
    assert st8["wi"] == 28 and st8["li"] == 8 and xn[0] == 32 and st8["vis"] >= 5
    th = st8["th"]
    emit(stamp("mp"))
    bfree = [st8.get("bf", False)]
    def canissue():
        n = wn[0]; rd = set(half(x) for x in range(th))
        while n < 98:
            j, ii = divmod(n, 7); i = worder(j)[ii]
            if any(x not in rd for x in wneeds(j, i)): break
            n += 1
        return n - wn[0]
    order = [3, 0, 1, 2]
    seq = [(t, j) for j in range(12) for t in order if (t, j) not in done]
    j0 = seq[0][1]
    if th < 2*j0+2:
        emit([WAIT(l=0)] + wdma(canissue()))
        while th < 2*j0+2:
            j, h = half(th); th += 1
            emit([WAIT(v=wland(j, h))] + trreads(j, h))
    emit(([xread(*seq[0])] if seq[0] not in pre else []) + [WAIT(l=0)])
    HOLD = {}
    OSL = {t: t for t in range(8)}
    S2 = [4, 5, 6, 7]
    nreg = len(seq)
    a3 = ACC[3]; a0 = ACC[0]
    tmpB = [T, T+4, T+8, T+12, a3, a3+8, a0]
    seq += [(t, 12) for t in order]
    mf, fixed, starts = units(seq, (3, 13))
    FB3 = [F[fb[0] & 1], F[(fb[0]+1) & 1], T+16]
    R13 = [(t, range(4)) for t in order] + [(t, range(4, 7)) for t in order]
    E = []
    for k, (tl, ts) in enumerate(R13):
        E.append(len(mf))
        for t in ts: mf.append(mfma(ACC[tl], 13, t, FB3[k % 3], tmpB[t], tl))
    E.append(len(mf))
    def xr3(k):
        tl, j = (R13[k][0], 13) if k < 8 else (S2[0], 0)
        return O("ds_read_b128 %s, v%d offset:%d" % (vr(FB3[k % 3] if k < 8 else FB3[0], 4), XR, xoff(tl, j)), tag="x3_%d" % k, sem=("X", tl, j))
    fixed.setdefault(E[0]-3, []).append(xr3(2))
    fixed.setdefault(E[0], []).append(xr3(1))
    for k in range(3, 8): fixed.setdefault(E[k-2], []).append(xr3(k))
    fixed.setdefault(E[7], []).append(xr3(8))
    for k in range(1, 9):
        if k != 2: fixed.setdefault(E[k]-1, []).append(WAIT(l="x3_%d" % k))
    first = {}
    for k, u in enumerate(seq): first.setdefault(u[1], starts[k])
    def used(g):
        u = 0
        for o in fixed.get(g, []):
            if o.kind == "V" and u < 1: u = 1
            u += cost(o)
        return u
    def fx(g, ops, front=False):
        if front: fixed[g] = ops + fixed.get(g, [])
        else: fixed.setdefault(g, []).extend(ops)
    put = fx
    def putdma(g, d, gprep):
        pend = []; firstd = True
        for o in d:
            if o.kind != "G":
                if o.text != "s_nop 0": pend.append(o)
                continue
            while used(g) > 0: g += 1
            if pend:
                if firstd and gprep is not None:
                    gp = gprep
                    for p in pend:
                        while used(gp) >= 3 and gp < g-1: gp += 1
                        put(gp, [p])
                else: put(g-1, pend)
            put(g, [o]); pend = []; g += 1; firstd = False
        return g
    def puttr(g, ops, gend):
        ops = list(ops); assert gend >= g
        load = {x: used(x) for x in range(g, gend+1)}; cnt = {x: 0 for x in load}
        for _ in ops:
            x = min(load, key=lambda x: (max(load[x]+2-3, 0), x)); load[x] += 2; cnt[x] += 1
        last = g
        for x in range(g, gend+1):
            for _ in range(cnt[x]): put(x, [ops.pop(0)]); last = x
        return last + 1
    d0 = wdma(canissue())
    emit([o for o in d0[:4] if o.kind != "G" and d0.index(o) < next((i for i, x in enumerate(d0) if x.kind == "G"), 0)])
    k0 = next((i for i, x in enumerate(d0) if x.kind == "G"), 0)
    g = putdma(1, d0[k0:], None)
    yprev = -4
    while th < 26:
        k, h = half(th); second = th % 2; th += 1
        yt = first[k] - cfg.lead - (0 if second else 14)
        if cfg.eager: yt = min(yt, yprev + cfg.eager)
        D = first[k] - 1 - (0 if second else cfg.minp)
        y = min(max(yt, g + 7 + cfg.lat), D)
        gs = max(min(g, y - cfg.lat - 4), y - 11, 0)
        while used(gs) > 0 and gs < y - cfg.lat - 6: gs += 1
        put(gs, [WAIT(v=wland(k, h))])
        ge = puttr(gs, trreads(k, h), y - cfg.lat)
        put(y, [WAIT(l="tr%dh%d" % (k, h))]); yprev = y
        if cfg.sbar and th % cfg.sbar == 0 and th < 24: put(y, [O("s_barrier")])
        if (k, h) == (12, 0): y12 = y
        nb = wn[0]
        g = putdma(max(g, y+1), wdma(canissue()), max(ge, g))
        if nb < 98 and wn[0] == 98: glast = g
    assert wn[0] == 98
    def putseq(gw, ops):
        for o in ops:
            while used(gw) + (1 if o.kind == "V" and used(gw) < 1 else 0) >= 3: gw += 1
            put(gw, [o])
        return gw
    gm = putseq(glast, late_addr())
    late_mov = [O("v_mov_b32 v%d, v%d" % x) for x in ((6, TR2), (ST, 20), (OS, 21), (OW, 22), (OR, 16))]
    if cfg.wlate:
        gw = max(E[0] - cfg.e13, gm + 1, first[12])
        put(gw, [WAIT(v=wland(13, 1))]); gw += 1
        for o in lnwrites(7):
            while used(gw) > 0: gw += 1
            put(gw, [o]); gw += 1
        gw = putseq(gw, late_mov)
    else:
        gw = max(y12 + 1, first[12] - cfg.gw)
        for o in lnwrites(7):
            while used(gw) > 0: gw += 1
            put(gw, [o]); gw += cfg.gwstep
        gw = putseq(max(gm, gw - cfg.gwstep + 1, first[12]), late_mov)
    TR2late[0] = True
    glate = gw
    for j in sorted(first):
        if first[j] > 0: put(first[j]-1, stamp("p%d" % j))
    def oddw(tile, src): return O("ds_write_b64 v%d, %s offset:%d" % (OW, vr(src, 2), ODDO + 512*OSL[tile]), cost=3, needs=["tr12h0", "tr12h1"], sem=("OW", tile))
    def store(tile, P):
        return [O("s_add_u32 s%d, s%d, %d" % (sO2, sOO, 3584*tile), sem=("SO", ("ST", tile))),
                O("buffer_store_dwordx4 %s, v%d, s[%d:%d], s%d offen offset:%d%s" % (vr(HOLD[tile][P], 4), ST, SO, SO+3, sO2, 64*P, cfg.lpol if tile == 7 and cfg.lpol is not None else cfg.spol), sem=("ST", tile, P))]
    gs = max(g, E[0] - cfg.e13, gw + 1)
    put(gs, [WAIT(v=wland(13, 0))])
    g1 = puttr(gs, trreads(13, 0, range(4), T, "ta0"), min(gs+4, (gs+E[0]-4)//2))
    put(g1, [WAIT(v=wland(13, 1))])
    puttr(g1, trreads(13, 1, range(4), T, "ta1"), max(g1+1, E[0]-4))
    put(E[0]-1, [WAIT(l="ta1")])
    def pair_inplace(tile, P):
        x0, x1 = ACC[tile]+8*P, ACC[tile]+8*P+4
        return [cvt(x1+3, x1+2), cvt(x1+2, x1), cvt(x1, x0), cvt(x1+1, x0+2)]
    for tl in (3, 0, 1): HOLD[tl] = [ACC[tl]+4, ACC[tl]+12, ACC[tl]+20]
    def odd_inplace(tile):
        x = ACC[tile]+24
        return [cvt(x, x), cvt(x+1, x+2)], oddw(tile, x)
    put(E[0]+2, [O("s_nop 1")])
    p = pair_inplace(3, 0); put(E[1]+1, p[:2]); put(E[1]+2, p[2:])
    p = pair_inplace(3, 1); put(E[1]+3, p[:2]); put(E[2]+1, p[2:])
    p = pair_inplace(0, 0); put(E[2]+2, p)
    tb = lambda t: trreads(13, 0, [t], tmpB[t], "tb%d0" % t) + trreads(13, 1, [t], tmpB[t], "tb%d1" % t)
    put(E[2], tb(4)); put(E[2]+3, tb(5)); put(E[3]+1, tb(6))
    put(E[4]-1, [WAIT(l="tb51")]); put(E[4]+1, [WAIT(l="tb61")])
    DEST = {2: T, 4: ACC[1], 5: ACC[0], 6: ACC[1], 7: ACC[0]}
    for tl, b in DEST.items(): HOLD[tl] = [b, b+8, b+16]
    HOLD[2] = [T, T+4, T+8]
    def oddpos(tile): return T+12 if tile == 2 else DEST[tile]+26
    def pkcvt(tile, t):
        d = oddpos(tile) if t == 6 else HOLD[tile][t >> 1] + 2*(t & 1)
        return [cvt(d, ACC[2]+4*t), cvt(d+1, ACC[2]+4*t+2)]
    put(E[5]+1, pkcvt(2, 0)); put(E[5]+2, pkcvt(2, 1)); put(E[6]+1, pkcvt(2, 2)); put(E[6]+2, pkcvt(2, 3))
    sx = store(3, 0); put(E[4], sx[:1]); put(E[4]+2, sx[1:], front=True)
    sx = store(3, 1); put(E[7]+1, sx[1:], front=True)
    for k in range(4): put(first[12] + 7*k - 1, stamp("eu%d" % k))
    for k in range(9): put(E[k]-1, stamp("e%d" % k))
    emit(weave(mf, fixed, [], 0, 0))
    emit(stamp("mq"))
    plan = cfg.plan or [[(0, 0), (0, 1), (0, 2), (1, 0), (1, 1), (1, 2)], [(2, 0), (2, 1), "o", (2, 2), (4, 0), "o", (4, 1)],
                        [(4, 2), (5, 0), (5, 1), (5, 2)], [(6, 0), (6, 1), (6, 2), "o"]]
    om = [0]
    OT = T+16
    PAIR = [(0, 1), (2, 3), (4, 5), (6, 7)]
    def oddso(m):
        t0, t1 = PAIR[m]
        if t1 - t0 == 1: return [O("s_add_u32 s%d, s%d, %d" % (sO2, sPAR, 3584*t0), sem=("SO", None)), O("s_add_u32 s%d, s%d, s%d" % (sO2, sO2, sOO), sem=("SO", ("OS", m)))]
        return [O("s_mul_i32 s%d, s%d, %d" % (sO2, sPAR, t1-t0), sem=("SO", None)), O("s_add_u32 s%d, s%d, s%d" % (sO2, sO2, sOO)), O("s_add_u32 s%d, s%d, %d" % (sO2, sO2, 3584*t0), sem=("SO", ("OS", m)))]
    for bi, tile in enumerate(S2):
        prev = 2 if bi == 0 else S2[bi-1]
        mf, fixed, _ = units([(tile, j) for j in range(14 if bi < 3 else 14 - cfg.nl)], (S2[bi+1], 0) if bi < 3 else None)
        if bi == 0:
            fx(0, [O("s_nop 0")]); fx(1, pair_inplace(3, 2)[:2]); fx(2, pkcvt(2, 4)); fx(3, pkcvt(2, 5)); fx(4, pkcvt(2, 6)); fx(5, pair_inplace(3, 2)[2:])
            fx(8, [oddw(2, oddpos(2))], front=True)
            c, o = odd_inplace(3); fx(9, c); fx(10, [o], front=True)
            sx = store(3, 2); fx(11, sx[1:], front=True)
            gq = 15
            for tl, Ps in ((0, (1, 2)), (1, (0, 1, 2))):
                for P in Ps:
                    p = pair_inplace(tl, P); fx(gq, p[:2]); fx(gq+1, p[2:]); gq += 2
                    if gq % 7 == 0: gq += 1
                c, o = odd_inplace(tl); fx(gq, c); fx(gq+1 + ((gq+1) % 7 == 0), [o], front=True); gq += 3
                if gq % 7 == 0: gq += 1
        else:
            for t in range(3, 7): fx(t-2, pkcvt(prev, t))
            fx(8, [oddw(prev, oddpos(prev))], front=True)
        items = plan[bi]; n = len(items)
        lo = 36 if bi == 0 else 10
        for k, it in enumerate(items):
            g = lo + ((88 if bi < 3 else cfg.lhi)-lo)*k//n
            while g % 7 in (0, 6, 1, 2): g += 1
            if it == "o":
                m = om[0]; om[0] += 1
                gr = g - 9
                while gr % 7 in (0, 6): gr -= 1
                fx(gr, [O("ds_read_b128 %s, v%d offset:%d" % (vr(OT, 4), OR, ODDO + 1024*m), needs=["bar%d" % (0 if m < 2 else 2)], tag="od")], front=True)
                fx(g-2, oddso(m), front=True); fx(g-1, [WAIT(l="od")], front=True)
                fx(g, [O("buffer_store_dwordx4 %s, v%d, s[%d:%d], s%d offen%s" % (vr(OT, 4), OS, SO, SO+3, sO2, cfg.spol), sem=("OS", m))], front=True)
            else:
                s = store(*it); fx(g-1, s[:1], front=True); fx(g, s[1:], front=True)
        if bi == 0: puttr(50, trreads(13, 0) + trreads(13, 1), 82)
        if bi in (0, 2):
            fixed[90] = [WAIT(l=0)]
            fx(91, [O("s_barrier", tag="bar%d" % bi)], front=True)
        if bi < 3:
            fx(92, [O("s_nop 0")]); fx(93, [O("s_nop 0")]); fx(94, [O("s_nop 1")])
            for t in range(3): fx(95+t, pkcvt(tile, t))
        else:
            NL = cfg.nl; j0 = 14 - NL; G0 = 7*j0
            XF = [T, T+4, T+8, T+12, ACC[0]+4, ACC[0]+12, ACC[0]+20, ACC[1]+4, ACC[1]+12, ACC[1]+20][:NL]
            rd = [O("ds_read_b128 %s, v%d offset:%d" % (vr(XF[k], 4), XR, xoff(tile, j0+k)), tag="xl", sem=("X", tile, j0+k)) for k in range(NL)]
            puttr(max(5, G0 - 2*NL - 6), rd, G0 - 5)
            fx(G0-1, [WAIT(l="xl")])
            for ts in ([6], [0, 1], [2, 3], [4, 5]):
                for k in range(NL):
                    for t in ts: mf.append(mfma(ACC[2], j0+k, t, XF[k], None, tile))
            a6 = G0 + NL; a0_ = a6 + 2*NL; a1_ = a0_ + 2*NL
            fx(a6, [O("s_nop 1")]); fx(a6+1, [O("s_nop 1")]); fx(a6+2, [O("s_nop 0")] + pkcvt(tile, 6)); fx(a6+3, [oddw(tile, oddpos(tile))])
            fx(a6+6, [WAIT(l=0), O("s_barrier")]); fx(a6+7, [O("ds_read_b128 %s, v%d offset:%d" % (vr(OT, 4), OR, ODDO + 3072), tag="od")])
            fx(a0_, [O("s_nop 1")]); fx(a0_+1, [O("s_nop 1")]); fx(a0_+2, [O("s_nop 0")] + pkcvt(tile, 0)); fx(a0_+3, store(tile, 0)[:1] + pkcvt(tile, 1)); fx(a0_+4, store(tile, 0)[1:])
            go = a0_+5 if NL < 8 else a6+13
            fx(go, oddso(3)); fx(go+1, [WAIT(l="od")])
            fx(go+2, [O("buffer_store_dwordx4 %s, v%d, s[%d:%d], s%d offen%s" % (vr(OT, 4), OS, SO, SO+3, sO2, cfg.spol), sem=("OS", 3))])
            fx(a1_, [O("s_nop 1")]); fx(a1_+1, [O("s_nop 1")]); fx(a1_+2, [O("s_nop 0")] + pkcvt(tile, 2)); fx(a1_+3, store(tile, 1)[:1] + pkcvt(tile, 3)); fx(a1_+4, store(tile, 1)[1:])
        if bi == 0:
            for k in (13, 27, 41, 55, 69, 83, 89, 92): fx(k, stamp("eb%d" % k))
        if bi == 3:
            for k in (13, 27, 41, 55, 69, 75, 79, 81, 85, 89, 93): fx(k, stamp("lb%d" % k))
        emit(weave(mf, fixed, [], 0, 0))
        emit(stamp("m%d" % (bi+4)))
    lt = S2[3]
    Tl = [O("s_nop 6")] + pkcvt(lt, 4) + pkcvt(lt, 5) + store(lt, 2)[1:]
    assert om[0] == 3
    emit(Tl)
    if cfg.stamps:
        emit(stamp("z1")); emit([O("s_waitcnt vmcnt(0)")]); emit(stamp("z2"))
        S = [O("s_waitcnt lgkmcnt(0)"), O("s_mov_b32 s50, 0x10000000"), O("s_mov_b32 s51, 0x20000"), O("v_mov_b32 v40, 0")]
        for i in range(stampn[0]): S.append(O("v_writelane_b32 v40, s%d, %d" % (52+2*i, i)))
        S += [O("s_lshl_b32 s3, s2, 2"), O("s_add_u32 s3, s3, s%d" % sW), O("s_lshl_b32 s3, s3, 8"),
              O("v_mbcnt_lo_u32_b32 v41, -1, 0"), O("v_mbcnt_hi_u32_b32 v41, -1, v41"), O("v_lshlrev_b32 v41, 2, v41"),
              O("buffer_store_dword v40, v41, s[48:51], s3 offen sc1")]
        emit(S)
    emit([O("L_end:"), O("s_endpgm")])
    errs = resolve_and_verify(trace) + semcheck(trace)
    for e in errs[:40]: print("ERR", e, file=sys.stderr)
    if errs: raise Exception("verify failed: %d" % len(errs))
    return code

def render(code, kname):
    hdr = open('cdna_kernels/%s.s.ref' % NAME).read().split('\n')
    L = [l for l in hdr if l.startswith(';') and '@launch' not in l]
    L += ["; @launch grid=(256,1,1) block=(256,1,1) lds=163840", '.amdgcn_target "amdgcn-amd-amdhsa--gfx950"', ".text",
          ".globl %s" % kname, ".p2align 8", ".type %s,@function" % kname, "%s:" % kname]
    L += code
    if cfg.cpf: L += [".fill 1600, 4, 0xbf810000"]
    L += ['.section .rodata,"a"', ".p2align 6", ".amdhsa_kernel %s" % kname, "  .amdhsa_next_free_vgpr 512", "  .amdhsa_next_free_sgpr 102",
          "  .amdhsa_accum_offset 256", "  .amdhsa_group_segment_fixed_size 0", "  .amdhsa_kernarg_size 56", "  .amdhsa_user_sgpr_count 2",
          "  .amdhsa_user_sgpr_kernarg_segment_ptr 1", "  .amdhsa_system_sgpr_workgroup_id_x 1", ".end_amdhsa_kernel"]
    return '\n'.join(L) + '\n'
def addrs(lines, kname):
    import subprocess
    lab = []
    for i, l in enumerate(lines): lab += ["Lq%d:" % i, l]
    open("_a.s", "w").write(render(lab, kname))
    subprocess.run(["clang", "-x", "assembler", "-target", "amdgcn-amd-amdhsa", "-mcpu=gfx950", "-c", "_a.s", "-o", "_a.o"], check=True)
    out = subprocess.run(["llvm-objdump", "-t", "_a.o"], capture_output=True, text=True).stdout
    A = {}
    for l in out.splitlines():
        p = l.split()
        if p and p[-1].startswith("Lq"): A[int(p[-1][2:])] = int(p[0], 16)
    return [A[i] for i in range(len(lines))]
def write(path, kname=NAME+"_kernel"):
    code = build()
    if cfg.nostore: code = [o for o in code if not (o.sem and o.sem[0] in ("ST", "OS"))]
    lines = [("" if o.kind == "L" else "    ") + o.render() for o in code]
    if cfg.alt:
        import re as _re
        global stampnames
        names1 = list(stampnames)
        save = {k: getattr(cfg, k) for k in cfg.alt}
        for k, v in cfg.alt.items(): setattr(cfg, k, v)
        l2 = [("" if o.kind == "L" else "    ") + o.render() for o in build()]
        for k, v in save.items(): setattr(cfg, k, v)
        assert names1 == stampnames, (names1, stampnames)
        i = lines.index("@SPLIT"); assert lines[:i+1] == l2[:i+1]
        l2 = [_re.sub(r"\bL_(chk|ok|end)\b", r"L_\g<1>2", x) for x in l2[i+1:]]
        lines = lines[:i] + ["    s_bitcmp1_b32 s2, %d" % cfg.gbit, "    s_cbranch_scc1 L_alt"] + lines[i+1:] + [".p2align 6", "L_alt:"] + l2
    lines = [l for l in lines if l != "@SPLIT"]
    if any(l.startswith("@H") for l in lines):
        ret = lines.index("L_padret:")
        npad = 0
        for k in range(4):
            tmp = [(l[3:] if l.startswith("@H") else l) for l in lines] + ["L_pad%d:" % x for x in range(npad, 4)]
            A = addrs(tmp, kname)
            lastpad = max([ret] + [i for i, l in enumerate(lines) if l.startswith("L_pad") and l != "L_padret:"])
            bnd = (A[lastpad]//4096 + 1 + (cfg.padskip if k == 0 else 0))*4096
            i = next((i for i in range(lastpad+1, len(lines)) if A[i] >= bnd + cfg.padoff and "v_mfma" in lines[i-1] and "v_mfma" in lines[i]), None)
            j = next((i for i in range(lastpad+1, len(lines)) if A[i] >= bnd), None)
            if j is None: break
            if i is None or A[i] >= bnd + 56: i = next(i for i in range(j, len(lines)) if not lines[i].lstrip().startswith(("s_cselect", "s_cbranch", "L_", ".")))
            lines[i:i] = ["L_pad%d:" % k, "    s_cbranch_vccnz L_padret"]; npad += 1
        lines = [(l[3:] if int(l[2]) < npad else "    s_nop 0") if l.startswith("@H") else l for l in lines]
        print("pads:", npad, file=sys.stderr)
    open(path, 'w').write(render(lines, kname))
if __name__ == "__main__":
    write("v11.s")
```

```python
import sys, struct
from gen_core import *
NAME = "standalone__layernorm_linear__sampling"
def f2u(f): return struct.unpack('<I', struct.pack('<f', f))[0]
NB = 32768*896

class Cfg:
    stamps = False
    sites = "m"
    early = "G x12 A A2 x4 B C:x2@60 x2 d4 C:x2@60 x2 d4 C:x2@60 x2 d4 C:x2@60 x2 d4 C:w1@60 w2 d4 C:w1@60 w2 d4 Z C:w1@60 w2 d4 C:w3@50,w2@60,ta@70,tb@85"
    imgoff = [0, 7168]*8
    worder = {}
    horder = {}
    xpol = " nt"
    spol = " sc1"
    cpf = 4
    plan = None
    cyc = False
    inw = True
    pace = 14
    endv = 2
    fo = 3
    lead = 7
    e13 = 14
    bars = (0, 2)
    hwid = True
    twopass = True
    alt = None
    gbit = 7
    cpl = 168
    sbar = 0
    joff = 0
    padskip = 0
    padoff = 0
    parkd = ()
    eager = 0
    nocf = False
    nl = 4
    lhi = 62
    lpol = None
    w64 = False
    wlate = False
    nostore = False
    nobar2 = False
    gw = 8
    gwstep = 2
    minp = 12
    lat = 3
    tro = 5
    ybar = 4
    nobar = False
    ywr = 8
    trn = 6
cfg = Cfg()

XR, ST, OW, OR, OS, TR1, TR2 = 0, 20, 22, 16, 21, 5, 23
F = [8, 12]
T = 16
VO = 16
ACC = {0: 36, 1: 64, 2: 92, 3: 228}
LWY, LWZ, RA, RB, VL, SS, SQ = 120, 1, 128, 129, 130, 132, 134
PARK = [24, 28, 32, 6]
U = 144; GE = 172; BE = 200; EPS = 127
RAW = [228, 242, 106, 92, 78, 64, 50, 36]
sW, sMASK, sWO, sWLIM, sREG, sXO, sOO, sT, sRET, sT2, sO2, sPAR, sINV = 32, 33, 34, 35, 36, 37, 38, 39, 40, 45, 46, 47, 44
SX, SG, SWd, SO = 16, 20, 24, 28
WREG = 40960
IMG = {"A": 0, "B": 7168}
YO = 15872; ZO = YO + 14336
T7O = 7168; ODDO = 10752; FLAGO = 15616
GTAB = 7168
def wf(j, t, half=None, tmp=None):
    f = 7*{13: 0, 14: 13}.get(j, j) + t
    p, r = ("a", 4*f) if f < 64 else ("v", 120 + 4*(f-64))
    if tmp is not None: p, r = "v", tmp
    if half is None: return "%s[%d:%d]" % (p, r, r+3)
    return "%s[%d:%d]" % (p, r+2*half, r+2*half+1)
def vr(a, n): return "v[%d:%d]" % (a, a+n-1)
O = Op
stampn = [0]; stampnames = []
def stamp(site="m"):
    if not cfg.stamps or site[0] not in cfg.sites + "z": return []
    i = stampn[0]; stampn[0] += 1; stampnames.append(site)
    assert 52+2*i+1 <= 101
    return [O("%s s[%d:%d]" % ("s_memtime" if cfg.cyc else "s_memrealtime", 52+2*i, 53+2*i), kind="S", cost=0.01)]
def mfma(acc, j, t, fb, tmp=None, tile=None):
    a = vr(acc+4*t, 4)
    if tile >= 4: return O("v_mfma_f32_16x16x32_bf16 %s, %s, %s, %s" % (a, wf(j, t), vr(fb, 4), "0" if j == 1 else a), sem=("M", tile, j % 14, t))
    return O("v_mfma_f32_16x16x32_bf16 %s, %s, %s, %s" % (a, wf(j, t, None, tmp), fb if isinstance(fb, str) else vr(fb, 4), "0" if j == 0 else a), sem=("M", tile, j, t))
m0state = [None]; TR2late = [False]
def setm0(off):
    if m0state[0] == off: return []
    m0state[0] = off
    return [O("s_add_u32 m0, s%d, %d" % (sREG, off))]
xn = [0]; wn = [0]
def xdma(n):
    L = []
    for _ in range(n):
        tl, c = divmod(xn[0], 4); xn[0] += 1
        if c == 0 and tl > 0: L.append(O("s_add_u32 s%d, s%d, 3584" % (sXO, sXO)))
        if c < 3: L.append(O("buffer_load_dwordx4 %s, v%d, s[%d:%d], s%d offen offset:%d%s" % (vr(RAW[tl]+4*c, 4), RA, SX, SX+3, sXO, 256*c, cfg.xpol), tag="x%d_%d" % (tl, c)))
        else: L.append(O("buffer_load_dwordx2 %s, v%d, s[%d:%d], s%d offen offset:768%s" % (vr(RAW[tl]+12, 2), RB, SX, SX+3, sXO, cfg.xpol), tag="x%d_%d" % (tl, c)))
    return L
def ioff(j): return cfg.imgoff[j]
def worder(j): return cfg.worder.get(j, list(range(7)))
def wland(j, h):
    o = worder(j); mem = range(0, 4) if h == 0 else range(3, 7)
    return "w%d_%d" % (j, max(mem, key=o.index))
def wneeds(j, i):
    a = ioff(j) + 1024*i; needs = []
    for k in range(j):
        for h in range(2):
            lo = ioff(k) + 3584*h
            if a < lo + 3584 and lo < a + 1024: needs.append((k, h))
    return needs
def wdma(n):
    L = []
    for _ in range(n):
        j, ii = divmod(wn[0], 7); wn[0] += 1
        i = worder(j)[ii]
        m0 = ioff(j) + (3072 if i >= 3 else 0)
        pre = setm0(m0)
        if ii == 0 and j > 0:
            pre.append(O("s_add_u32 s%d, s%d, 28672" % (sWO, sWO), sem=("ADV", "w", 0.5)))
            pre.append(O("s_cmp_ge_u32 s%d, s%d" % (sWO, sWLIM), tag="scc:w"))
            pre.append(O("s_cselect_b32 s%d, s%d, s%d" % (sWO, sT2, sWO), needs=["scc:w"], sem=("ADV", "w", 0.5)))
        if len(pre) == 1: pre.append(O("s_nop 0"))
        L += pre
        needs = ["tr%dh%d" % x for x in wneeds(j, i)]
        a = ioff(j) + 1024*i
        if GTAB <= a < GTAB + 4096: needs.append("gbr")
        L.append(O("buffer_load_dwordx4 v%d, s[%d:%d], s%d offen offset:%d lds" % (VO+i, SWd, SWd+3, sWO, 1024*(i-3 if i >= 3 else i)), tag="w%d_%d" % (j, i), needs=needs, sem=("DM", m0, "w", j)))
    return L
def trreads(j, h, ts=range(7), tmp=None, tag=None):
    L = []; ts = list(ts)
    for k, t in enumerate(ts):
        off = ioff(j) + h*3584 + ((32*t if cfg.nocf else 64*(t >> 1) + 8*(t & 1)) if t < 6 else 0)
        tg = tag or "tr%dh%d" % (j, h)
        L.append(O("ds_read_b64_tr_b16 %s, v%d offset:%d" % (wf(j, t, h, None if tmp is None else tmp+4*k), TR1 if t < 6 else (6 if TR2late[0] else TR2), off),
                   tag=(tg if k == len(ts)-1 else tg + "#%d" % t), needs=["w%d_%d" % (j, i) for i in (range(0, 4) if h == 0 else range(3, 7))], sem=("W", j % 14, t, h)))
    return L
def dpp(r, n): return O("v_add_f32_dpp v%d, v%d, v%d row_ror:%d row_mask:0xf bank_mask:0xf" % (r, r, r, n))
def ln_code1(li):
    S, Q = SS, SQ; R, N = SQ+1, SS+1
    RW = RAW[li]
    dst = [RW, RW+4, RW+8, RW+12] if li < 7 and li not in cfg.parkd else PARK
    p = lambda a: vr(a, 2)
    A = []
    for i in range(14):
        if i % 4 == 0: A.append(WAIT(v="x%d_%d" % (li, i//4)))
        if i == 12: A += stamp("r%d" % li)
        A += [O("v_lshlrev_b32 v%d, 16, v%d" % (U+2*i, RW+i)), O("v_and_b32 v%d, s%d, v%d" % (U+2*i+1, sMASK, RW+i))]
        if i == 1: A += [O("v_pk_add_f32 %s, %s, %s" % (p(S), p(U), p(U+2))), O("v_pk_mul_f32 %s, %s, %s" % (p(Q), p(U), p(U)))]
        if i >= 2:
            k = i-1
            if k >= 2: A.append(O("v_pk_add_f32 %s, %s, %s" % (p(S), p(S), p(U+2*k))))
            A.append(O("v_pk_fma_f32 %s, %s, %s, %s" % (p(Q), p(U+2*k), p(U+2*k), p(Q))))
    A += [O("v_pk_add_f32 %s, %s, %s" % (p(S), p(S), p(U+26))), O("v_pk_fma_f32 %s, %s, %s, %s" % (p(Q), p(U+26), p(U+26), p(Q)))]
    A += [O("v_add_f32 v%d, v%d, v%d" % (S, S, S+1)), O("v_add_f32 v%d, v%d, v%d" % (Q, Q, Q+1)), O("s_nop 0")]
    for n in (8, 4, 2, 1):
        A += [dpp(S, n), dpp(Q, n)] + ([O("s_nop 0")] if n != 1 else [])
    A += [O("v_mul_f32 v%d, 0x%08x, v%d" % (S, f2u(1.0/448), S)),
          O("v_mul_f32 v%d, v%d, v%d" % (N, S, S)),
          O("v_fma_f32 v%d, v%d, s%d, -v%d" % (Q, Q, sINV, N)),
          O("v_max_f32 v%d, 0, v%d" % (Q, Q)),
          O("v_add_f32 v%d, 0x%08x, v%d" % (Q, f2u(1e-5), Q)),
          O("v_rsq_f32 v%d, v%d" % (R, Q)),
          O("s_nop 0"),
          O("v_mul_f32_e64 v%d, -v%d, v%d" % (N, S, R))]
    if li == 0: A.append(WAIT(l="gbr"))
    for c in range(4):
        n = 4 if c < 3 else 2
        for i in range(4*c, 4*c+n):
            A.append(O("v_pk_fma_f32 %s, %s, %s, %s op_sel:[0,1,1] op_sel_hi:[1,1,1]" % (p(U+2*i), p(U+2*i), p(Q), p(S))))
        for i in range(4*c, 4*c+n):
            A.append(O("v_pk_fma_f32 %s, %s, %s, %s" % (p(U+2*i), p(U+2*i), p(GE+2*i), p(BE+2*i))))
        for i in range(n):
            A.append(O("v_cvt_pk_bf16_f32 v%d, v%d, v%d" % (dst[c]+i, U+8*c+2*i, U+8*c+2*i+1)))
    return A
def ln_code3(li):
    S, Q = SS, SQ; R, N = SQ+1, SS+1
    C = 136
    RW = RAW[li]
    dst = [RW, RW+4, RW+8, RW+12] if li < 7 and li not in cfg.parkd else PARK
    p = lambda a: vr(a, 2)
    sub = lambda i: O("v_pk_add_f32 %s, %s, %s op_sel_hi:[1,0] neg_lo:[0,1] neg_hi:[0,1]" % (p(U+2*i), p(U+2*i), p(C)))
    def acc(k):
        if k == 0: return [O("v_pk_mul_f32 %s, %s, %s" % (p(Q), p(U), p(U)))]
        return [O("v_pk_add_f32 %s, %s, %s" % (p(S), p(U) if k == 1 else p(S), p(U+2*k))), O("v_pk_fma_f32 %s, %s, %s, %s" % (p(Q), p(U+2*k), p(U+2*k), p(Q)))]
    A = []
    for i in range(14):
        if i % 4 == 0: A.append(WAIT(v="x%d_%d" % (li, i//4)))
        if i == 12: A += stamp("r%d" % li)
        A += [O("v_lshlrev_b32 v%d, 16, v%d" % (U+2*i, RW+i)), O("v_and_b32 v%d, s%d, v%d" % (U+2*i+1, sMASK, RW+i))]
        if i == 1: A.append(O("v_mov_b32_dpp v%d, v%d row_newbcast:0 row_mask:0xf bank_mask:0xf" % (C, U)))
        if i >= 2: A.append(sub(i-2))
        if i >= 3: A += acc(i-3)
    A += [sub(12)] + acc(11) + [sub(13)] + acc(12) + acc(13)
    A += [O("v_add_f32 v%d, v%d, v%d" % (S, S, S+1)), O("v_add_f32 v%d, v%d, v%d" % (Q, Q, Q+1)), O("s_nop 0")]
    for n in (8, 4, 2, 1):
        A += [dpp(S, n), dpp(Q, n)] + ([O("s_nop 0")] if n != 1 else [])
    A += [O("v_mul_f32 v%d, s%d, v%d" % (S, sINV, S)),
          O("v_mul_f32 v%d, s%d, v%d" % (Q, sINV, Q)),
          O("v_add_f32 v%d, v%d, v%d" % (N, C, S)),
          O("v_fma_f32 v%d, -v%d, v%d, v%d" % (Q, S, S, Q)),
          O("v_cvt_pk_bf16_f32 v%d, v%d, v%d" % (N, N, N)),
          O("v_max_f32 v%d, 0, v%d" % (Q, Q)),
          O("v_and_b32 v%d, s%d, v%d" % (N, sMASK, N)),
          O("v_add_f32 v%d, v%d, v%d" % (Q, EPS, Q)),
          O("v_rsq_f32 v%d, v%d" % (R, Q)),
          O("v_sub_f32 v%d, v%d, v%d" % (N, C, N)),
          O("v_mul_f32 v%d, v%d, v%d" % (N, N, R))]
    if li == 0: A.append(WAIT(l="gbr"))
    for c in range(4):
        n = 4 if c < 3 else 2
        for i in range(4*c, 4*c+n):
            A.append(O("v_pk_fma_f32 %s, %s, %s, %s op_sel:[0,1,1] op_sel_hi:[1,1,1]" % (p(U+2*i), p(U+2*i), p(Q), p(S))))
        for i in range(4*c, 4*c+n):
            A.append(O("v_pk_fma_f32 %s, %s, %s, %s" % (p(U+2*i), p(U+2*i), p(GE+2*i), p(BE+2*i))))
        for i in range(n):
            A.append(O("v_cvt_pk_bf16_f32 v%d, v%d, v%d" % (dst[c]+i, U+8*c+2*i, U+8*c+2*i+1)))
    return A
def ln_code(li):
    if not cfg.twopass: return ln_code1(li)
    if cfg.twopass == 3: return ln_code3(li)
    S, Q = SS, SQ; R, N = SQ+1, SS+1
    S2 = 136
    RW = RAW[li]
    dst = [RW, RW+4, RW+8, RW+12] if li < 7 and li not in cfg.parkd else PARK
    p = lambda a: vr(a, 2)
    A = []
    for i in range(14):
        if i % 4 == 0: A.append(WAIT(v="x%d_%d" % (li, i//4)))
        if i == 12: A += stamp("r%d" % li)
        A += [O("v_lshlrev_b32 v%d, 16, v%d" % (U+2*i, RW+i)), O("v_and_b32 v%d, s%d, v%d" % (U+2*i+1, sMASK, RW+i))]
        if i == 2: A.append(O("v_pk_add_f32 %s, %s, %s" % (p(S), p(U), p(U+2))))
        if i >= 3: A.append(O("v_pk_add_f32 %s, %s, %s" % (p(S), p(S), p(U+2*(i-1)))))
    A += [O("v_pk_add_f32 %s, %s, %s" % (p(S), p(S), p(U+26))), O("v_add_f32 v%d, v%d, v%d" % (S, S, S+1))]
    for n in (8, 4, 2, 1): A += [O("s_nop 1"), dpp(S, n)]
    A += [O("v_mul_f32 v%d, 0x%08x, v%d" % (S, f2u(-1.0/448), S))]
    sub = lambda i: O("v_pk_add_f32 %s, %s, %s op_sel_hi:[1,0]" % (p(U+2*i), p(U+2*i), p(S)))
    def sq(i):
        q = Q if i % 2 == 0 else S2
        if i < 2: return O("v_pk_mul_f32 %s, %s, %s" % (p(q), p(U+2*i), p(U+2*i)))
        return O("v_pk_fma_f32 %s, %s, %s, %s" % (p(q), p(U+2*i), p(U+2*i), p(q)))
    A += [sub(0), sub(1)]
    for i in range(2, 14): A += [sub(i), sq(i-2)]
    A += [sq(12), sq(13)]
    A += [O("v_cvt_pk_bf16_f32 v%d, v%d, v%d" % (N, S, S)), O("v_pk_add_f32 %s, %s, %s" % (p(Q), p(Q), p(S2))),
          O("v_and_b32 v%d, s%d, v%d" % (N, sMASK, N)), O("v_add_f32 v%d, v%d, v%d" % (Q, Q, Q+1)),
          O("v_sub_f32 v%d, v%d, v%d" % (N, N, S)), O("s_nop 0"), dpp(Q, 8)]
    for n in (4, 2, 1): A += [O("s_nop 1"), dpp(Q, n)]
    A += [O("v_fma_f32 v%d, v%d, s%d, v%d" % (Q, Q, sINV, EPS)),
          O("v_rsq_f32 v%d, v%d" % (R, Q)),
          O("s_nop 0"),
          O("v_mul_f32 v%d, v%d, v%d" % (N, N, R))]
    if li == 0: A.append(WAIT(l="gbr"))
    for c in range(4):
        n = 4 if c < 3 else 2
        for i in range(4*c, 4*c+n):
            A.append(O("v_pk_fma_f32 %s, %s, %s, %s op_sel:[0,1,1] op_sel_hi:[1,1,1]" % (p(U+2*i), p(U+2*i), p(Q), p(S))))
        for i in range(4*c, 4*c+n):
            A.append(O("v_pk_fma_f32 %s, %s, %s, %s" % (p(U+2*i), p(U+2*i), p(GE+2*i), p(BE+2*i))))
        for i in range(n):
            A.append(O("v_cvt_pk_bf16_f32 v%d, v%d, v%d" % (dst[c]+i, U+8*c+2*i, U+8*c+2*i+1)))
    return A
def lnwrites(i):
    lw, off = (LWY, YO + 256*i) if i < 4 else (LWZ, ZO + 3584*(i-4))
    src = [RAW[i], RAW[i]+4, RAW[i]+8, RAW[i]+12]; nd = []
    if i in cfg.parkd: src = PARK
    if i == 7: off = T7O; src = PARK; nd = ["tr13h0"]
    if i == 7 and cfg.w64:
        return [O("ds_write_b64 v%d, %s offset:%d" % (lw+c//2, vr(src[c//2]+2*(c & 1), 2), off+8*(c & 1)), cost=3, needs=nd) for c in range(7)]
    return [O("ds_write_b128 v%d, %s offset:%d" % (lw+c, vr(src[c], 4), off), cost=5, needs=nd) for c in range(3)] + [O("ds_write_b64 v%d, %s offset:%d" % (lw+3, vr(src[3], 2), off), cost=3, needs=nd)]
def xoff(tile, j):
    if tile == 7: return T7O + 256*j
    return YO + 1024*j + 256*tile if tile < 4 else ZO + 3584*(tile-4) + 256*j

def cost(op):
    if op.cost: return op.cost
    return {"V": 1, "S": 1, "W": 1, "D": 2, "G": 3, "K": 1, "L": 0}[op.kind]
def weave(mf, fixed, stream, g0, g1):
    n = len(mf)
    for ex in range(0, 400):
        extra = ex * 0.02
        gaps = [list(fixed.get(g, [])) for g in range(n)]
        si = 0; credit = 0.0
        for g in range(g0, g1+1):
            used = 0; hasV = False
            for o in gaps[g]:
                if o.kind == "V" and used < 1: used = 1
                used += cost(o); hasV |= o.kind == "V"
            credit += extra
            while si < len(stream):
                o = stream[si]
                if o.at is not None and o.at > g: break
                u = used
                if o.kind == "V" and u < 1: u = 1
                if o.kind in ("D", "G") and hasV: break
                u += cost(o)
                over = max(0, u-3.1) - max(0, used-3.1)
                if over > 0:
                    if used < 0.5: pass
                    elif credit >= over: credit -= over
                    else: break
                gaps[g].append(o); used = u; hasV |= o.kind == "V"; si += 1
        if si == len(stream): break
    else:
        raise Exception("weave failed")
    out = []; tot = 0
    for g in range(n):
        out.append(mf[g]); out += gaps[g]
        u = 0
        for o in gaps[g]:
            if o.kind == "V" and u < 1: u = 1
            u += cost(o)
        tot += max(4, 1+u)
    print("weave: n=%d extra=%.2f est cycles=%d (ideal %d)" % (n, extra, tot*4, n*16), file=sys.stderr)
    return out
def cvt(dst, a): return O("v_cvt_pk_bf16_f32 v%d, v%d, v%d" % (dst, a, a+1), sem=("C",))

def prologue():
    L = []
    a = lambda s, **k: L.append(O(s, **k))
    L += stamp("z")
    a("s_load_dwordx2 s[%d:%d], s[0:1], 0" % (SX, SX+1))
    a("s_load_dwordx4 s[4:7], s[0:1], 8")
    a("s_load_dwordx2 s[%d:%d], s[0:1], 24" % (SWd, SWd+1))
    a("s_load_dwordx2 s[%d:%d], s[0:1], 32" % (SO, SO+1))
    if cfg.stamps: a("s_load_dwordx2 s[48:49], s[0:1], 48")
    a("s_cmp_ge_u32 s2, 256", tag="scc:e"); a("s_cbranch_scc1 L_end", needs=["scc:e"])
    LN_ = 40
    a("v_lshrrev_b32 v43, 6, v0")
    a("v_and_b32 v%d, 63, v0" % LN_)
    a("v_readfirstlane_b32 s%d, v43" % sW)
    a("s_lshr_b32 s3, s2, 3")
    if cfg.cpf:
        nl = -(-cfg.cpl // (4*cfg.cpf))
        a("s_getpc_b64 s[12:13]")
        if cfg.hwid:
            assert cfg.cpf == 16
            a("s_getreg_b32 s11, hwreg(HW_REG_HW_ID, 8, 2)"); a("s_getreg_b32 s14, hwreg(HW_REG_HW_ID, 13, 2)")
            a("s_lshl2_add_u32 s11, s11, s14"); a("s_lshl2_add_u32 s11, s11, s%d" % sW)
        else:
            a("s_and_b32 s11, s3, %d" % (cfg.cpf-1)); a("s_lshl_b32 s11, s11, 2"); a("s_add_u32 s11, s11, s%d" % sW)
        a("s_mul_i32 s11, s11, %d" % (nl*128)); a("s_add_u32 s12, s12, s11", tag="scc:c"); a("s_addc_u32 s13, s13, 0", needs=["scc:c"])
        a("v_min_u32 v48, %d, v%d" % (nl-1, LN_)); a("v_lshlrev_b32 v48, 7, v48")
        a("v_mov_b32 v49, s13"); a("v_add_co_u32 v48, vcc, s12, v48")
    a("v_lshlrev_b32 v%d, 4, v%d" % (VL, LN_))
    a("s_mul_i32 s%d, s2, %d" % (sOO, 128*896))
    if cfg.cpf:
        a("v_addc_co_u32 v49, vcc, 0, v49, vcc")
        a("global_load_dword v44, v[48:49], off")
    a("s_mov_b32 s%d, %d" % (SX+2, NB)); a("s_mov_b32 s%d, 0x20000" % (SX+3))
    a("s_mul_i32 s%d, s%d, 28672" % (sXO, sW))
    a("s_add_u32 s%d, s%d, s%d" % (sXO, sXO, sOO))
    a("s_mul_i32 s%d, s%d, %d" % (sREG, sW, WREG))
    a("s_movk_i32 s%d, 896" % (SG+2)); a("s_mov_b32 s%d, 0x20000" % (SG+3))
    a("s_movk_i32 s10, 896"); a("s_mov_b32 s11, 0x20000")
    a("s_mov_b32 s%d, %d" % (SWd+2, 448*896)); a("s_mov_b32 s%d, 0x20000" % (SWd+3))
    a("v_and_b32 v41, 15, v%d" % LN_); a("v_lshrrev_b32 v42, 4, v%d" % LN_)
    a("v_mul_u32_u24 v45, 896, v42")
    a("v_lshl_add_u32 v%d, v41, 4, v45" % RA); a("v_lshl_add_u32 v%d, v41, 3, v45" % RB)
    a("s_waitcnt lgkmcnt(0)")
    return L
def gbload():
    return [O("s_mov_b32 s%d, s4" % SG), O("s_mov_b32 s%d, s5" % (SG+1)), O("s_mov_b32 s8, s6"), O("s_mov_b32 s9, s7"),
            O("buffer_load_dwordx4 v[136:139], v%d, s[%d:%d], 0 offen" % (VL, SG, SG+3)),
            O("buffer_load_dwordx4 v[140:143], v%d, s[8:11], 0 offen" % VL, tag="gb")]
def wsetup():
    L = []
    a = lambda s, **k: L.append(O(s, **k))
    LN_ = 40
    a("s_mul_i32 s%d, s3, 28672" % sWO)
    a("s_add_u32 s%d, s%d, s%d" % (sWO, sWO, sT2))
    a("s_add_u32 s%d, s%d, %d" % (sWLIM, sT2, 14*28672))
    a("s_lshr_b32 s14, s2, 3"); a("s_lshl_b32 s14, s14, 2"); a("s_add_u32 s14, s14, s%d" % sW); a("s_mul_i32 s14, s14, 3200")
    a("v_min_u32 v131, 24, v%d" % LN_); a("v_lshlrev_b32 v131, 7, v131")
    a("s_movk_i32 s12, 672"); a("s_movk_i32 s13, 896")
    a("v_mul_u32_u24 v45, 4682, v%d" % LN_)
    for i in range(7):
        const = (3072 if i >= 3 else 0) - (10752 if i >= 4 else 0)
        if i: a("v_add_u32 v46, %d, v45" % (64*i*4682)); a("v_lshrrev_b32 v46, 16, v46")
        else: a("v_lshrrev_b32 v46, 16, v45")
        a("v_and_b32 v47, 12, v46")
        a("v_mad_u32_u24 v%d, v46, s12, v%d" % (VO+i, VL))
        a("v_mad_u32_u24 v%d, v47, s13, v%d" % (VO+i, VO+i))
        if i == 3:
            a("v_lshrrev_b32 v47, 4, v46"); a("v_mul_u32_u24 v47, 10752, v47"); a("v_sub_u32 v%d, v%d, v47" % (VO+i, VO+i))
        if const: a("v_add_u32 v%d, %d, v%d" % (VO+i, const & 0xffffffff, VO+i))
    return L
FTAB = 0x1e
def addr_math(part):
    L = []
    a = lambda s, **k: L.append(O(s, **k))
    LN_, P_, RR, GA = 40, 41, 42, 52
    a("s_mov_b32 s%d, %d" % (SO+2, NB)); a("s_mov_b32 s%d, 0x20000" % (SO+3))
    a("s_mov_b32 s%d, 0xffff0000" % sMASK)
    a("s_and_b32 s15, s%d, 1" % sW)
    a("s_mov_b32 s%d, 0x%08x" % (sINV, f2u(1.0/448)))
    a("v_mov_b32 v%d, 0x%08x" % (EPS, f2u(1e-5)))
    a("s_sub_u32 s%d, s3, 14" % sT); a("s_min_u32 s3, s3, s%d" % sT)
    a("s_sub_u32 s%d, s3, 14" % sT); a("s_min_u32 s3, s3, s%d" % sT)
    a("s_mul_i32 s%d, s%d, 224" % (sT2, sW))
    a("v_lshlrev_b32 v%d, 4, v%d" % (GA, P_))
    a("v_cmp_eq_u32 vcc, 3, v%d" % RR)
    a("v_lshlrev_b32 v45, 5, v%d" % P_)
    a("v_mov_b32 v46, 0x100")
    a("v_cndmask_b32 v45, v%d, v45, vcc" % GA)
    a("v_cndmask_b32_e64 v46, v46, 16, vcc")
    a("v_lshl_add_u32 v50, v%d, 9, v45" % RR)
    a("v_add_u32 v50, s%d, v50" % sREG); a("v_add_u32 v%d, s%d, v%d" % (GA, sREG, GA))
    a("v_add_u32 v51, v50, v46")
    a("s_movk_i32 s12, 0x78")
    a("v_lshrrev_b32 v45, 2, v%d" % P_)
    a("v_lshlrev_b32 v46, 1, v45"); a("v_bfe_u32 v46, s12, v46, 2")
    a("v_xor_b32 v46, v46, v%d" % RR)
    a("v_lshrrev_b32 v47, 1, v46"); a("v_and_b32 v48, 3, v%d" % P_); a("v_xor_b32 v47, v47, v48")
    a("v_lshlrev_b32 v47, 4, v47"); a("v_lshl_add_u32 v47, v46, 6, v47")
    a("v_mul_u32_u24 v45, %d, v45" % WREG); a("v_add_u32 v%d, v45, v47" % XR)
    a("s_lshl_b32 s41, s%d, 1" % sW); a("s_lshr_b32 s41, s12, s41"); a("s_and_b32 s41, s41, 3")
    def common(qexpr_ops):
        for s in qexpr_ops: a(s)
        a("v_xor_b32 v46, s41, v46")
        a("v_lshrrev_b32 v47, 1, v46"); a("v_xor_b32 v47, v47, v%d" % RR); a("v_lshlrev_b32 v47, 4, v47")
        a("v_lshl_add_u32 v47, v46, 6, v47"); a("v_add_u32 v47, s%d, v47" % sREG)
    common(["v_and_b32 v46, 3, v%d" % P_])
    a("v_lshrrev_b32 v46, 2, v%d" % P_); a("v_subrev_u32 v46, s3, v46")
    for c in range(3):
        if c: a("v_add_u32 v46, 4, v46")
        a("v_add_u32 v48, 14, v46"); a("v_min_u32 v48, v48, v46")
        a("v_lshl_add_u32 v%d, v48, 10, v47" % (LWY+c)); a("v_lshl_add_u32 v%d, v48, 8, v47" % (LWZ+c))
    common(["v_bfe_u32 v46, v%d, 1, 2" % P_])
    a("v_and_b32 v46, 1, v%d" % P_); a("v_lshl_add_u32 v47, v46, 3, v47")
    a("v_lshrrev_b32 v46, 3, v%d" % P_); a("v_add_u32 v46, 12, v46"); a("v_subrev_u32 v46, s3, v46")
    a("v_add_u32 v48, 14, v46"); a("v_min_u32 v48, v48, v46")
    a("v_lshl_add_u32 v%d, v48, 10, v47" % (LWY+3)); a("v_lshl_add_u32 v%d, v48, 8, v47" % (LWZ+3))
    if part == 1: return L[:]
    del L[:]
    a("s_lshl_b32 s41, s15, 5")
    a("v_lshrrev_b32 v45, 2, v%d" % LN_); a("v_mul_u32_u24 v45, 224, v45"); a("v_and_b32 v46, 3, v%d" % LN_)
    a("v_add_u32 v45, s%d, v45" % sREG)
    a("v_lshl_add_u32 v%d, v46, %d, v45" % (TR1, 3 if cfg.nocf else 4)); a("v_add_u32 v%d, s41, v%d" % (TR1, TR1))
    a("s_mul_i32 s12, s15, 192"); a("s_sub_u32 s12, 192, s12")
    a("v_lshl_add_u32 v%d, v46, 3, v45" % TR2); a("v_add_u32 v%d, s12, v%d" % (TR2, TR2))
    return L
def late_addr():
    L = []
    a = lambda s, **k: L.append(O(s, **k))
    P_, RR = 16, 17
    ST, OS, OW, OR = 20, 21, 22, 16
    a("v_mbcnt_lo_u32_b32 v17, -1, 0"); a("v_mbcnt_hi_u32_b32 v17, -1, v17")
    a("v_and_b32 v16, 15, v17"); a("v_lshrrev_b32 v17, 4, v17")
    a("v_lshrrev_b32 v18, 2, v%d" % P_); a("v_and_b32 v19, 3, v%d" % P_); a("v_lshl_add_u32 v18, v18, 5, v19")
    a("v_mul_u32_u24 v18, 896, v18"); a("v_lshl_add_u32 v18, v%d, 4, v18" % RR)
    a("s_lshl_b32 s41, s15, 5"); a("s_add_u32 s12, s41, s%d" % sT2)
    a("v_add_u32 v%d, s12, v18" % ST)
    a("s_lshr_b32 s13, s%d, 1" % sW)
    a("s_mul_i32 s12, s13, 448"); a("s_mul_i32 s%d, s15, 3584" % sPAR); a("s_add_u32 s12, s12, 192")
    a("v_add_u32 v%d, s12, v18" % OS)
    a("v_lshlrev_b32 v18, 5, v%d" % P_)
    a("v_lshl_add_u32 v19, v%d, 3, v18" % RR); a("v_add_u32 v%d, s%d, v19" % (OW, sREG))
    a("v_and_b32 v19, 1, v%d" % RR); a("v_lshl_add_u32 v18, v19, 4, v18")
    a("v_lshrrev_b32 v19, 1, v%d" % RR); a("v_mul_u32_u24 v19, %d, v19" % WREG); a("v_add_u32 v18, v18, v19")
    a("s_mul_i32 s12, s13, %d" % (2*WREG)); a("s_lshl_b32 s42, s15, 9"); a("s_add_u32 s12, s12, s42")
    a("v_add_u32 v%d, s12, v18" % OR)
    return L
def gbtable():
    GA = 52
    L = [WAIT(v="gb")]
    for i in range(8):
        L += [O("v_lshlrev_b32 v%d, 16, v%d" % (56+2*i, 136+i)), O("v_and_b32 v%d, s%d, v%d" % (57+2*i, sMASK, 136+i))]
        if i == 3: L += [O("ds_write_b128 v50, v[56:59] offset:%d" % GTAB), O("ds_write_b128 v51, v[60:63] offset:%d" % GTAB)]
    L += [O("ds_write_b128 v50, v[64:67] offset:%d" % (GTAB+2048)), O("ds_write_b128 v51, v[68:71] offset:%d" % (GTAB+2048))]
    for v in range(7):
        L.append(O("ds_read_b128 %s, v%d offset:%d" % (vr(GE+4*v, 4), GA, GTAB+256*v)))
        L.append(O("ds_read_b128 %s, v%d offset:%d" % (vr(BE+4*v, 4), GA, GTAB+2048+256*v), tag="gbr" if v == 6 else None))
    return L

def half(n):
    j, x = divmod(n, 2)
    return j, cfg.horder.get(j, (0, 1))[x]
def build():
    wn[0] = 0; xn[0] = 0; stampn[0] = 0; del stampnames[:]; m0state[0] = None; TR2late[0] = False
    code = []; trace = []
    def emit(L): code.extend(L); trace.extend(L)
    emit(prologue())
    fb = [0]
    def xread(tile, j):
        return O("ds_read_b128 %s, v%d offset:%d" % (vr(F[fb[0] & 1], 4), XR, xoff(tile, j % 14)), tag="xf", sem=("X", tile, j % 14))
    pre = {}
    def units(seq, nxt):
        mf = []; fixed = {}; starts = []
        for k, u in enumerate(seq):
            tile, j = u[0], u[1]
            g = len(mf); starts.append(g)
            if (tile, j) in pre: cur = pre[(tile, j)]
            else: cur = F[fb[0] & 1]; fb[0] += 1
            n = seq[k+1] if k+1 < len(seq) else nxt
            acc = ACC[tile] if tile < 4 else ACC[2]
            ts = u[3] if len(u) > 3 else range(7)
            for t in ts: mf.append(mfma(acc, j, t, cur, None if len(u) < 3 or u[2] is None else u[2][t], tile))
            if n is not None and (n[0], n[1]) not in pre:
                fixed.setdefault(g, []).append(xread(n[0], n[1]))
                fixed.setdefault(len(mf)-1, []).append(WAIT(l="xf"))
        return mf, fixed, starts
    st8 = dict(ri=0, li=0, th=0, vis=0, wi=0)
    done = set(); waited = set()
    def simple(tok):
        if tok[0] in "xw" and "+" not in tok:
            out = []
            for o in (xdma if tok[0] == "x" else wdma)(int(tok[1:])):
                for tg in o.needs:
                    if tg.startswith("tr") and tg not in waited: waited.add(tg); out.append(WAIT(l=tg))
                out.append(o)
            return out
        if tok[0] == "t" and "+" not in tok:
            j, h = half(st8["th"]); st8["th"] += 1
            return [WAIT(v=wland(j, h))] + trreads(j, h)
        if tok == "y": return [WAIT(l=0)]
        if tok == "-": return []
        if tok == "|": return [O("@SPLIT", kind="L")]
        if tok == "J": return [O("    s_branch L_main", kind="L"), O(".p2align 12", kind="L"), O(".fill %d, 4, 0xbf810000" % (cfg.joff//4), kind="L"), O("L_main:")]
        if tok == "H":
            L = [O("    s_mov_b64 vcc, 1", kind="L")]
            for k in range(4):
                L += [O("@H%d    s_cmp_eq_u32 s%d, %d" % (k, sW, k), kind="L"), O("@H%d    s_cbranch_scc1 L_pad%d" % (k, k), kind="L")]
            return L + [O("L_padret:"), O("s_mov_b64 vcc, 0")]
        if tok == "I":
            return [O("s_lshl_b32 s43, s%d, 2" % sW), O("v_mov_b32 v124, s43"), O("v_mov_b32 v125, 0"), O("v_mov_b32 v126, 1"),
                    O("ds_write_b32 v124, v125 offset:%d" % FLAGO), WAIT(l=0), O("s_barrier")]
        if tok == "S":
            st8["fvis"] = st8["wi"]//4
            return [WAIT(l=0), O("ds_write_b32 v124, v126 offset:%d" % FLAGO)]
        if tok == "Q": return [O("ds_read_b128 v[140:143], v125 offset:%d" % FLAGO, tag="fl")]
        if tok == "K":
            st8["vis"] = st8["fvis"]
            return [O("L_chk:"), WAIT(l="fl"), O("v_and_b32 v140, v140, v141"), O("v_and_b32 v142, v142, v143"), O("v_and_b32 v140, v140, v142"), O("s_nop 0"),
                    O("v_readfirstlane_b32 s43, v140"), O("s_cmp_eq_u32 s43, 1", tag="scc:k"), O("s_cbranch_scc1 L_ok", needs=["scc:k"]),
                    O("    ds_read_b128 v[140:143], v125 offset:%d" % FLAGO, kind="L"), O("    s_waitcnt lgkmcnt(0)", kind="L"), O("    s_branch L_chk", kind="L"), O("L_ok:")]
        if tok == "Z":
            st8["vis"] = st8["wi"]//4
            return [WAIT(l=0), O("s_barrier")]
        if tok[0] == "d" and "+" not in tok:
            out = []
            for _ in range(int(tok[1:] or 1)):
                i, c = divmod(st8["wi"], 4); st8["wi"] += 1; assert i < st8["li"]
                out.append(lnwrites(i)[c])
            return out
        if tok[0] == "s" and "+" not in tok: return stamp(tok)
        if "+" in tok: return [o for t in tok.split("+") for o in simple(t)]
        if tok[0] == "F":
            j = int(tok[1:]); assert st8["vis"] >= 4; out = []
            for t in range(4):
                pre[(t, j)] = wf(j + cfg.fo, t)
                out.append(O("ds_read_b128 %s, v%d offset:%d" % (pre[(t, j)], XR, xoff(t, j)), sem=("X", t, j)))
            return out
        if tok == "P": return [O("buffer_load_dword v136, v131, s[%d:%d], s14 offen" % (SWd, SWd+3))]
        raise Exception(tok)
    nz = 0
    for tok in cfg.early.split():
        head, _, spr = tok.partition(":")
        spr = spr.split(",") if spr else []
        if tok == "G": emit(gbload())
        elif tok == "P": emit([O("buffer_load_dword v136, v131, s[%d:%d], s14 offen" % (SWd, SWd+3))])
        elif tok == "A": emit(addr_math(1))
        elif tok == "A2": emit(addr_math(2) + wsetup())
        elif tok == "B": emit(stamp("mb")); emit(gbtable())
        elif head == "C":
            li = st8["li"]
            emit(stamp("c%d" % li))
            A = ln_code(li); out = []
            items = []
            for k, t in enumerate(spr):
                t, _, pct = t.partition("@")
                nops = [i for i, o in enumerate(A) if o.text == "s_nop 0"]
                items.append((nops[int(pct[1:])] if pct[:1] == "n" else (int(pct)*len(A))//100 if pct else (k+1)*len(A)//(len(spr)+1), t))
            k = 0
            for idx, o in enumerate(A):
                ins = []
                while k < len(items) and idx >= items[k][0]: ins += simple(items[k][1]); k += 1
                out += ins
                if o.text == "s_nop 0" and ins: continue
                out.append(o)
            assert k == len(items)
            emit(out); emit(stamp("n%d" % li))
            st8["li"] += 1
        elif tok == "Z":
            bf = all((t, j) in done or (t, j) in pre for t in range(4) for j in range(2))
            emit([WAIT(l=0), O("s_barrier", tag="Bfree" if bf else "gbfree")]); st8["vis"] = st8["wi"]//4; st8["bf"] = bf
        elif head[0] == "U":
            tl, js = head[1:].split("@"); js = [int(x) for x in js.split("-")]
            seq = [(int(c), j) for j in range(js[0], js[-1]+1) for c in tl]
            for u in seq:
                assert u[0] < st8["vis"] and (u[1] == 0 or (u[0], u[1]-1) in done), tok
                done.add(u)
            emit(stamp("u%d" % js[0]))
            emit([xread(*seq[0]), WAIT(l=0)])
            mf, fixed, starts = units(seq, None)
            for k, u in enumerate(seq):
                if k and u[1] != seq[k-1][1]: fixed[starts[k]-1] = [WAIT(l=0)]
            segs = ",".join(spr).split("/"); n = 7*len(tl)
            for si in range(js[-1]-js[0]+1):
                stream = []
                for t in (segs[si].split(",") if si < len(segs) and segs[si] else []):
                    t, _, gp = t.partition("@")
                    ops = [o for o in simple(t)]
                    if ops and gp: ops[0].at = int(gp)
                    stream += ops
                emit(weave(mf[si*n:(si+1)*n], {g-si*n: v for g, v in fixed.items() if si*n <= g < (si+1)*n}, stream, 0, n-3))
        else: emit(simple(tok))
    assert st8["wi"] == 28 and st8["li"] == 8 and xn[0] == 32 and st8["vis"] >= 5
    th = st8["th"]
    emit(stamp("mp"))
    def canissue():
        n = wn[0]; rd = set(half(x) for x in range(th))
        while n < 105:
            j, ii = divmod(n, 7); i = worder(j)[ii]
            if any(x not in rd for x in wneeds(j, i)): break
            n += 1
        return n - wn[0]
    order = [3, 0, 1, 2]
    seq = [(t, j) for j in range(14) for t in order if (t, j) not in done]
    assert th >= 2*seq[0][1] + 2
    emit([xread(*seq[0]), WAIT(l=0)])
    S2 = [4, 5, 6, 7]
    mf, fixed, starts = units(seq, (S2[0], 1))
    first = {}
    for k, u in enumerate(seq): first.setdefault(u[1], starts[k])
    def used(g):
        u = 0
        for o in fixed.get(g, []):
            if o.kind == "V" and u < 1: u = 1
            u += cost(o)
        return u
    def fx(g, ops, front=False):
        if front: fixed[g] = ops + fixed.get(g, [])
        else: fixed.setdefault(g, []).extend(ops)
    put = fx
    def putdma(g, d, gprep):
        pend = []; firstd = True
        for o in d:
            if o.kind != "G":
                if o.text != "s_nop 0": pend.append(o)
                continue
            while used(g) > 0: g += 1
            if pend:
                if firstd and gprep is not None:
                    gp = gprep
                    for p in pend:
                        while used(gp) >= 3 and gp < g-1: gp += 1
                        put(gp, [p])
                else: put(g-1, pend)
            put(g, [o]); pend = []; g += 1; firstd = False
        return g
    def puttr(g, ops, gend):
        ops = list(ops); assert gend >= g
        load = {x: used(x) for x in range(g, gend+1)}; cnt = {x: 0 for x in load}
        for _ in ops:
            x = min(load, key=lambda x: (max(load[x]+2-3, 0), x)); load[x] += 2; cnt[x] += 1
        last = g
        for x in range(g, gend+1):
            for _ in range(cnt[x]): put(x, [ops.pop(0)]); last = x
        return last + 1
    def putseq(gw, ops):
        for o in ops:
            while used(gw) + (1 if o.kind == "V" and used(gw) < 1 else 0) >= 3: gw += 1
            put(gw, [o])
        return gw
    d0 = wdma(canissue())
    k0 = next((i for i, x in enumerate(d0) if x.kind == "G"), 0)
    emit(d0[:k0])
    g = putdma(1, d0[k0:], None)
    while th < 28:
        k, h = half(th); second = th % 2; th += 1
        yt = first[k] - cfg.lead - (0 if second else 14)
        D = first[k] - 1 - (0 if second else cfg.minp)
        y = min(max(yt, g + 7 + cfg.lat), D)
        gs = max(min(g, y - cfg.lat - 4), y - 11, 0)
        while used(gs) > 0 and gs < y - cfg.lat - 6: gs += 1
        put(gs, [WAIT(v=wland(k, h))])
        ge = puttr(gs, trreads(k, h), y - cfg.lat)
        put(y, [WAIT(l="tr%dh%d" % (k, h))])
        nb = wn[0]
        g = putdma(max(g, y+1), wdma(canissue()), max(ge, g))
        if nb < 105 and wn[0] == 105: glast = g
    assert wn[0] == 105
    gm = putseq(glast, late_addr())
    for j in sorted(first):
        if first[j] > 0: put(first[j]-1, stamp("p%d" % j))
    Q = lambda a, k: ACC[a] + 4*k
    HOLD = {3: [Q(3, 1), Q(3, 3), Q(3, 5)], 0: [Q(0, 1), Q(0, 3), Q(0, 5)], 1: [Q(1, 1), Q(1, 3), Q(1, 5)],
            2: [Q(0, 0), Q(0, 2), Q(0, 4)], 4: [Q(1, 0), Q(1, 2), Q(1, 4)], 5: [Q(1, 1), Q(1, 3), Q(1, 5)],
            6: [Q(0, 1), Q(0, 3), Q(0, 5)], 7: [Q(0, 0), Q(0, 2), Q(0, 4)]}
    OPK = 18; OT = Q(0, 6)
    def oddw(tile, src): return O("ds_write_b64 v%d, %s offset:%d" % (OW, vr(src, 2), ODDO + 512*tile), cost=3, needs=["tr13h0", "tr13h1"], sem=("OW", tile))
    def store(tile, P):
        return [O("s_add_u32 s%d, s%d, %d" % (sO2, sOO, 3584*tile), sem=("SO", ("ST", tile))),
                O("buffer_store_dwordx4 %s, v%d, s[%d:%d], s%d offen offset:%d%s" % (vr(HOLD[tile][P], 4), ST, SO, SO+3, sO2, 64*P, cfg.spol), sem=("ST", tile, P))]
    def pair_inplace(tile, P):
        x0, x1 = ACC[tile]+8*P, ACC[tile]+8*P+4
        return [cvt(x1+3, x1+2), cvt(x1+2, x1), cvt(x1, x0), cvt(x1+1, x0+2)]
    def odd_inplace(tile):
        x = ACC[tile]+24
        return [cvt(x, x), cvt(x+1, x+2)], oddw(tile, x)
    def pkcvt(tile, t):
        d = OPK if t == 6 else HOLD[tile][t >> 1] + 2*(t & 1)
        return [cvt(d, ACC[2]+4*t), cvt(d+1, ACC[2]+4*t+2)]
    E = first[13]
    assert gm < E + 8
    for k in (3, 4, 5): put(E+k, [O("s_nop 0")])
    putseq(E+8, pair_inplace(3, 0) + pair_inplace(3, 1) + pair_inplace(3, 2))
    putseq(E+15, pair_inplace(0, 0) + pair_inplace(0, 1) + pair_inplace(0, 2))
    sx = store(3, 0); put(E+21, sx[:1]); put(E+22, sx[1:])
    put(E+23, [O("s_nop 1")]); put(E+24, [O("s_nop 1")])
    for t in range(3): put(E+25+t, pkcvt(2, t))
    emit(weave(mf, fixed, [], 0, 0))
    emit(stamp("mq"))
    plan = cfg.plan
    om = [0]
    def oddso(m): return [O("s_add_u32 s%d, s%d, %d" % (sO2, sPAR, 7168*m), sem=("SO", None)), O("s_add_u32 s%d, s%d, s%d" % (sO2, sO2, sOO), sem=("SO", ("OS", m)))]
    def oddst(m): return O("buffer_store_dwordx4 %s, v%d, s[%d:%d], s%d offen%s" % (vr(OT, 4), OS, SO, SO+3, sO2, cfg.spol), sem=("OS", m))
    pw = lnwrites(7)
    for bi, tile in enumerate(S2):
        prev = 2 if bi == 0 else S2[bi-1]
        mf, fixed, _ = units([(tile, j) for j in range(1, 15 if bi < 3 else 15 - cfg.nl)], (S2[bi+1], 1) if bi < 3 else None)
        for t in range(3, 7): fx(t-2, pkcvt(prev, t))
        fx(8, [oddw(prev, OPK)], front=True)
        if bi == 0:
            gq = 9
            for tl in (3, 0, 1):
                c, o = odd_inplace(tl); gq = putseq(gq, c) + 1
                while used(gq) > 0: gq += 1
                fx(gq, [o]); gq += 1
            putseq(gq, pair_inplace(1, 0) + pair_inplace(1, 1) + pair_inplace(1, 2))
        items = plan[bi]; n = len(items)
        lo = 5 if bi == 0 else 10
        for k, it in enumerate(items):
            g = lo + ((90 if bi < 3 else cfg.lhi)-lo)*k//n
            while used(g) > 0 or used(g-1) > 2 or (it == "o" and used(g-2) > 1): g += 1
            if it == "o":
                m = om[0]; om[0] += 1
                gr = g - 9
                while used(gr) > 1: gr -= 1
                bar = min(b for b in cfg.bars if (3 if b == 0 else S2[b-1]) >= 2*m+1)
                fx(gr, [O("ds_read_b128 %s, v%d offset:%d" % (vr(OT, 4), OR, ODDO + 1024*m), needs=["bar%d" % bar], tag="od")], front=True)
                fx(g-2, oddso(m), front=True); fx(g-1, [WAIT(l="od")], front=True); fx(g, [oddst(m)])
            elif it == "w": fx(g, [pw.pop(0)])
            else:
                s = store(*it); fx(g-1, s[:1], front=True); fx(g, s[1:])
                if it == (3, 2): g32 = g
        if bi == 0:
            gs = max(g32 + 3, 45)
            fx(gs, [WAIT(v=wland(14, 1))], front=True)
            puttr(gs, trreads(14, 0) + trreads(14, 1), 84)
            fixed[90] = [WAIT(l=0)]
        if bi in cfg.bars:
            fixed[90] = [WAIT(l=0)]
            fx(91, [O("s_barrier", tag="bar%d" % bi)], front=True)
            if not pw: t7vis = True
        if bi < 3:
            fx(92, [O("s_nop 0")]); fx(93, [O("s_nop 0")]); fx(94, [O("s_nop 1")])
            for t in range(3): fx(95+t, pkcvt(tile, t))
        else:
            assert t7vis
            NL = cfg.nl; j0 = 15 - NL; G0 = 7*(14 - NL)
            XF = [24, 28, 32, Q(1, 6), Q(1, 0), Q(1, 2), Q(1, 4), Q(1, 1), Q(1, 3), Q(1, 5)][:NL]
            rd = [O("ds_read_b128 %s, v%d offset:%d" % (vr(XF[k], 4), XR, xoff(tile, (j0+k) % 14)), tag="xl", sem=("X", tile, (j0+k) % 14)) for k in range(NL)]
            puttr(max(5, G0 - 2*NL - 6), rd, G0 - 5)
            fx(G0-1, [WAIT(l="xl")])
            for ts in ([6], [0, 1], [2, 3], [4, 5]):
                for k in range(NL):
                    for t in ts: mf.append(mfma(ACC[2], j0+k, t, XF[k], None, tile))
            a6 = G0 + NL; a0_ = a6 + 2*NL; a1_ = a0_ + 2*NL
            fx(a6, [O("s_nop 1")]); fx(a6+1, [O("s_nop 1")]); fx(a6+2, [O("s_nop 0")] + pkcvt(tile, 6)); fx(a6+3, [oddw(tile, OPK)])
            fx(a6+6, [WAIT(l=0), O("s_barrier")]); fx(a6+7, [O("ds_read_b128 %s, v%d offset:%d" % (vr(OT, 4), OR, ODDO + 3072), tag="od")])
            fx(a0_, [O("s_nop 1")]); fx(a0_+1, [O("s_nop 1")]); fx(a0_+2, [O("s_nop 0")] + pkcvt(tile, 0)); fx(a0_+3, store(tile, 0)[:1] + pkcvt(tile, 1)); fx(a0_+4, store(tile, 0)[1:])
            go = a0_+5 if NL < 8 else a6+13
            fx(go, oddso(3)); fx(go+1, [WAIT(l="od")]); fx(go+2, [oddst(3)])
            fx(a1_, [O("s_nop 1")]); fx(a1_+1, [O("s_nop 1")]); fx(a1_+2, [O("s_nop 0")] + pkcvt(tile, 2)); fx(a1_+3, store(tile, 1)[:1] + pkcvt(tile, 3)); fx(a1_+4, store(tile, 1)[1:])
        emit(weave(mf, fixed, [], 0, 0))
        emit(stamp("m%d" % (bi+4)))
    lt = S2[3]
    Tl = [O("s_nop 6")] + pkcvt(lt, 4) + pkcvt(lt, 5) + store(lt, 2)[1:]
    assert om[0] == 3 and st8["vis"] >= 7
    emit(Tl)
    if cfg.stamps:
        emit(stamp("z1")); emit([O("s_waitcnt vmcnt(0)")]); emit(stamp("z2"))
        S = [O("s_waitcnt lgkmcnt(0)"), O("s_mov_b32 s50, 0x10000000"), O("s_mov_b32 s51, 0x20000"), O("v_mov_b32 v40, 0")]
        for i in range(stampn[0]): S.append(O("v_writelane_b32 v40, s%d, %d" % (52+2*i, i)))
        S += [O("s_lshl_b32 s3, s2, 2"), O("s_add_u32 s3, s3, s%d" % sW), O("s_lshl_b32 s3, s3, 8"),
              O("v_mbcnt_lo_u32_b32 v41, -1, 0"), O("v_mbcnt_hi_u32_b32 v41, -1, v41"), O("v_lshlrev_b32 v41, 2, v41"),
              O("buffer_store_dword v40, v41, s[48:51], s3 offen sc1")]
        emit(S)
    emit([O("L_end:"), O("s_endpgm")])
    errs = resolve_and_verify(trace) + semcheck(trace)
    for e in errs[:40]: print("ERR", e, file=sys.stderr)
    if errs: raise Exception("verify failed: %d" % len(errs))
    return code

def render(code, kname):
    hdr = open('cdna_kernels/%s.s.ref' % NAME).read().split('\n')
    L = [l for l in hdr if l.startswith(';') and '@launch' not in l]
    L += ["; @launch grid=(256,1,1) block=(256,1,1) lds=163840", '.amdgcn_target "amdgcn-amd-amdhsa--gfx950"', ".text",
          ".globl %s" % kname, ".p2align 8", ".type %s,@function" % kname, "%s:" % kname]
    L += code
    if cfg.cpf: L += [".fill 3000, 4, 0xbf810000"]
    L += ['.section .rodata,"a"', ".p2align 6", ".amdhsa_kernel %s" % kname, "  .amdhsa_next_free_vgpr 512", "  .amdhsa_next_free_sgpr 102",
          "  .amdhsa_accum_offset 256", "  .amdhsa_group_segment_fixed_size 0", "  .amdhsa_kernarg_size 56", "  .amdhsa_user_sgpr_count 2",
          "  .amdhsa_user_sgpr_kernarg_segment_ptr 1", "  .amdhsa_system_sgpr_workgroup_id_x 1", ".end_amdhsa_kernel"]
    return '\n'.join(L) + '\n'
def addrs(lines, kname):
    import subprocess
    lab = []
    for i, l in enumerate(lines): lab += ["Lq%d:" % i, l]
    open("_a.s", "w").write(render(lab, kname))
    subprocess.run(["clang", "-x", "assembler", "-target", "amdgcn-amd-amdhsa", "-mcpu=gfx950", "-c", "_a.s", "-o", "_a.o"], check=True)
    out = subprocess.run(["llvm-objdump", "-t", "_a.o"], capture_output=True, text=True).stdout
    A = {}
    for l in out.splitlines():
        p = l.split()
        if p and p[-1].startswith("Lq"): A[int(p[-1][2:])] = int(p[0], 16)
    return [A[i] for i in range(len(lines))]
def write(path, kname=NAME+"_kernel"):
    code = build()
    if cfg.nostore: code = [o for o in code if not (o.sem and o.sem[0] in ("ST", "OS"))]
    lines = [("" if o.kind == "L" else "    ") + o.render() for o in code]
    if cfg.alt:
        import re as _re
        global stampnames
        names1 = list(stampnames)
        save = {k: getattr(cfg, k) for k in cfg.alt}
        for k, v in cfg.alt.items(): setattr(cfg, k, v)
        l2 = [("" if o.kind == "L" else "    ") + o.render() for o in build()]
        for k, v in save.items(): setattr(cfg, k, v)
        assert names1 == stampnames, (names1, stampnames)
        i = lines.index("@SPLIT"); assert lines[:i+1] == l2[:i+1]
        l2 = [_re.sub(r"\bL_(chk|ok|end)\b", r"L_\g<1>2", x) for x in l2[i+1:]]
        lines = lines[:i] + ["    s_bitcmp1_b32 s2, %d" % cfg.gbit, "    s_cbranch_scc1 L_alt"] + lines[i+1:] + [".p2align 6", "L_alt:"] + l2
    lines = [l for l in lines if l != "@SPLIT"]
    if any(l.startswith("@H") for l in lines):
        ret = lines.index("L_padret:")
        npad = 0
        for k in range(4):
            tmp = [(l[3:] if l.startswith("@H") else l) for l in lines] + ["L_pad%d:" % x for x in range(npad, 4)]
            A = addrs(tmp, kname)
            lastpad = max([ret] + [i for i, l in enumerate(lines) if l.startswith("L_pad") and l != "L_padret:"])
            bnd = (A[lastpad]//4096 + 1 + (cfg.padskip if k == 0 else 0))*4096
            i = next((i for i in range(lastpad+1, len(lines)) if A[i] >= bnd + cfg.padoff and "v_mfma" in lines[i-1] and "v_mfma" in lines[i]), None)
            j = next((i for i in range(lastpad+1, len(lines)) if A[i] >= bnd), None)
            if j is None: break
            if i is None or A[i] >= bnd + 56: i = next(i for i in range(j, len(lines)) if not lines[i].lstrip().startswith(("s_cselect", "s_cbranch", "L_", ".")))
            lines[i:i] = ["L_pad%d:" % k, "    s_cbranch_vccnz L_padret"]; npad += 1
        lines = [(l[3:] if int(l[2]) < npad else "    s_nop 0") if l.startswith("@H") else l for l in lines]
        print("pads:", npad, file=sys.stderr)
    open(path, 'w').write(render(lines, kname))
if __name__ == "__main__":
    write("v13.s")
```

```python
import gen13, sys
from final import BASE as B0, g, X4n
pa = [[(3, 1), (3, 2), (0, 0), (1, 0), (1, 1), (1, 2)], [(0, 1), "w", (0, 2), "o", "w", (2, 0), (2, 1), "w", (2, 2), "w", (4, 0)], [(4, 1), (4, 2), "o", (5, 0), (5, 1), (5, 2)], [(6, 0), (6, 1), "o", (6, 2)]]
gj = g.replace(X4n*4, X4n*2 + "J " + X4n + "H " + X4n)
gz = gj.replace("ta@72,w1@80,w1@88,tb@96 w1 Z", "ta@66,w1@74,w1@80,w1@86,tb@90,w1@97 Z")
BASE = dict(B0, plan=pa, early=gz, cpl=256)
def make(path, **kw):
    c = gen13.Cfg(); gen13.cfg = c
    for k, v in dict(BASE, **kw).items(): setattr(c, k, v)
    gen13.write(path)
if __name__ == "__main__":
    make("f2.s")
    make("f2n.s", early=gz.replace("J ", "").replace("H ", ""), cpl=176)
```

```python
import sys, struct
from gen_core import *
NAME = "standalone__layernorm_linear__sampling"
def f2u(f): return struct.unpack('<I', struct.pack('<f', f))[0]
NB = 32768*896

class Cfg:
    stamps = False
    sites = "m"
    early = "G x12 A A2 x4 B C:x2@60 x2 d4 C:x2@60 x2 d4 C:x2@60 x2 d4 C:x2@60 x2 d4 C:w1@60 w2 d4 C:w1@60 w2 d4 Z C:w1@60 w2 d4 C:w3@50,w2@60,ta@70,tb@85"
    imgoff = [0, 7168]*8
    worder = {}
    horder = {}
    xpol = " nt"
    spol = " sc1"
    cpf = 4
    plan = None
    cyc = False
    inw = True
    pace = 14
    endv = 2
    fo = 3
    lead = 7
    e13 = 14
    bars = (0, 2)
    hwid = True
    twopass = True
    alt = None
    gbit = 7
    cpl = 168
    sbar = 0
    joff = 0
    padskip = 1
    padoff = 0
    parkd = ()
    eager = 0
    nocf = False
    nl = 4
    lhi = 62
    lpol = None
    w64 = False
    wlate = False
    nostore = False
    nobar2 = False
    gw = 8
    gwstep = 2
    minp = 12
    lat = 3
    tro = 5
    ybar = 4
    nobar = False
    ywr = 8
    trn = 6
cfg = Cfg()

XR, ST, OW, OR, OS, TR1, TR2 = 0, 20, 22, 16, 21, 5, 23
F = [8, 12]
T = 16
VO = 16
ACC = {0: 36, 1: 64, 2: 92, 3: 228}
LWY, LWZ, RA, RB, VL, SS, SQ = 120, 1, 128, 129, 130, 132, 134
PARK = [24, 28, 32, 6]
U = 144; GE = 172; BE = 200; EPS = 127
RAW = [228, 242, 106, 92, 78, 64, 50, 36]
sW, sMASK, sWO, sWLIM, sREG, sXO, sOO, sT, sRET, sT2, sO2, sPAR, sINV = 32, 33, 34, 35, 36, 37, 38, 39, 40, 45, 46, 47, 44
SX, SG, SWd, SO = 16, 20, 24, 28
WREG = 40960
IMG = {"A": 0, "B": 7168}
YO = 15872; ZO = YO + 14336
T7O = 7168; ODDO = 10752; FLAGO = 15616
GTAB = 7168
def wf(j, t, half=None, tmp=None):
    f = 7*{13: 0, 14: 13}.get(j, j) + t
    p, r = ("a", 4*f) if f < 64 else ("v", 120 + 4*(f-64))
    if tmp is not None: p, r = "v", tmp
    if half is None: return "%s[%d:%d]" % (p, r, r+3)
    return "%s[%d:%d]" % (p, r+2*half, r+2*half+1)
def vr(a, n): return "v[%d:%d]" % (a, a+n-1)
O = Op
stampn = [0]; stampnames = []
def stamp(site="m"):
    if not cfg.stamps or site[0] not in cfg.sites + "z": return []
    i = stampn[0]; stampn[0] += 1; stampnames.append(site)
    assert 52+2*i+1 <= 101
    return [O("%s s[%d:%d]" % ("s_memtime" if cfg.cyc else "s_memrealtime", 52+2*i, 53+2*i), kind="S", cost=0.01)]
def mfma(acc, j, t, fb, tmp=None, tile=None):
    a = vr(acc+4*t, 4)
    if tile >= 4: return O("v_mfma_f32_16x16x32_bf16 %s, %s, %s, %s" % (a, wf(j, t), vr(fb, 4), "0" if j == 1 else a), sem=("M", tile, j % 14, t))
    return O("v_mfma_f32_16x16x32_bf16 %s, %s, %s, %s" % (a, wf(j, t, None, tmp), fb if isinstance(fb, str) else vr(fb, 4), "0" if j == 0 else a), sem=("M", tile, j, t))
m0state = [None]; TR2late = [False]
def setm0(off):
    if m0state[0] == off: return []
    m0state[0] = off
    return [O("s_add_u32 m0, s%d, %d" % (sREG, off))]
xn = [0]; wn = [0]
def xdma(n):
    L = []
    for _ in range(n):
        tl, c = divmod(xn[0], 4); xn[0] += 1
        if c == 0 and tl > 0: L.append(O("s_add_u32 s%d, s%d, 3584" % (sXO, sXO)))
        if c < 3: L.append(O("buffer_load_dwordx4 %s, v%d, s[%d:%d], s%d offen offset:%d%s" % (vr(RAW[tl]+4*c, 4), RA, SX, SX+3, sXO, 256*c, cfg.xpol), tag="x%d_%d" % (tl, c)))
        else: L.append(O("buffer_load_dwordx2 %s, v%d, s[%d:%d], s%d offen offset:768%s" % (vr(RAW[tl]+12, 2), RB, SX, SX+3, sXO, cfg.xpol), tag="x%d_%d" % (tl, c)))
    return L
def ioff(j): return cfg.imgoff[j]
def worder(j): return cfg.worder.get(j, list(range(7)))
def wland(j, h):
    o = worder(j); mem = range(0, 4) if h == 0 else range(3, 7)
    return "w%d_%d" % (j, max(mem, key=o.index))
def wneeds(j, i):
    a = ioff(j) + 1024*i; needs = []
    for k in range(j):
        for h in range(2):
            lo = ioff(k) + 3584*h
            if a < lo + 3584 and lo < a + 1024: needs.append((k, h))
    return needs
def wdma(n):
    L = []
    for _ in range(n):
        j, ii = divmod(wn[0], 7); wn[0] += 1
        i = worder(j)[ii]
        m0 = ioff(j) + (3072 if i >= 3 else 0)
        pre = setm0(m0)
        if ii == 0 and j > 0:
            pre.append(O("s_add_u32 s%d, s%d, 28672" % (sWO, sWO), sem=("ADV", "w", 0.5)))
            pre.append(O("s_cmp_ge_u32 s%d, s%d" % (sWO, sWLIM), tag="scc:w"))
            pre.append(O("s_cselect_b32 s%d, s%d, s%d" % (sWO, sT2, sWO), needs=["scc:w"], sem=("ADV", "w", 0.5)))
        if len(pre) == 1: pre.append(O("s_nop 0"))
        L += pre
        needs = ["tr%dh%d" % x for x in wneeds(j, i)]
        a = ioff(j) + 1024*i
        if GTAB <= a < GTAB + 4096: needs.append("gbr")
        L.append(O("buffer_load_dwordx4 v%d, s[%d:%d], s%d offen offset:%d lds" % (VO+i, SWd, SWd+3, sWO, 1024*(i-3 if i >= 3 else i)), tag="w%d_%d" % (j, i), needs=needs, sem=("DM", m0, "w", j)))
    return L
def trreads(j, h, ts=range(7), tmp=None, tag=None):
    L = []; ts = list(ts)
    for k, t in enumerate(ts):
        off = ioff(j) + h*3584 + ((32*t if cfg.nocf else 64*(t >> 1) + 8*(t & 1)) if t < 6 else 0)
        tg = tag or "tr%dh%d" % (j, h)
        L.append(O("ds_read_b64_tr_b16 %s, v%d offset:%d" % (wf(j, t, h, None if tmp is None else tmp+4*k), TR1 if t < 6 else (6 if TR2late[0] else TR2), off),
                   tag=(tg if k == len(ts)-1 else tg + "#%d" % t), needs=["w%d_%d" % (j, i) for i in (range(0, 4) if h == 0 else range(3, 7))], sem=("W", j % 14, t, h)))
    return L
def dpp(r, n): return O("v_add_f32_dpp v%d, v%d, v%d row_ror:%d row_mask:0xf bank_mask:0xf" % (r, r, r, n))
def ln_code1(li):
    S, Q = SS, SQ; R, N = SQ+1, SS+1
    RW = RAW[li]
    dst = [RW, RW+4, RW+8, RW+12] if li < 7 and li not in cfg.parkd else PARK
    p = lambda a: vr(a, 2)
    A = []
    for i in range(14):
        if i % 4 == 0: A.append(WAIT(v="x%d_%d" % (li, i//4)))
        if i == 12: A += stamp("r%d" % li)
        A += [O("v_lshlrev_b32 v%d, 16, v%d" % (U+2*i, RW+i)), O("v_and_b32 v%d, s%d, v%d" % (U+2*i+1, sMASK, RW+i))]
        if i == 1: A += [O("v_pk_add_f32 %s, %s, %s" % (p(S), p(U), p(U+2))), O("v_pk_mul_f32 %s, %s, %s" % (p(Q), p(U), p(U)))]
        if i >= 2:
            k = i-1
            if k >= 2: A.append(O("v_pk_add_f32 %s, %s, %s" % (p(S), p(S), p(U+2*k))))
            A.append(O("v_pk_fma_f32 %s, %s, %s, %s" % (p(Q), p(U+2*k), p(U+2*k), p(Q))))
    A += [O("v_pk_add_f32 %s, %s, %s" % (p(S), p(S), p(U+26))), O("v_pk_fma_f32 %s, %s, %s, %s" % (p(Q), p(U+26), p(U+26), p(Q)))]
    A += [O("v_add_f32 v%d, v%d, v%d" % (S, S, S+1)), O("v_add_f32 v%d, v%d, v%d" % (Q, Q, Q+1)), O("s_nop 0")]
    for n in (8, 4, 2, 1):
        A += [dpp(S, n), dpp(Q, n)] + ([O("s_nop 0")] if n != 1 else [])
    A += [O("v_mul_f32 v%d, 0x%08x, v%d" % (S, f2u(1.0/448), S)),
          O("v_mul_f32 v%d, v%d, v%d" % (N, S, S)),
          O("v_fma_f32 v%d, v%d, s%d, -v%d" % (Q, Q, sINV, N)),
          O("v_max_f32 v%d, 0, v%d" % (Q, Q)),
          O("v_add_f32 v%d, 0x%08x, v%d" % (Q, f2u(1e-5), Q)),
          O("v_rsq_f32 v%d, v%d" % (R, Q)),
          O("s_nop 0"),
          O("v_mul_f32_e64 v%d, -v%d, v%d" % (N, S, R))]
    if li == 0: A.append(WAIT(l="gbr"))
    for c in range(4):
        n = 4 if c < 3 else 2
        for i in range(4*c, 4*c+n):
            A.append(O("v_pk_fma_f32 %s, %s, %s, %s op_sel:[0,1,1] op_sel_hi:[1,1,1]" % (p(U+2*i), p(U+2*i), p(Q), p(S))))
        for i in range(4*c, 4*c+n):
            A.append(O("v_pk_fma_f32 %s, %s, %s, %s" % (p(U+2*i), p(U+2*i), p(GE+2*i), p(BE+2*i))))
        for i in range(n):
            A.append(O("v_cvt_pk_bf16_f32 v%d, v%d, v%d" % (dst[c]+i, U+8*c+2*i, U+8*c+2*i+1)))
    return A
def ln_code3(li):
    S, Q = SS, SQ; R, N = SQ+1, SS+1
    C = 136
    RW = RAW[li]
    dst = [RW, RW+4, RW+8, RW+12] if li < 7 and li not in cfg.parkd else PARK
    p = lambda a: vr(a, 2)
    sub = lambda i: O("v_pk_add_f32 %s, %s, %s op_sel_hi:[1,0] neg_lo:[0,1] neg_hi:[0,1]" % (p(U+2*i), p(U+2*i), p(C)))
    def acc(k):
        if k == 0: return [O("v_pk_mul_f32 %s, %s, %s" % (p(Q), p(U), p(U)))]
        return [O("v_pk_add_f32 %s, %s, %s" % (p(S), p(U) if k == 1 else p(S), p(U+2*k))), O("v_pk_fma_f32 %s, %s, %s, %s" % (p(Q), p(U+2*k), p(U+2*k), p(Q)))]
    A = []
    for i in range(14):
        if i % 4 == 0: A.append(WAIT(v="x%d_%d" % (li, i//4)))
        if i == 12: A += stamp("r%d" % li)
        A += [O("v_lshlrev_b32 v%d, 16, v%d" % (U+2*i, RW+i)), O("v_and_b32 v%d, s%d, v%d" % (U+2*i+1, sMASK, RW+i))]
        if i == 1: A.append(O("v_mov_b32_dpp v%d, v%d row_newbcast:0 row_mask:0xf bank_mask:0xf" % (C, U)))
        if i >= 2: A.append(sub(i-2))
        if i >= 3: A += acc(i-3)
    A += [sub(12)] + acc(11) + [sub(13)] + acc(12) + acc(13)
    A += [O("v_add_f32 v%d, v%d, v%d" % (S, S, S+1)), O("v_add_f32 v%d, v%d, v%d" % (Q, Q, Q+1)), O("s_nop 0")]
    for n in (8, 4, 2, 1):
        A += [dpp(S, n), dpp(Q, n)] + ([O("s_nop 0")] if n != 1 else [])
    A += [O("v_mul_f32 v%d, s%d, v%d" % (S, sINV, S)),
          O("v_mul_f32 v%d, s%d, v%d" % (Q, sINV, Q)),
          O("v_add_f32 v%d, v%d, v%d" % (N, C, S)),
          O("v_fma_f32 v%d, -v%d, v%d, v%d" % (Q, S, S, Q)),
          O("v_cvt_pk_bf16_f32 v%d, v%d, v%d" % (N, N, N)),
          O("v_max_f32 v%d, 0, v%d" % (Q, Q)),
          O("v_and_b32 v%d, s%d, v%d" % (N, sMASK, N)),
          O("v_add_f32 v%d, v%d, v%d" % (Q, EPS, Q)),
          O("v_rsq_f32 v%d, v%d" % (R, Q)),
          O("v_sub_f32 v%d, v%d, v%d" % (N, C, N)),
          O("v_mul_f32 v%d, v%d, v%d" % (N, N, R))]
    if li == 0: A.append(WAIT(l="gbr"))
    for c in range(4):
        n = 4 if c < 3 else 2
        for i in range(4*c, 4*c+n):
            A.append(O("v_pk_fma_f32 %s, %s, %s, %s op_sel:[0,1,1] op_sel_hi:[1,1,1]" % (p(U+2*i), p(U+2*i), p(Q), p(S))))
        for i in range(4*c, 4*c+n):
            A.append(O("v_pk_fma_f32 %s, %s, %s, %s" % (p(U+2*i), p(U+2*i), p(GE+2*i), p(BE+2*i))))
        for i in range(n):
            A.append(O("v_cvt_pk_bf16_f32 v%d, v%d, v%d" % (dst[c]+i, U+8*c+2*i, U+8*c+2*i+1)))
    return A
def ln_code(li):
    if not cfg.twopass: return ln_code1(li)
    if cfg.twopass == 3: return ln_code3(li)
    S, Q = SS, SQ; R, N = SQ+1, SS+1
    S2 = 136
    RW = RAW[li]
    dst = [RW, RW+4, RW+8, RW+12] if li < 7 and li not in cfg.parkd else PARK
    p = lambda a: vr(a, 2)
    A = []
    for i in range(14):
        if i % 4 == 0: A.append(WAIT(v="x%d_%d" % (li, i//4)))
        if i == 12: A += stamp("r%d" % li)
        A += [O("v_lshlrev_b32 v%d, 16, v%d" % (U+2*i, RW+i)), O("v_and_b32 v%d, s%d, v%d" % (U+2*i+1, sMASK, RW+i))]
        if i == 2: A.append(O("v_pk_add_f32 %s, %s, %s" % (p(S), p(U), p(U+2))))
        if i >= 3: A.append(O("v_pk_add_f32 %s, %s, %s" % (p(S), p(S), p(U+2*(i-1)))))
    A += [O("v_pk_add_f32 %s, %s, %s" % (p(S), p(S), p(U+26))), O("v_add_f32 v%d, v%d, v%d" % (S, S, S+1))]
    for n in (8, 4, 2, 1): A += [O("s_nop 1"), dpp(S, n)]
    A += [O("v_mul_f32 v%d, 0x%08x, v%d" % (S, f2u(-1.0/448), S))]
    sub = lambda i: O("v_pk_add_f32 %s, %s, %s op_sel_hi:[1,0]" % (p(U+2*i), p(U+2*i), p(S)))
    def sq(i):
        q = Q if i % 2 == 0 else S2
        if i < 2: return O("v_pk_mul_f32 %s, %s, %s" % (p(q), p(U+2*i), p(U+2*i)))
        return O("v_pk_fma_f32 %s, %s, %s, %s" % (p(q), p(U+2*i), p(U+2*i), p(q)))
    A += [sub(0), sub(1)]
    for i in range(2, 14): A += [sub(i), sq(i-2)]
    A += [sq(12), sq(13)]
    A += [O("v_cvt_pk_bf16_f32 v%d, v%d, v%d" % (N, S, S)), O("v_pk_add_f32 %s, %s, %s" % (p(Q), p(Q), p(S2))),
          O("v_and_b32 v%d, s%d, v%d" % (N, sMASK, N)), O("v_add_f32 v%d, v%d, v%d" % (Q, Q, Q+1)),
          O("v_sub_f32 v%d, v%d, v%d" % (N, N, S)), O("s_nop 0"), dpp(Q, 8)]
    for n in (4, 2, 1): A += [O("s_nop 1"), dpp(Q, n)]
    A += [O("v_fma_f32 v%d, v%d, s%d, v%d" % (Q, Q, sINV, EPS)),
          O("v_rsq_f32 v%d, v%d" % (R, Q)),
          O("s_nop 0"),
          O("v_mul_f32 v%d, v%d, v%d" % (N, N, R))]
    if li == 0: A.append(WAIT(l="gbr"))
    for c in range(4):
        n = 4 if c < 3 else 2
        for i in range(4*c, 4*c+n):
            A.append(O("v_pk_fma_f32 %s, %s, %s, %s op_sel:[0,1,1] op_sel_hi:[1,1,1]" % (p(U+2*i), p(U+2*i), p(Q), p(S))))
        for i in range(4*c, 4*c+n):
            A.append(O("v_pk_fma_f32 %s, %s, %s, %s" % (p(U+2*i), p(U+2*i), p(GE+2*i), p(BE+2*i))))
        for i in range(n):
            A.append(O("v_cvt_pk_bf16_f32 v%d, v%d, v%d" % (dst[c]+i, U+8*c+2*i, U+8*c+2*i+1)))
    return A
def lnwrites(i):
    lw, off = (LWY, YO + 256*i) if i < 4 else (LWZ, ZO + 3584*(i-4))
    src = [RAW[i], RAW[i]+4, RAW[i]+8, RAW[i]+12]; nd = []
    if i in cfg.parkd: src = PARK
    if i == 7: off = T7O; src = PARK; nd = ["tr13h0"]
    if i == 7 and cfg.w64:
        return [O("ds_write_b64 v%d, %s offset:%d" % (lw+c//2, vr(src[c//2]+2*(c & 1), 2), off+8*(c & 1)), cost=3, needs=nd) for c in range(7)]
    return [O("ds_write_b128 v%d, %s offset:%d" % (lw+c, vr(src[c], 4), off), cost=5, needs=nd) for c in range(3)] + [O("ds_write_b64 v%d, %s offset:%d" % (lw+3, vr(src[3], 2), off), cost=3, needs=nd)]
def xoff(tile, j):
    if tile == 7: return T7O + 256*j
    return YO + 1024*j + 256*tile if tile < 4 else ZO + 3584*(tile-4) + 256*j

def cost(op):
    if op.cost: return op.cost
    return {"V": 1, "S": 1, "W": 1, "D": 2, "G": 3, "K": 1, "L": 0}[op.kind]
def weave(mf, fixed, stream, g0, g1):
    n = len(mf)
    for ex in range(0, 400):
        extra = ex * 0.02
        gaps = [list(fixed.get(g, [])) for g in range(n)]
        si = 0; credit = 0.0
        for g in range(g0, g1+1):
            used = 0; hasV = False
            for o in gaps[g]:
                if o.kind == "V" and used < 1: used = 1
                used += cost(o); hasV |= o.kind == "V"
            credit += extra
            while si < len(stream):
                o = stream[si]
                if o.at is not None and o.at > g: break
                u = used
                if o.kind == "V" and u < 1: u = 1
                if o.kind in ("D", "G") and hasV: break
                u += cost(o)
                over = max(0, u-3.1) - max(0, used-3.1)
                if over > 0:
                    if used < 0.5: pass
                    elif credit >= over: credit -= over
                    else: break
                gaps[g].append(o); used = u; hasV |= o.kind == "V"; si += 1
        if si == len(stream): break
    else:
        raise Exception("weave failed")
    out = []; tot = 0
    for g in range(n):
        out.append(mf[g]); out += gaps[g]
        u = 0
        for o in gaps[g]:
            if o.kind == "V" and u < 1: u = 1
            u += cost(o)
        tot += max(4, 1+u)
    print("weave: n=%d extra=%.2f est cycles=%d (ideal %d)" % (n, extra, tot*4, n*16), file=sys.stderr)
    return out
def cvt(dst, a): return O("v_cvt_pk_bf16_f32 v%d, v%d, v%d" % (dst, a, a+1), sem=("C",))

def prologue():
    L = []
    a = lambda s, **k: L.append(O(s, **k))
    L += stamp("z")
    a("s_load_dwordx2 s[%d:%d], s[0:1], 0" % (SX, SX+1))
    a("s_load_dwordx4 s[4:7], s[0:1], 8")
    a("s_load_dwordx2 s[%d:%d], s[0:1], 24" % (SWd, SWd+1))
    a("s_load_dwordx2 s[%d:%d], s[0:1], 32" % (SO, SO+1))
    if cfg.stamps: a("s_load_dwordx2 s[48:49], s[0:1], 48")
    a("s_cmp_ge_u32 s2, 256", tag="scc:e"); a("s_cbranch_scc1 L_end", needs=["scc:e"])
    LN_ = 40
    a("v_lshrrev_b32 v43, 6, v0")
    a("v_and_b32 v%d, 63, v0" % LN_)
    a("v_readfirstlane_b32 s%d, v43" % sW)
    a("s_lshr_b32 s3, s2, 3")
    if cfg.cpf:
        nl = -(-cfg.cpl // (4*cfg.cpf))
        a("s_getpc_b64 s[12:13]")
        if cfg.hwid:
            assert cfg.cpf == 16
            a("s_getreg_b32 s11, hwreg(HW_REG_HW_ID, 8, 2)"); a("s_getreg_b32 s14, hwreg(HW_REG_HW_ID, 13, 2)")
            a("s_lshl2_add_u32 s11, s11, s14"); a("s_lshl2_add_u32 s11, s11, s%d" % sW)
        else:
            a("s_and_b32 s11, s3, %d" % (cfg.cpf-1)); a("s_lshl_b32 s11, s11, 2"); a("s_add_u32 s11, s11, s%d" % sW)
        a("s_mul_i32 s11, s11, %d" % (nl*128)); a("s_add_u32 s12, s12, s11", tag="scc:c"); a("s_addc_u32 s13, s13, 0", needs=["scc:c"])
        a("v_min_u32 v48, %d, v%d" % (nl-1, LN_)); a("v_lshlrev_b32 v48, 7, v48")
        a("v_mov_b32 v49, s13"); a("v_add_co_u32 v48, vcc, s12, v48")
    a("v_lshlrev_b32 v%d, 4, v%d" % (VL, LN_))
    a("s_mul_i32 s%d, s2, %d" % (sOO, 128*896))
    if cfg.cpf:
        a("v_addc_co_u32 v49, vcc, 0, v49, vcc")
        a("global_load_dword v44, v[48:49], off")
    a("s_mov_b32 s%d, %d" % (SX+2, NB)); a("s_mov_b32 s%d, 0x20000" % (SX+3))
    a("s_mul_i32 s%d, s%d, 28672" % (sXO, sW))
    a("s_add_u32 s%d, s%d, s%d" % (sXO, sXO, sOO))
    a("s_mul_i32 s%d, s%d, %d" % (sREG, sW, WREG))
    a("s_movk_i32 s%d, 896" % (SG+2)); a("s_mov_b32 s%d, 0x20000" % (SG+3))
    a("s_movk_i32 s10, 896"); a("s_mov_b32 s11, 0x20000")
    a("s_mov_b32 s%d, %d" % (SWd+2, 448*896)); a("s_mov_b32 s%d, 0x20000" % (SWd+3))
    a("v_and_b32 v41, 15, v%d" % LN_); a("v_lshrrev_b32 v42, 4, v%d" % LN_)
    a("v_mul_u32_u24 v45, 896, v42")
    a("v_lshl_add_u32 v%d, v41, 4, v45" % RA); a("v_lshl_add_u32 v%d, v41, 3, v45" % RB)
    a("s_waitcnt lgkmcnt(0)")
    return L
def gbload():
    return [O("s_mov_b32 s%d, s4" % SG), O("s_mov_b32 s%d, s5" % (SG+1)), O("s_mov_b32 s8, s6"), O("s_mov_b32 s9, s7"),
            O("buffer_load_dwordx4 v[136:139], v%d, s[%d:%d], 0 offen" % (VL, SG, SG+3)),
            O("buffer_load_dwordx4 v[140:143], v%d, s[8:11], 0 offen" % VL, tag="gb")]
def wsetup():
    L = []
    a = lambda s, **k: L.append(O(s, **k))
    LN_ = 40
    a("s_mul_i32 s%d, s3, 28672" % sWO)
    a("s_add_u32 s%d, s%d, s%d" % (sWO, sWO, sT2))
    a("s_add_u32 s%d, s%d, %d" % (sWLIM, sT2, 14*28672))
    a("s_lshr_b32 s14, s2, 3"); a("s_lshl_b32 s14, s14, 2"); a("s_add_u32 s14, s14, s%d" % sW); a("s_mul_i32 s14, s14, 3200")
    a("v_min_u32 v131, 24, v%d" % LN_); a("v_lshlrev_b32 v131, 7, v131")
    a("s_movk_i32 s12, 672"); a("s_movk_i32 s13, 896")
    a("v_mul_u32_u24 v45, 4682, v%d" % LN_)
    for i in range(7):
        const = (3072 if i >= 3 else 0) - (10752 if i >= 4 else 0)
        if i: a("v_add_u32 v46, %d, v45" % (64*i*4682)); a("v_lshrrev_b32 v46, 16, v46")
        else: a("v_lshrrev_b32 v46, 16, v45")
        a("v_and_b32 v47, 12, v46")
        a("v_mad_u32_u24 v%d, v46, s12, v%d" % (VO+i, VL))
        a("v_mad_u32_u24 v%d, v47, s13, v%d" % (VO+i, VO+i))
        if i == 3:
            a("v_lshrrev_b32 v47, 4, v46"); a("v_mul_u32_u24 v47, 10752, v47"); a("v_sub_u32 v%d, v%d, v47" % (VO+i, VO+i))
        if const: a("v_add_u32 v%d, %d, v%d" % (VO+i, const & 0xffffffff, VO+i))
    return L
FTAB = 0x1e
def addr_math(part):
    L = []
    a = lambda s, **k: L.append(O(s, **k))
    LN_, P_, RR, GA = 40, 41, 42, 52
    a("s_mov_b32 s%d, %d" % (SO+2, NB)); a("s_mov_b32 s%d, 0x20000" % (SO+3))
    a("s_mov_b32 s%d, 0xffff0000" % sMASK)
    a("s_and_b32 s15, s%d, 1" % sW)
    a("s_mov_b32 s%d, 0x%08x" % (sINV, f2u(1.0/448)))
    a("v_mov_b32 v%d, 0x%08x" % (EPS, f2u(1e-5)))
    a("s_sub_u32 s%d, s3, 14" % sT); a("s_min_u32 s3, s3, s%d" % sT)
    a("s_sub_u32 s%d, s3, 14" % sT); a("s_min_u32 s3, s3, s%d" % sT)
    a("s_mul_i32 s%d, s%d, 224" % (sT2, sW))
    a("v_lshlrev_b32 v%d, 4, v%d" % (GA, P_))
    a("v_cmp_eq_u32 vcc, 3, v%d" % RR)
    a("v_lshlrev_b32 v45, 5, v%d" % P_)
    a("v_mov_b32 v46, 0x100")
    a("v_cndmask_b32 v45, v%d, v45, vcc" % GA)
    a("v_cndmask_b32_e64 v46, v46, 16, vcc")
    a("v_lshl_add_u32 v50, v%d, 9, v45" % RR)
    a("v_add_u32 v50, s%d, v50" % sREG); a("v_add_u32 v%d, s%d, v%d" % (GA, sREG, GA))
    a("v_add_u32 v51, v50, v46")
    a("s_movk_i32 s12, 0x78")
    a("v_lshrrev_b32 v45, 2, v%d" % P_)
    a("v_lshlrev_b32 v46, 1, v45"); a("v_bfe_u32 v46, s12, v46, 2")
    a("v_xor_b32 v46, v46, v%d" % RR)
    a("v_lshrrev_b32 v47, 1, v46"); a("v_and_b32 v48, 3, v%d" % P_); a("v_xor_b32 v47, v47, v48")
    a("v_lshlrev_b32 v47, 4, v47"); a("v_lshl_add_u32 v47, v46, 6, v47")
    a("v_mul_u32_u24 v45, %d, v45" % WREG); a("v_add_u32 v%d, v45, v47" % XR)
    a("s_lshl_b32 s41, s%d, 1" % sW); a("s_lshr_b32 s41, s12, s41"); a("s_and_b32 s41, s41, 3")
    def common(qexpr_ops):
        for s in qexpr_ops: a(s)
        a("v_xor_b32 v46, s41, v46")
        a("v_lshrrev_b32 v47, 1, v46"); a("v_xor_b32 v47, v47, v%d" % RR); a("v_lshlrev_b32 v47, 4, v47")
        a("v_lshl_add_u32 v47, v46, 6, v47"); a("v_add_u32 v47, s%d, v47" % sREG)
    common(["v_and_b32 v46, 3, v%d" % P_])
    a("v_lshrrev_b32 v46, 2, v%d" % P_); a("v_subrev_u32 v46, s3, v46")
    for c in range(3):
        if c: a("v_add_u32 v46, 4, v46")
        a("v_add_u32 v48, 14, v46"); a("v_min_u32 v48, v48, v46")
        a("v_lshl_add_u32 v%d, v48, 10, v47" % (LWY+c)); a("v_lshl_add_u32 v%d, v48, 8, v47" % (LWZ+c))
    common(["v_bfe_u32 v46, v%d, 1, 2" % P_])
    a("v_and_b32 v46, 1, v%d" % P_); a("v_lshl_add_u32 v47, v46, 3, v47")
    a("v_lshrrev_b32 v46, 3, v%d" % P_); a("v_add_u32 v46, 12, v46"); a("v_subrev_u32 v46, s3, v46")
    a("v_add_u32 v48, 14, v46"); a("v_min_u32 v48, v48, v46")
    a("v_lshl_add_u32 v%d, v48, 10, v47" % (LWY+3)); a("v_lshl_add_u32 v%d, v48, 8, v47" % (LWZ+3))
    if part == 1: return L[:]
    del L[:]
    a("s_lshl_b32 s41, s15, 5")
    a("v_lshrrev_b32 v45, 2, v%d" % LN_); a("v_mul_u32_u24 v45, 224, v45"); a("v_and_b32 v46, 3, v%d" % LN_)
    a("v_add_u32 v45, s%d, v45" % sREG)
    a("v_lshl_add_u32 v%d, v46, %d, v45" % (TR1, 3 if cfg.nocf else 4)); a("v_add_u32 v%d, s41, v%d" % (TR1, TR1))
    a("s_mul_i32 s12, s15, 192"); a("s_sub_u32 s12, 192, s12")
    a("v_lshl_add_u32 v%d, v46, 3, v45" % TR2); a("v_add_u32 v%d, s12, v%d" % (TR2, TR2))
    return L
def late_addr():
    L = []
    a = lambda s, **k: L.append(O(s, **k))
    P_, RR = 16, 17
    ST, OS, OW, OR = 20, 21, 22, 16
    a("v_mbcnt_lo_u32_b32 v17, -1, 0"); a("v_mbcnt_hi_u32_b32 v17, -1, v17")
    a("v_and_b32 v16, 15, v17"); a("v_lshrrev_b32 v17, 4, v17")
    a("v_lshrrev_b32 v18, 2, v%d" % P_); a("v_and_b32 v19, 3, v%d" % P_); a("v_lshl_add_u32 v18, v18, 5, v19")
    a("v_mul_u32_u24 v18, 896, v18"); a("v_lshl_add_u32 v18, v%d, 4, v18" % RR)
    a("s_lshl_b32 s41, s15, 5"); a("s_add_u32 s12, s41, s%d" % sT2)
    a("v_add_u32 v%d, s12, v18" % ST)
    a("s_lshr_b32 s13, s%d, 1" % sW)
    a("s_mul_i32 s12, s13, 448"); a("s_mul_i32 s%d, s15, 3584" % sPAR); a("s_add_u32 s12, s12, 192")
    a("v_add_u32 v%d, s12, v18" % OS)
    a("v_lshlrev_b32 v18, 5, v%d" % P_)
    a("v_lshl_add_u32 v19, v%d, 3, v18" % RR); a("v_add_u32 v%d, s%d, v19" % (OW, sREG))
    a("v_and_b32 v19, 1, v%d" % RR); a("v_lshl_add_u32 v18, v19, 4, v18")
    a("v_lshrrev_b32 v19, 1, v%d" % RR); a("v_mul_u32_u24 v19, %d, v19" % WREG); a("v_add_u32 v18, v18, v19")
    a("s_mul_i32 s12, s13, %d" % (2*WREG)); a("s_lshl_b32 s42, s15, 9"); a("s_add_u32 s12, s12, s42")
    a("v_add_u32 v%d, s12, v18" % OR)
    return L
def gbtable():
    GA = 52
    L = [WAIT(v="gb")]
    for i in range(8):
        L += [O("v_lshlrev_b32 v%d, 16, v%d" % (56+2*i, 136+i)), O("v_and_b32 v%d, s%d, v%d" % (57+2*i, sMASK, 136+i))]
        if i == 3: L += [O("ds_write_b128 v50, v[56:59] offset:%d" % GTAB), O("ds_write_b128 v51, v[60:63] offset:%d" % GTAB)]
    L += [O("ds_write_b128 v50, v[64:67] offset:%d" % (GTAB+2048)), O("ds_write_b128 v51, v[68:71] offset:%d" % (GTAB+2048))]
    for v in range(7):
        L.append(O("ds_read_b128 %s, v%d offset:%d" % (vr(GE+4*v, 4), GA, GTAB+256*v)))
        L.append(O("ds_read_b128 %s, v%d offset:%d" % (vr(BE+4*v, 4), GA, GTAB+2048+256*v), tag="gbr" if v == 6 else None))
    return L

def half(n):
    j, x = divmod(n, 2)
    return j, cfg.horder.get(j, (0, 1))[x]
def build():
    wn[0] = 0; xn[0] = 0; stampn[0] = 0; del stampnames[:]; m0state[0] = None; TR2late[0] = False
    code = []; trace = []
    def emit(L): code.extend(L); trace.extend(L)
    emit(prologue())
    fb = [0]
    def xread(tile, j):
        return O("ds_read_b128 %s, v%d offset:%d" % (vr(F[fb[0] & 1], 4), XR, xoff(tile, j % 14)), tag="xf", sem=("X", tile, j % 14))
    pre = {}
    def units(seq, nxt):
        mf = []; fixed = {}; starts = []
        for k, u in enumerate(seq):
            tile, j = u[0], u[1]
            g = len(mf); starts.append(g)
            if (tile, j) in pre: cur = pre[(tile, j)]
            else: cur = F[fb[0] & 1]; fb[0] += 1
            n = seq[k+1] if k+1 < len(seq) else nxt
            acc = ACC[tile] if tile < 4 else ACC[2]
            ts = u[3] if len(u) > 3 else range(7)
            for t in ts: mf.append(mfma(acc, j, t, cur, None if len(u) < 3 or u[2] is None else u[2][t], tile))
            if n is not None and (n[0], n[1]) not in pre:
                fixed.setdefault(g, []).append(xread(n[0], n[1]))
                fixed.setdefault(len(mf)-1, []).append(WAIT(l="xf"))
        return mf, fixed, starts
    st8 = dict(ri=0, li=0, th=0, vis=0, wi=0)
    done = set(); waited = set()
    def simple(tok):
        if tok[0] in "xw" and "+" not in tok:
            out = []
            for o in (xdma if tok[0] == "x" else wdma)(int(tok[1:])):
                for tg in o.needs:
                    if tg.startswith("tr") and tg not in waited: waited.add(tg); out.append(WAIT(l=tg))
                out.append(o)
            return out
        if tok[0] == "t" and "+" not in tok:
            j, h = half(st8["th"]); st8["th"] += 1
            return [WAIT(v=wland(j, h))] + trreads(j, h)
        if tok == "y": return [WAIT(l=0)]
        if tok == "-": return []
        if tok == "T":
            return [O("s_mov_b32 s%d, %d" % (SO+2, NB)), O("s_mov_b32 s%d, 0x20000" % (SO+3)),
                    O("v_and_b32 v124, 1, v40"), O("v_mul_u32_u24 v125, %d, v124" % (128*896-4)), O("v_mul_u32_u24 v124, %d, v124" % (448*896-4)),
                    O("buffer_load_dword v125, v125, s[%d:%d], s%d offen" % (SO, SO+3, sOO)),
                    O("buffer_load_dword v124, v124, s[%d:%d], 0 offen" % (SWd, SWd+3))]
        if tok == "|": return [O("@SPLIT", kind="L")]
        if tok == "J": return [O("    s_branch L_main", kind="L"), O(".p2align 12", kind="L"), O(".fill %d, 4, 0xbf810000" % (cfg.joff//4), kind="L"), O("L_main:")]
        if tok == "H":
            hn = st8.setdefault("hn", 0); st8["hn"] += 1
            L = [O("    s_mov_b64 vcc, 1", kind="L")]
            for k in range(4):
                L += [O("@H%d    s_cmp_eq_u32 s%d, %d" % (4*hn+k, sW, k), kind="L"), O("@H%d    s_cbranch_scc1 L_pad%d" % (4*hn+k, 4*hn+k), kind="L")]
            return L + [O("L_padret%d:" % hn), O("s_mov_b64 vcc, 0")]
        if tok == "I":
            return [O("s_lshl_b32 s43, s%d, 2" % sW), O("v_mov_b32 v124, s43"), O("v_mov_b32 v125, 0"), O("v_mov_b32 v126, 1"),
                    O("ds_write_b32 v124, v125 offset:%d" % FLAGO), WAIT(l=0), O("s_barrier")]
        if tok == "S":
            st8["fvis"] = st8["wi"]//4
            return [WAIT(l=0), O("ds_write_b32 v124, v126 offset:%d" % FLAGO)]
        if tok == "Q": return [O("ds_read_b128 v[140:143], v125 offset:%d" % FLAGO, tag="fl")]
        if tok == "K":
            st8["vis"] = st8["fvis"]
            return [O("L_chk:"), WAIT(l="fl"), O("v_and_b32 v140, v140, v141"), O("v_and_b32 v142, v142, v143"), O("v_and_b32 v140, v140, v142"), O("s_nop 0"),
                    O("v_readfirstlane_b32 s43, v140"), O("s_cmp_eq_u32 s43, 1", tag="scc:k"), O("s_cbranch_scc1 L_ok", needs=["scc:k"]),
                    O("    ds_read_b128 v[140:143], v125 offset:%d" % FLAGO, kind="L"), O("    s_waitcnt lgkmcnt(0)", kind="L"), O("    s_branch L_chk", kind="L"), O("L_ok:")]
        if tok == "Z":
            st8["vis"] = st8["wi"]//4
            return [WAIT(l=0), O("s_barrier")]
        if tok[0] == "d" and "+" not in tok:
            out = []
            for _ in range(int(tok[1:] or 1)):
                i, c = divmod(st8["wi"], 4); st8["wi"] += 1; assert i < st8["li"]
                out.append(lnwrites(i)[c])
            return out
        if tok[0] == "s" and "+" not in tok: return stamp(tok)
        if "+" in tok: return [o for t in tok.split("+") for o in simple(t)]
        if tok[0] == "F":
            j = int(tok[1:]); assert st8["vis"] >= 4; out = []
            for t in range(4):
                pre[(t, j)] = wf(j + cfg.fo, t)
                out.append(O("ds_read_b128 %s, v%d offset:%d" % (pre[(t, j)], XR, xoff(t, j)), sem=("X", t, j)))
            return out
        if tok == "P": return [O("buffer_load_dword v136, v131, s[%d:%d], s14 offen" % (SWd, SWd+3))]
        raise Exception(tok)
    nz = 0
    for tok in cfg.early.split():
        head, _, spr = tok.partition(":")
        spr = spr.split(",") if spr else []
        if tok == "G": emit(gbload())
        elif tok == "P": emit([O("buffer_load_dword v136, v131, s[%d:%d], s14 offen" % (SWd, SWd+3))])
        elif tok == "A": emit(addr_math(1))
        elif tok == "A2": emit(addr_math(2) + wsetup())
        elif tok == "B": emit(stamp("mb")); emit(gbtable())
        elif head == "C":
            li = st8["li"]
            emit(stamp("c%d" % li))
            A = ln_code(li); out = []
            items = []
            for k, t in enumerate(spr):
                t, _, pct = t.partition("@")
                nops = [i for i, o in enumerate(A) if o.text == "s_nop 0"]
                items.append((nops[int(pct[1:])] if pct[:1] == "n" else (int(pct)*len(A))//100 if pct else (k+1)*len(A)//(len(spr)+1), t))
            k = 0
            for idx, o in enumerate(A):
                ins = []
                while k < len(items) and idx >= items[k][0]: ins += simple(items[k][1]); k += 1
                out += ins
                if o.text == "s_nop 0" and ins: continue
                out.append(o)
            assert k == len(items)
            emit(out); emit(stamp("n%d" % li))
            st8["li"] += 1
        elif tok == "Z":
            bf = all((t, j) in done or (t, j) in pre for t in range(4) for j in range(2))
            emit([WAIT(l=0), O("s_barrier", tag="Bfree" if bf else "gbfree")]); st8["vis"] = st8["wi"]//4; st8["bf"] = bf
        elif head[0] == "U":
            tl, js = head[1:].split("@"); js = [int(x) for x in js.split("-")]
            seq = [(int(c), j) for j in range(js[0], js[-1]+1) for c in tl]
            for u in seq:
                assert u[0] < st8["vis"] and (u[1] == 0 or (u[0], u[1]-1) in done), tok
                done.add(u)
            emit(stamp("u%d" % js[0]))
            emit([xread(*seq[0]), WAIT(l=0)])
            mf, fixed, starts = units(seq, None)
            for k, u in enumerate(seq):
                if k and u[1] != seq[k-1][1]: fixed[starts[k]-1] = [WAIT(l=0)]
            segs = ",".join(spr).split("/"); n = 7*len(tl)
            for si in range(js[-1]-js[0]+1):
                stream = []
                for t in (segs[si].split(",") if si < len(segs) and segs[si] else []):
                    t, _, gp = t.partition("@")
                    ops = [o for o in simple(t)]
                    if ops and gp: ops[0].at = int(gp)
                    stream += ops
                emit(weave(mf[si*n:(si+1)*n], {g-si*n: v for g, v in fixed.items() if si*n <= g < (si+1)*n}, stream, 0, n-3))
        else: emit(simple(tok))
    assert st8["wi"] == 28 and st8["li"] == 8 and xn[0] == 32 and st8["vis"] >= 5
    th = st8["th"]
    emit(stamp("mp"))
    def canissue():
        n = wn[0]; rd = set(half(x) for x in range(th))
        while n < 105:
            j, ii = divmod(n, 7); i = worder(j)[ii]
            if any(x not in rd for x in wneeds(j, i)): break
            n += 1
        return n - wn[0]
    order = [3, 0, 1, 2]
    seq = [(t, j) for j in range(14) for t in order if (t, j) not in done]
    assert th >= 2*seq[0][1] + 2
    emit([xread(*seq[0]), WAIT(l=0)])
    S2 = [4, 5, 6, 7]
    mf, fixed, starts = units(seq, (S2[0], 1))
    first = {}
    for k, u in enumerate(seq): first.setdefault(u[1], starts[k])
    def used(g):
        u = 0
        for o in fixed.get(g, []):
            if o.kind == "V" and u < 1: u = 1
            u += cost(o)
        return u
    def fx(g, ops, front=False):
        if front: fixed[g] = ops + fixed.get(g, [])
        else: fixed.setdefault(g, []).extend(ops)
    put = fx
    def putdma(g, d, gprep):
        pend = []; firstd = True
        for o in d:
            if o.kind != "G":
                if o.text != "s_nop 0": pend.append(o)
                continue
            while used(g) > 0: g += 1
            if pend:
                if firstd and gprep is not None:
                    gp = gprep
                    for p in pend:
                        while used(gp) >= 3 and gp < g-1: gp += 1
                        put(gp, [p])
                else: put(g-1, pend)
            put(g, [o]); pend = []; g += 1; firstd = False
        return g
    def puttr(g, ops, gend):
        ops = list(ops); assert gend >= g
        load = {x: used(x) for x in range(g, gend+1)}; cnt = {x: 0 for x in load}
        for _ in ops:
            x = min(load, key=lambda x: (max(load[x]+2-3, 0), x)); load[x] += 2; cnt[x] += 1
        last = g
        for x in range(g, gend+1):
            for _ in range(cnt[x]): put(x, [ops.pop(0)]); last = x
        return last + 1
    def putseq(gw, ops):
        for o in ops:
            while used(gw) + (1 if o.kind == "V" and used(gw) < 1 else 0) >= 3: gw += 1
            put(gw, [o])
        return gw
    d0 = wdma(canissue())
    k0 = next((i for i, x in enumerate(d0) if x.kind == "G"), 0)
    emit(d0[:k0])
    g = putdma(1, d0[k0:], None)
    while th < 28:
        k, h = half(th); second = th % 2; th += 1
        yt = first[k] - cfg.lead - (0 if second else 14)
        D = first[k] - 1 - (0 if second else cfg.minp)
        y = min(max(yt, g + 7 + cfg.lat), D)
        gs = max(min(g, y - cfg.lat - 4), y - 11, 0)
        while used(gs) > 0 and gs < y - cfg.lat - 6: gs += 1
        put(gs, [WAIT(v=wland(k, h))])
        ge = puttr(gs, trreads(k, h), y - cfg.lat)
        put(y, [WAIT(l="tr%dh%d" % (k, h))])
        nb = wn[0]
        g = putdma(max(g, y+1), wdma(canissue()), max(ge, g))
        if nb < 105 and wn[0] == 105: glast = g
    assert wn[0] == 105
    gm = putseq(glast, late_addr())
    for j in sorted(first):
        if first[j] > 0: put(first[j]-1, stamp("p%d" % j))
    Q = lambda a, k: ACC[a] + 4*k
    HOLD = {3: [Q(3, 1), Q(3, 3), Q(3, 5)], 0: [Q(0, 1), Q(0, 3), Q(0, 5)], 1: [Q(1, 1), Q(1, 3), Q(1, 5)],
            2: [Q(0, 0), Q(0, 2), Q(0, 4)], 4: [Q(1, 0), Q(1, 2), Q(1, 4)], 5: [Q(1, 1), Q(1, 3), Q(1, 5)],
            6: [Q(0, 1), Q(0, 3), Q(0, 5)], 7: [Q(0, 0), Q(0, 2), Q(0, 4)]}
    OPK = 18; OT = Q(0, 6)
    def oddw(tile, src): return O("ds_write_b64 v%d, %s offset:%d" % (OW, vr(src, 2), ODDO + 512*tile), cost=3, needs=["tr13h0", "tr13h1"], sem=("OW", tile))
    def store(tile, P):
        return [O("s_add_u32 s%d, s%d, %d" % (sO2, sOO, 3584*tile), sem=("SO", ("ST", tile))),
                O("buffer_store_dwordx4 %s, v%d, s[%d:%d], s%d offen offset:%d%s" % (vr(HOLD[tile][P], 4), ST, SO, SO+3, sO2, 64*P, cfg.spol), sem=("ST", tile, P))]
    def pair_inplace(tile, P):
        x0, x1 = ACC[tile]+8*P, ACC[tile]+8*P+4
        return [cvt(x1+3, x1+2), cvt(x1+2, x1), cvt(x1, x0), cvt(x1+1, x0+2)]
    def odd_inplace(tile):
        x = ACC[tile]+24
        return [cvt(x, x), cvt(x+1, x+2)], oddw(tile, x)
    def pkcvt(tile, t):
        d = OPK if t == 6 else HOLD[tile][t >> 1] + 2*(t & 1)
        return [cvt(d, ACC[2]+4*t), cvt(d+1, ACC[2]+4*t+2)]
    E = first[13]
    assert gm < E + 8
    for k in (3, 4, 5): put(E+k, [O("s_nop 0")])
    putseq(E+8, pair_inplace(3, 0) + pair_inplace(3, 1) + pair_inplace(3, 2))
    putseq(E+15, pair_inplace(0, 0) + pair_inplace(0, 1) + pair_inplace(0, 2))
    sx = store(3, 0); put(E+21, sx[:1]); put(E+22, sx[1:])
    put(E+23, [O("s_nop 1")]); put(E+24, [O("s_nop 1")])
    for t in range(3): put(E+25+t, pkcvt(2, t))
    emit(weave(mf, fixed, [], 0, 0))
    emit(stamp("mq"))
    plan = cfg.plan
    om = [0]
    def oddso(m): return [O("s_add_u32 s%d, s%d, %d" % (sO2, sPAR, 7168*m), sem=("SO", None)), O("s_add_u32 s%d, s%d, s%d" % (sO2, sO2, sOO), sem=("SO", ("OS", m)))]
    def oddst(m): return O("buffer_store_dwordx4 %s, v%d, s[%d:%d], s%d offen%s" % (vr(OT, 4), OS, SO, SO+3, sO2, cfg.spol), sem=("OS", m))
    pw = lnwrites(7)
    for bi, tile in enumerate(S2):
        prev = 2 if bi == 0 else S2[bi-1]
        mf, fixed, _ = units([(tile, j) for j in range(1, 15 if bi < 3 else 15 - cfg.nl)], (S2[bi+1], 1) if bi < 3 else None)
        for t in range(3, 7): fx(t-2, pkcvt(prev, t))
        fx(8, [oddw(prev, OPK)], front=True)
        if bi == 0:
            gq = 9
            for tl in (3, 0, 1):
                c, o = odd_inplace(tl); gq = putseq(gq, c) + 1
                while used(gq) > 0: gq += 1
                fx(gq, [o]); gq += 1
            putseq(gq, pair_inplace(1, 0) + pair_inplace(1, 1) + pair_inplace(1, 2))
        items = plan[bi]; n = len(items)
        lo = 5 if bi == 0 else 10
        for k, it in enumerate(items):
            g = lo + ((90 if bi < 3 else cfg.lhi)-lo)*k//n
            while used(g) > 0 or used(g-1) > 2 or (it == "o" and used(g-2) > 1): g += 1
            if it == "o":
                m = om[0]; om[0] += 1
                gr = g - 9
                while used(gr) > 1: gr -= 1
                bar = min(b for b in cfg.bars if (3 if b == 0 else S2[b-1]) >= 2*m+1)
                fx(gr, [O("ds_read_b128 %s, v%d offset:%d" % (vr(OT, 4), OR, ODDO + 1024*m), needs=["bar%d" % bar], tag="od")], front=True)
                fx(g-2, oddso(m), front=True); fx(g-1, [WAIT(l="od")], front=True); fx(g, [oddst(m)])
            elif it == "w": fx(g, [pw.pop(0)])
            else:
                s = store(*it); fx(g-1, s[:1], front=True); fx(g, s[1:])
                if it == (3, 2): g32 = g
        if bi == 0:
            gs = max(g32 + 3, 45)
            fx(gs, [WAIT(v=wland(14, 1))], front=True)
            puttr(gs, trreads(14, 0) + trreads(14, 1), 84)
            fixed[90] = [WAIT(l=0)]
        if bi in cfg.bars:
            fixed[90] = [WAIT(l=0)]
            fx(91, [O("s_barrier", tag="bar%d" % bi)], front=True)
            if not pw: t7vis = True
        if bi < 3:
            fx(92, [O("s_nop 0")]); fx(93, [O("s_nop 0")]); fx(94, [O("s_nop 1")])
            for t in range(3): fx(95+t, pkcvt(tile, t))
        else:
            assert t7vis
            NL = cfg.nl; j0 = 15 - NL; G0 = 7*(14 - NL)
            XF = [24, 28, 32, Q(1, 6), Q(1, 0), Q(1, 2), Q(1, 4), Q(1, 1), Q(1, 3), Q(1, 5)][:NL]
            rd = [O("ds_read_b128 %s, v%d offset:%d" % (vr(XF[k], 4), XR, xoff(tile, (j0+k) % 14)), tag="xl", sem=("X", tile, (j0+k) % 14)) for k in range(NL)]
            puttr(max(5, G0 - 2*NL - 6), rd, G0 - 5)
            fx(G0-1, [WAIT(l="xl")])
            for ts in ([6], [0, 1], [2, 3], [4, 5]):
                for k in range(NL):
                    for t in ts: mf.append(mfma(ACC[2], j0+k, t, XF[k], None, tile))
            a6 = G0 + NL; a0_ = a6 + 2*NL; a1_ = a0_ + 2*NL
            fx(a6, [O("s_nop 1")]); fx(a6+1, [O("s_nop 1")]); fx(a6+2, [O("s_nop 0")] + pkcvt(tile, 6)); fx(a6+3, [oddw(tile, OPK)])
            fx(a6+6, [WAIT(l=0), O("s_barrier")]); fx(a6+7, [O("ds_read_b128 %s, v%d offset:%d" % (vr(OT, 4), OR, ODDO + 3072), tag="od")])
            fx(a0_, [O("s_nop 1")]); fx(a0_+1, [O("s_nop 1")]); fx(a0_+2, [O("s_nop 0")] + pkcvt(tile, 0)); fx(a0_+3, store(tile, 0)[:1] + pkcvt(tile, 1)); fx(a0_+4, store(tile, 0)[1:])
            go = a0_+5 if NL < 8 else a6+13
            fx(go, oddso(3)); fx(go+1, [WAIT(l="od")]); fx(go+2, [oddst(3)])
            fx(a1_, [O("s_nop 1")]); fx(a1_+1, [O("s_nop 1")]); fx(a1_+2, [O("s_nop 0")] + pkcvt(tile, 2)); fx(a1_+3, store(tile, 1)[:1] + pkcvt(tile, 3)); fx(a1_+4, store(tile, 1)[1:])
        emit(weave(mf, fixed, [], 0, 0))
        emit(stamp("m%d" % (bi+4)))
    lt = S2[3]
    Tl = [O("s_nop 6")] + pkcvt(lt, 4) + pkcvt(lt, 5) + store(lt, 2)[1:]
    assert om[0] == 3 and st8["vis"] >= 7
    emit(Tl)
    if cfg.stamps:
        emit(stamp("z1")); emit([O("s_waitcnt vmcnt(0)")]); emit(stamp("z2"))
        S = [O("s_waitcnt lgkmcnt(0)"), O("s_mov_b32 s50, 0x10000000"), O("s_mov_b32 s51, 0x20000"), O("v_mov_b32 v40, 0")]
        for i in range(stampn[0]): S.append(O("v_writelane_b32 v40, s%d, %d" % (52+2*i, i)))
        S += [O("s_lshl_b32 s3, s2, 2"), O("s_add_u32 s3, s3, s%d" % sW), O("s_lshl_b32 s3, s3, 8"),
              O("v_mbcnt_lo_u32_b32 v41, -1, 0"), O("v_mbcnt_hi_u32_b32 v41, -1, v41"), O("v_lshlrev_b32 v41, 2, v41"),
              O("buffer_store_dword v40, v41, s[48:51], s3 offen sc1")]
        emit(S)
    emit([O("L_end:"), O("s_endpgm")])
    errs = resolve_and_verify(trace) + semcheck(trace)
    for e in errs[:40]: print("ERR", e, file=sys.stderr)
    if errs: raise Exception("verify failed: %d" % len(errs))
    return code

def render(code, kname):
    hdr = open('cdna_kernels/%s.s.ref' % NAME).read().split('\n')
    L = [l for l in hdr if l.startswith(';') and '@launch' not in l]
    L += ["; @launch grid=(256,1,1) block=(256,1,1) lds=163840", '.amdgcn_target "amdgcn-amd-amdhsa--gfx950"', ".text",
          ".globl %s" % kname, ".p2align 8", ".type %s,@function" % kname, "%s:" % kname]
    L += code
    if cfg.cpf: L += [".fill 3000, 4, 0xbf810000"]
    L += ['.section .rodata,"a"', ".p2align 6", ".amdhsa_kernel %s" % kname, "  .amdhsa_next_free_vgpr 512", "  .amdhsa_next_free_sgpr 102",
          "  .amdhsa_accum_offset 256", "  .amdhsa_group_segment_fixed_size 0", "  .amdhsa_kernarg_size 56", "  .amdhsa_user_sgpr_count 2",
          "  .amdhsa_user_sgpr_kernarg_segment_ptr 1", "  .amdhsa_system_sgpr_workgroup_id_x 1", ".end_amdhsa_kernel"]
    return '\n'.join(L) + '\n'
def addrs(lines, kname):
    import subprocess
    lab = []
    for i, l in enumerate(lines): lab += ["Lq%d:" % i, l]
    open("_a.s", "w").write(render(lab, kname))
    subprocess.run(["clang", "-x", "assembler", "-target", "amdgcn-amd-amdhsa", "-mcpu=gfx950", "-c", "_a.s", "-o", "_a.o"], check=True)
    out = subprocess.run(["llvm-objdump", "-t", "_a.o"], capture_output=True, text=True).stdout
    A = {}
    for l in out.splitlines():
        p = l.split()
        if p and p[-1].startswith("Lq"): A[int(p[-1][2:])] = int(p[0], 16)
    return [A[i] for i in range(len(lines))]
def write(path, kname=NAME+"_kernel"):
    code = build()
    if cfg.nostore: code = [o for o in code if not (o.sem and o.sem[0] in ("ST", "OS"))]
    lines = [("" if o.kind == "L" else "    ") + o.render() for o in code]
    if cfg.alt:
        import re as _re
        global stampnames
        names1 = list(stampnames)
        save = {k: getattr(cfg, k) for k in cfg.alt}
        for k, v in cfg.alt.items(): setattr(cfg, k, v)
        l2 = [("" if o.kind == "L" else "    ") + o.render() for o in build()]
        for k, v in save.items(): setattr(cfg, k, v)
        assert names1 == stampnames, (names1, stampnames)
        i = lines.index("@SPLIT"); assert lines[:i+1] == l2[:i+1]
        l2 = [_re.sub(r"\bL_(chk|ok|end)\b", r"L_\g<1>2", x) for x in l2[i+1:]]
        lines = lines[:i] + ["    s_bitcmp1_b32 s2, %d" % cfg.gbit, "    s_cbranch_scc1 L_alt"] + lines[i+1:] + [".p2align 6", "L_alt:"] + l2
    lines = [l for l in lines if l != "@SPLIT"]
    if any(l.startswith("@H") for l in lines):
        nh = sum(1 for l in lines if l.startswith("L_padret"))
        main = lines.index("L_main:")
        npad = 0
        for k in range(4*nh):
            tmp = [(l[3:] if l.startswith("@H") else l) for l in lines] + ["L_pad%d:" % x for x in range(npad, 4*nh)]
            A = addrs(tmp, kname)
            bnd = (A[main]//4096 + k + cfg.padskip)*4096
            j = next((i for i in range(main+1, len(lines)) if A[i] >= bnd), None)
            if j is None: break
            i = next((i for i in range(j, len(lines)) if "v_mfma" in lines[i-1] and "v_mfma" in lines[i]), None)
            if i is None or A[i] >= bnd + 56: i = next(i for i in range(j, len(lines)) if not lines[i].lstrip().startswith(("s_cselect", "s_cbranch", "L_", ".", "@H", "s_mov_b64 vcc")))
            assert i > lines.index("L_padret%d:" % (nh-1)) + 1
            lines[i:i] = ["L_pad%d:" % k, "    s_cbranch_vccnz L_padret%d" % (k//4)]; npad += 1
        lines = [(l[3:] if int(l[2]) < npad else "    s_nop 0") if l.startswith("@H") else l for l in lines]
        vl = [i for i, l in enumerate(lines) if "vcc" in l and "vccnz" not in l]
        assert lines[vl[-1]].strip() == "s_mov_b64 vcc, 0" and vl[-1] < lines.index("L_pad0:"), "vcc must be 0 at every pad"
        print("pads:", npad, file=sys.stderr)
    open(path, 'w').write(render(lines, kname))
if __name__ == "__main__":
    write("v13.s")
```

```python
from final2 import *
rest = gz[gz.index("C:w1@n2"):]
make("t_a.s")
make("t_T.s", early=gz.replace("G x12 A", "G x12 T A"))
make("t_T0.s", early=gz.replace("G x12 A", "G T x12 A"))
make("t_e.s", early="G x12 T A A2 H H x4 B " + X4n + "J " + X4n*3 + rest, padskip=0, cpl=192)
make("t_f.s", early="G x12 T A A2 H x4 B " + X4n + "H J " + X4n*3 + rest, padskip=0, cpl=192)
make("t_g.s", early="G x12 T A A2 x4 B " + X4n + "J H " + X4n*3 + rest, padskip=1, cpl=192)
```

```python
import sys, struct
from gen_core import *
NAME = "standalone__layernorm_linear__sampling"
def f2u(f): return struct.unpack('<I', struct.pack('<f', f))[0]
NB = 32768*896

class Cfg:
    stamps = False
    sites = "m"
    early = "G x12 A A2 x4 B C:x2@60 x2 d4 C:x2@60 x2 d4 C:x2@60 x2 d4 C:x2@60 x2 d4 C:w1@60 w2 d4 C:w1@60 w2 d4 Z C:w1@60 w2 d4 C:w3@50,w2@60,ta@70,tb@85"
    imgoff = [0, 7168]*8
    worder = {}
    horder = {}
    xpol = " nt"
    spol = " sc1"
    cpf = 4
    plan = None
    cyc = False
    inw = True
    pace = 14
    endv = 2
    fo = 3
    lead = 7
    e13 = 14
    pffirst = False
    bars = (0, 2)
    hwid = True
    twopass = True
    alt = None
    gbit = 7
    cpl = 168
    sbar = 0
    joff = 0
    padskip = 1
    padoff = 0
    parkd = ()
    eager = 0
    nocf = False
    nl = 4
    lhi = 62
    lpol = None
    w64 = False
    wlate = False
    nostore = False
    nobar2 = False
    gw = 8
    gwstep = 2
    minp = 12
    lat = 3
    tro = 5
    ybar = 4
    nobar = False
    ywr = 8
    trn = 6
cfg = Cfg()

XR, ST, OW, OR, OS, TR1, TR2 = 0, 20, 22, 16, 21, 5, 23
F = [8, 12]
T = 16
VO = 16
ACC = {0: 36, 1: 64, 2: 92, 3: 228}
LWY, LWZ, RA, RB, VL, SS, SQ = 120, 1, 128, 129, 130, 132, 134
PARK = [24, 28, 32, 6]
U = 144; GE = 172; BE = 200; EPS = 127
RAW = [228, 242, 106, 92, 78, 64, 50, 36]
sW, sMASK, sWO, sWLIM, sREG, sXO, sOO, sT, sRET, sT2, sO2, sPAR, sINV = 32, 33, 34, 35, 36, 37, 38, 39, 40, 45, 46, 47, 44
SX, SG, SWd, SO = 16, 20, 24, 28
WREG = 40960
IMG = {"A": 0, "B": 7168}
YO = 15872; ZO = YO + 14336
T7O = 7168; ODDO = 10752; FLAGO = 15616
GTAB = 7168
def wf(j, t, half=None, tmp=None):
    f = 7*{13: 0, 14: 13}.get(j, j) + t
    p, r = ("a", 4*f) if f < 64 else ("v", 120 + 4*(f-64))
    if tmp is not None: p, r = "v", tmp
    if half is None: return "%s[%d:%d]" % (p, r, r+3)
    return "%s[%d:%d]" % (p, r+2*half, r+2*half+1)
def vr(a, n): return "v[%d:%d]" % (a, a+n-1)
O = Op
stampn = [0]; stampnames = []
def stamp(site="m"):
    if not cfg.stamps or site[0] not in cfg.sites + "z": return []
    i = stampn[0]; stampn[0] += 1; stampnames.append(site)
    assert 52+2*i+1 <= 101
    return [O("%s s[%d:%d]" % ("s_memtime" if cfg.cyc else "s_memrealtime", 52+2*i, 53+2*i), kind="S", cost=0.01)]
def mfma(acc, j, t, fb, tmp=None, tile=None):
    a = vr(acc+4*t, 4)
    if tile >= 4: return O("v_mfma_f32_16x16x32_bf16 %s, %s, %s, %s" % (a, wf(j, t), vr(fb, 4), "0" if j == 1 else a), sem=("M", tile, j % 14, t))
    return O("v_mfma_f32_16x16x32_bf16 %s, %s, %s, %s" % (a, wf(j, t, None, tmp), fb if isinstance(fb, str) else vr(fb, 4), "0" if j == 0 else a), sem=("M", tile, j, t))
m0state = [None]; TR2late = [False]
def setm0(off):
    if m0state[0] == off: return []
    m0state[0] = off
    return [O("s_add_u32 m0, s%d, %d" % (sREG, off))]
xn = [0]; wn = [0]
def xdma(n):
    L = []
    for _ in range(n):
        tl, c = divmod(xn[0], 4); xn[0] += 1
        if c == 0 and tl > 0: L.append(O("s_add_u32 s%d, s%d, 3584" % (sXO, sXO)))
        if c < 3: L.append(O("buffer_load_dwordx4 %s, v%d, s[%d:%d], s%d offen offset:%d%s" % (vr(RAW[tl]+4*c, 4), RA, SX, SX+3, sXO, 256*c, cfg.xpol), tag="x%d_%d" % (tl, c)))
        else: L.append(O("buffer_load_dwordx2 %s, v%d, s[%d:%d], s%d offen offset:768%s" % (vr(RAW[tl]+12, 2), RB, SX, SX+3, sXO, cfg.xpol), tag="x%d_%d" % (tl, c)))
    return L
def ioff(j): return cfg.imgoff[j]
def worder(j): return cfg.worder.get(j, list(range(7)))
def wland(j, h):
    o = worder(j); mem = range(0, 4) if h == 0 else range(3, 7)
    return "w%d_%d" % (j, max(mem, key=o.index))
def wneeds(j, i):
    a = ioff(j) + 1024*i; needs = []
    for k in range(j):
        for h in range(2):
            lo = ioff(k) + 3584*h
            if a < lo + 3584 and lo < a + 1024: needs.append((k, h))
    return needs
def wdma(n):
    L = []
    for _ in range(n):
        j, ii = divmod(wn[0], 7); wn[0] += 1
        i = worder(j)[ii]
        m0 = ioff(j) + (3072 if i >= 3 else 0)
        pre = setm0(m0)
        if ii == 0 and j > 0:
            pre.append(O("s_add_u32 s%d, s%d, 28672" % (sWO, sWO), sem=("ADV", "w", 0.5)))
            pre.append(O("s_cmp_ge_u32 s%d, s%d" % (sWO, sWLIM), tag="scc:w"))
            pre.append(O("s_cselect_b32 s%d, s%d, s%d" % (sWO, sT2, sWO), needs=["scc:w"], sem=("ADV", "w", 0.5)))
        if len(pre) == 1: pre.append(O("s_nop 0"))
        L += pre
        needs = ["tr%dh%d" % x for x in wneeds(j, i)]
        a = ioff(j) + 1024*i
        if GTAB <= a < GTAB + 4096: needs.append("gbr")
        L.append(O("buffer_load_dwordx4 v%d, s[%d:%d], s%d offen offset:%d lds" % (VO+i, SWd, SWd+3, sWO, 1024*(i-3 if i >= 3 else i)), tag="w%d_%d" % (j, i), needs=needs, sem=("DM", m0, "w", j)))
    return L
def trreads(j, h, ts=range(7), tmp=None, tag=None):
    L = []; ts = list(ts)
    for k, t in enumerate(ts):
        off = ioff(j) + h*3584 + ((32*t if cfg.nocf else 64*(t >> 1) + 8*(t & 1)) if t < 6 else 0)
        tg = tag or "tr%dh%d" % (j, h)
        L.append(O("ds_read_b64_tr_b16 %s, v%d offset:%d" % (wf(j, t, h, None if tmp is None else tmp+4*k), TR1 if t < 6 else (6 if TR2late[0] else TR2), off),
                   tag=(tg if k == len(ts)-1 else tg + "#%d" % t), needs=["w%d_%d" % (j, i) for i in (range(0, 4) if h == 0 else range(3, 7))], sem=("W", j % 14, t, h)))
    return L
def dpp(r, n): return O("v_add_f32_dpp v%d, v%d, v%d row_ror:%d row_mask:0xf bank_mask:0xf" % (r, r, r, n))
def ln_code1(li):
    S, Q = SS, SQ; R, N = SQ+1, SS+1
    RW = RAW[li]
    dst = [RW, RW+4, RW+8, RW+12] if li < 7 and li not in cfg.parkd else PARK
    p = lambda a: vr(a, 2)
    A = []
    for i in range(14):
        if i % 4 == 0: A.append(WAIT(v="x%d_%d" % (li, i//4)))
        if i == 12: A += stamp("r%d" % li)
        A += [O("v_lshlrev_b32 v%d, 16, v%d" % (U+2*i, RW+i)), O("v_and_b32 v%d, s%d, v%d" % (U+2*i+1, sMASK, RW+i))]
        if i == 1: A += [O("v_pk_add_f32 %s, %s, %s" % (p(S), p(U), p(U+2))), O("v_pk_mul_f32 %s, %s, %s" % (p(Q), p(U), p(U)))]
        if i >= 2:
            k = i-1
            if k >= 2: A.append(O("v_pk_add_f32 %s, %s, %s" % (p(S), p(S), p(U+2*k))))
            A.append(O("v_pk_fma_f32 %s, %s, %s, %s" % (p(Q), p(U+2*k), p(U+2*k), p(Q))))
    A += [O("v_pk_add_f32 %s, %s, %s" % (p(S), p(S), p(U+26))), O("v_pk_fma_f32 %s, %s, %s, %s" % (p(Q), p(U+26), p(U+26), p(Q)))]
    A += [O("v_add_f32 v%d, v%d, v%d" % (S, S, S+1)), O("v_add_f32 v%d, v%d, v%d" % (Q, Q, Q+1)), O("s_nop 0")]
    for n in (8, 4, 2, 1):
        A += [dpp(S, n), dpp(Q, n)] + ([O("s_nop 0")] if n != 1 else [])
    A += [O("v_mul_f32 v%d, 0x%08x, v%d" % (S, f2u(1.0/448), S)),
          O("v_mul_f32 v%d, v%d, v%d" % (N, S, S)),
          O("v_fma_f32 v%d, v%d, s%d, -v%d" % (Q, Q, sINV, N)),
          O("v_max_f32 v%d, 0, v%d" % (Q, Q)),
          O("v_add_f32 v%d, 0x%08x, v%d" % (Q, f2u(1e-5), Q)),
          O("v_rsq_f32 v%d, v%d" % (R, Q)),
          O("s_nop 0"),
          O("v_mul_f32_e64 v%d, -v%d, v%d" % (N, S, R))]
    if li == 0: A.append(WAIT(l="gbr"))
    for c in range(4):
        n = 4 if c < 3 else 2
        for i in range(4*c, 4*c+n):
            A.append(O("v_pk_fma_f32 %s, %s, %s, %s op_sel:[0,1,1] op_sel_hi:[1,1,1]" % (p(U+2*i), p(U+2*i), p(Q), p(S))))
        for i in range(4*c, 4*c+n):
            A.append(O("v_pk_fma_f32 %s, %s, %s, %s" % (p(U+2*i), p(U+2*i), p(GE+2*i), p(BE+2*i))))
        for i in range(n):
            A.append(O("v_cvt_pk_bf16_f32 v%d, v%d, v%d" % (dst[c]+i, U+8*c+2*i, U+8*c+2*i+1)))
    return A
def ln_code3(li):
    S, Q = SS, SQ; R, N = SQ+1, SS+1
    C = 136
    RW = RAW[li]
    dst = [RW, RW+4, RW+8, RW+12] if li < 7 and li not in cfg.parkd else PARK
    p = lambda a: vr(a, 2)
    sub = lambda i: O("v_pk_add_f32 %s, %s, %s op_sel_hi:[1,0] neg_lo:[0,1] neg_hi:[0,1]" % (p(U+2*i), p(U+2*i), p(C)))
    def acc(k):
        if k == 0: return [O("v_pk_mul_f32 %s, %s, %s" % (p(Q), p(U), p(U)))]
        return [O("v_pk_add_f32 %s, %s, %s" % (p(S), p(U) if k == 1 else p(S), p(U+2*k))), O("v_pk_fma_f32 %s, %s, %s, %s" % (p(Q), p(U+2*k), p(U+2*k), p(Q)))]
    A = []
    for i in range(14):
        if i % 4 == 0: A.append(WAIT(v="x%d_%d" % (li, i//4)))
        if i == 12: A += stamp("r%d" % li)
        A += [O("v_lshlrev_b32 v%d, 16, v%d" % (U+2*i, RW+i)), O("v_and_b32 v%d, s%d, v%d" % (U+2*i+1, sMASK, RW+i))]
        if i == 1: A.append(O("v_mov_b32_dpp v%d, v%d row_newbcast:0 row_mask:0xf bank_mask:0xf" % (C, U)))
        if i >= 2: A.append(sub(i-2))
        if i >= 3: A += acc(i-3)
    A += [sub(12)] + acc(11) + [sub(13)] + acc(12) + acc(13)
    A += [O("v_add_f32 v%d, v%d, v%d" % (S, S, S+1)), O("v_add_f32 v%d, v%d, v%d" % (Q, Q, Q+1)), O("s_nop 0")]
    for n in (8, 4, 2, 1):
        A += [dpp(S, n), dpp(Q, n)] + ([O("s_nop 0")] if n != 1 else [])
    A += [O("v_mul_f32 v%d, s%d, v%d" % (S, sINV, S)),
          O("v_mul_f32 v%d, s%d, v%d" % (Q, sINV, Q)),
          O("v_add_f32 v%d, v%d, v%d" % (N, C, S)),
          O("v_fma_f32 v%d, -v%d, v%d, v%d" % (Q, S, S, Q)),
          O("v_cvt_pk_bf16_f32 v%d, v%d, v%d" % (N, N, N)),
          O("v_max_f32 v%d, 0, v%d" % (Q, Q)),
          O("v_and_b32 v%d, s%d, v%d" % (N, sMASK, N)),
          O("v_add_f32 v%d, v%d, v%d" % (Q, EPS, Q)),
          O("v_rsq_f32 v%d, v%d" % (R, Q)),
          O("v_sub_f32 v%d, v%d, v%d" % (N, C, N)),
          O("v_mul_f32 v%d, v%d, v%d" % (N, N, R))]
    if li == 0: A.append(WAIT(l="gbr"))
    for c in range(4):
        n = 4 if c < 3 else 2
        for i in range(4*c, 4*c+n):
            A.append(O("v_pk_fma_f32 %s, %s, %s, %s op_sel:[0,1,1] op_sel_hi:[1,1,1]" % (p(U+2*i), p(U+2*i), p(Q), p(S))))
        for i in range(4*c, 4*c+n):
            A.append(O("v_pk_fma_f32 %s, %s, %s, %s" % (p(U+2*i), p(U+2*i), p(GE+2*i), p(BE+2*i))))
        for i in range(n):
            A.append(O("v_cvt_pk_bf16_f32 v%d, v%d, v%d" % (dst[c]+i, U+8*c+2*i, U+8*c+2*i+1)))
    return A
def ln_code(li):
    if not cfg.twopass: return ln_code1(li)
    if cfg.twopass == 3: return ln_code3(li)
    S, Q = SS, SQ; R, N = SQ+1, SS+1
    S2 = 136
    RW = RAW[li]
    dst = [RW, RW+4, RW+8, RW+12] if li < 7 and li not in cfg.parkd else PARK
    p = lambda a: vr(a, 2)
    A = []
    for i in range(14):
        if i % 4 == 0: A.append(WAIT(v="x%d_%d" % (li, i//4)))
        if i == 12: A += stamp("r%d" % li)
        A += [O("v_lshlrev_b32 v%d, 16, v%d" % (U+2*i, RW+i)), O("v_and_b32 v%d, s%d, v%d" % (U+2*i+1, sMASK, RW+i))]
        if i == 2: A.append(O("v_pk_add_f32 %s, %s, %s" % (p(S), p(U), p(U+2))))
        if i >= 3: A.append(O("v_pk_add_f32 %s, %s, %s" % (p(S), p(S), p(U+2*(i-1)))))
    A += [O("v_pk_add_f32 %s, %s, %s" % (p(S), p(S), p(U+26))), O("v_add_f32 v%d, v%d, v%d" % (S, S, S+1))]
    for n in (8, 4, 2, 1): A += [O("s_nop 1"), dpp(S, n)]
    A += [O("v_mul_f32 v%d, 0x%08x, v%d" % (S, f2u(-1.0/448), S))]
    sub = lambda i: O("v_pk_add_f32 %s, %s, %s op_sel_hi:[1,0]" % (p(U+2*i), p(U+2*i), p(S)))
    def sq(i):
        q = Q if i % 2 == 0 else S2
        if i < 2: return O("v_pk_mul_f32 %s, %s, %s" % (p(q), p(U+2*i), p(U+2*i)))
        return O("v_pk_fma_f32 %s, %s, %s, %s" % (p(q), p(U+2*i), p(U+2*i), p(q)))
    A += [sub(0), sub(1)]
    for i in range(2, 14): A += [sub(i), sq(i-2)]
    A += [sq(12), sq(13)]
    A += [O("v_cvt_pk_bf16_f32 v%d, v%d, v%d" % (N, S, S)), O("v_pk_add_f32 %s, %s, %s" % (p(Q), p(Q), p(S2))),
          O("v_and_b32 v%d, s%d, v%d" % (N, sMASK, N)), O("v_add_f32 v%d, v%d, v%d" % (Q, Q, Q+1)),
          O("v_sub_f32 v%d, v%d, v%d" % (N, N, S)), O("s_nop 0"), dpp(Q, 8)]
    for n in (4, 2, 1): A += [O("s_nop 1"), dpp(Q, n)]
    A += [O("v_fma_f32 v%d, v%d, s%d, v%d" % (Q, Q, sINV, EPS)),
          O("v_rsq_f32 v%d, v%d" % (R, Q)),
          O("s_nop 0"),
          O("v_mul_f32 v%d, v%d, v%d" % (N, N, R))]
    if li == 0: A.append(WAIT(l="gbr"))
    for c in range(4):
        n = 4 if c < 3 else 2
        for i in range(4*c, 4*c+n):
            A.append(O("v_pk_fma_f32 %s, %s, %s, %s op_sel:[0,1,1] op_sel_hi:[1,1,1]" % (p(U+2*i), p(U+2*i), p(Q), p(S))))
        for i in range(4*c, 4*c+n):
            A.append(O("v_pk_fma_f32 %s, %s, %s, %s" % (p(U+2*i), p(U+2*i), p(GE+2*i), p(BE+2*i))))
        for i in range(n):
            A.append(O("v_cvt_pk_bf16_f32 v%d, v%d, v%d" % (dst[c]+i, U+8*c+2*i, U+8*c+2*i+1)))
    return A
def lnwrites(i):
    lw, off = (LWY, YO + 256*i) if i < 4 else (LWZ, ZO + 3584*(i-4))
    src = [RAW[i], RAW[i]+4, RAW[i]+8, RAW[i]+12]; nd = []
    if i in cfg.parkd: src = PARK
    if i == 7: off = T7O; src = PARK; nd = ["tr13h0"]
    if i == 7 and cfg.w64:
        return [O("ds_write_b64 v%d, %s offset:%d" % (lw+c//2, vr(src[c//2]+2*(c & 1), 2), off+8*(c & 1)), cost=3, needs=nd) for c in range(7)]
    return [O("ds_write_b128 v%d, %s offset:%d" % (lw+c, vr(src[c], 4), off), cost=5, needs=nd) for c in range(3)] + [O("ds_write_b64 v%d, %s offset:%d" % (lw+3, vr(src[3], 2), off), cost=3, needs=nd)]
def xoff(tile, j):
    if tile == 7: return T7O + 256*j
    return YO + 1024*j + 256*tile if tile < 4 else ZO + 3584*(tile-4) + 256*j

def cost(op):
    if op.cost: return op.cost
    return {"V": 1, "S": 1, "W": 1, "D": 2, "G": 3, "K": 1, "L": 0}[op.kind]
def weave(mf, fixed, stream, g0, g1):
    n = len(mf)
    for ex in range(0, 400):
        extra = ex * 0.02
        gaps = [list(fixed.get(g, [])) for g in range(n)]
        si = 0; credit = 0.0
        for g in range(g0, g1+1):
            used = 0; hasV = False
            for o in gaps[g]:
                if o.kind == "V" and used < 1: used = 1
                used += cost(o); hasV |= o.kind == "V"
            credit += extra
            while si < len(stream):
                o = stream[si]
                if o.at is not None and o.at > g: break
                u = used
                if o.kind == "V" and u < 1: u = 1
                if o.kind in ("D", "G") and hasV: break
                u += cost(o)
                over = max(0, u-3.1) - max(0, used-3.1)
                if over > 0:
                    if used < 0.5: pass
                    elif credit >= over: credit -= over
                    else: break
                gaps[g].append(o); used = u; hasV |= o.kind == "V"; si += 1
        if si == len(stream): break
    else:
        raise Exception("weave failed")
    out = []; tot = 0
    for g in range(n):
        out.append(mf[g]); out += gaps[g]
        u = 0
        for o in gaps[g]:
            if o.kind == "V" and u < 1: u = 1
            u += cost(o)
        tot += max(4, 1+u)
    print("weave: n=%d extra=%.2f est cycles=%d (ideal %d)" % (n, extra, tot*4, n*16), file=sys.stderr)
    return out
def cvt(dst, a): return O("v_cvt_pk_bf16_f32 v%d, v%d, v%d" % (dst, a, a+1), sem=("C",))

def codepf():
    L = []
    a = lambda s, **k: L.append(O(s, **k))
    LN_ = 40
    nl = -(-cfg.cpl // (4*cfg.cpf))
    a("s_getpc_b64 s[12:13]")
    a("s_getreg_b32 s11, hwreg(HW_REG_HW_ID, 8, 2)"); a("s_getreg_b32 s14, hwreg(HW_REG_HW_ID, 13, 2)")
    a("s_lshl2_add_u32 s11, s11, s14"); a("s_lshl2_add_u32 s11, s11, s%d" % sW)
    a("s_mulk_i32 s11, %d" % (nl*128))
    a("v_min_u32 v48, %d, v%d" % (nl-1, LN_)); a("v_lshl_add_u32 v48, v48, 7, s11")
    a("v_mov_b32 v49, s13"); a("v_add_co_u32 v48, vcc, s12, v48")
    a("s_mul_i32 s%d, s%d, %d" % (sREG, sW, WREG)); a("s_lshr_b32 s3, s2, 3")
    a("v_addc_co_u32 v49, vcc, 0, v49, vcc")
    a("global_load_dword v126, v[48:49], off")
    return L
def prologue():
    L = []
    a = lambda s, **k: L.append(O(s, **k))
    L += stamp("z")
    a("s_load_dwordx2 s[%d:%d], s[0:1], 0" % (SX, SX+1))
    a("s_load_dwordx8 s[4:11], s[0:1], 8")
    if cfg.stamps: a("s_load_dwordx2 s[48:49], s[0:1], 48")
    a("s_cmpk_ge_u32 s2, 256", tag="scc:e"); a("s_cbranch_scc1 L_end", needs=["scc:e"])
    LN_ = 40
    a("v_lshrrev_b32 v43, 6, v0")
    a("v_and_b32 v%d, 63, v0" % LN_)
    a("v_readfirstlane_b32 s%d, v43" % sW)
    a("v_and_b32 v41, 15, v0"); a("v_lshrrev_b32 v42, 4, v%d" % LN_)
    a("v_mul_u32_u24 v45, 896, v42")
    a("s_lshl2_add_u32 s%d, s2, s%d" % (sXO, sW))
    a("s_mulk_i32 s%d, 28672" % sXO)
    a("v_lshl_add_u32 v%d, v41, 4, v45" % RA); a("v_lshl_add_u32 v%d, v41, 3, v45" % RB)
    a("s_mov_b32 s%d, %d" % (SX+2, NB)); a("s_mov_b32 s%d, 0x20000" % (SX+3))
    if cfg.pffirst: L += [O(o.text.replace("s11", "s15"), tag=o.tag, needs=o.needs) for o in codepf()]
    a("s_waitcnt lgkmcnt(0)")
    L += stamp("k")
    return L
def gbload():
    L = [O("s_mov_b64 s[%d:%d], s[8:9]" % (SWd, SWd+1)), O("s_mov_b64 s[%d:%d], s[10:11]" % (SO, SO+1)),
         O("s_mov_b64 s[%d:%d], s[4:5]" % (SG, SG+1)), O("s_mov_b64 s[8:9], s[6:7]"),
         O("s_movk_i32 s%d, 896" % (SG+2)), O("s_mov_b32 s%d, s%d" % (SG+3, SX+3)), O("s_movk_i32 s10, 896"), O("s_mov_b32 s11, s%d" % (SX+3)),
         O("v_lshlrev_b32 v%d, 4, v40" % VL),
         O("buffer_load_dwordx4 v[136:139], v%d, s[%d:%d], 0 offen" % (VL, SG, SG+3)),
         O("buffer_load_dwordx4 v[140:143], v%d, s[8:11], 0 offen" % VL, tag="gb"),
         O("s_mov_b32 s%d, %d" % (SWd+2, 448*896)), O("s_mov_b32 s%d, s%d" % (SWd+3, SX+3)), O("s_mul_i32 s%d, s2, %d" % (sOO, 128*896))]
    return L
def wsetup():
    L = []
    a = lambda s, **k: L.append(O(s, **k))
    LN_ = 40
    a("s_mul_i32 s%d, s3, 28672" % sWO)
    a("s_add_u32 s%d, s%d, s%d" % (sWO, sWO, sT2))
    a("s_add_u32 s%d, s%d, %d" % (sWLIM, sT2, 14*28672))
    a("s_lshr_b32 s14, s2, 3"); a("s_lshl_b32 s14, s14, 2"); a("s_add_u32 s14, s14, s%d" % sW); a("s_mul_i32 s14, s14, 3200")
    a("v_min_u32 v131, 24, v%d" % LN_); a("v_lshlrev_b32 v131, 7, v131")
    a("s_movk_i32 s12, 672"); a("s_movk_i32 s13, 896")
    a("v_mul_u32_u24 v45, 4682, v%d" % LN_)
    for i in range(7):
        const = (3072 if i >= 3 else 0) - (10752 if i >= 4 else 0)
        if i: a("v_add_u32 v46, %d, v45" % (64*i*4682)); a("v_lshrrev_b32 v46, 16, v46")
        else: a("v_lshrrev_b32 v46, 16, v45")
        a("v_and_b32 v47, 12, v46")
        a("v_mad_u32_u24 v%d, v46, s12, v%d" % (VO+i, VL))
        a("v_mad_u32_u24 v%d, v47, s13, v%d" % (VO+i, VO+i))
        if i == 3:
            a("v_lshrrev_b32 v47, 4, v46"); a("v_mul_u32_u24 v47, 10752, v47"); a("v_sub_u32 v%d, v%d, v47" % (VO+i, VO+i))
        if const: a("v_add_u32 v%d, %d, v%d" % (VO+i, const & 0xffffffff, VO+i))
    return L
FTAB = 0x1e
def addr_math(part):
    L = []
    a = lambda s, **k: L.append(O(s, **k))
    LN_, P_, RR, GA = 40, 41, 42, 52
    a("s_mov_b32 s%d, %d" % (SO+2, NB)); a("s_mov_b32 s%d, 0x20000" % (SO+3))
    a("s_mov_b32 s%d, 0xffff0000" % sMASK)
    a("s_and_b32 s15, s%d, 1" % sW)
    a("s_mov_b32 s%d, 0x%08x" % (sINV, f2u(1.0/448)))
    a("v_mov_b32 v%d, 0x%08x" % (EPS, f2u(1e-5)))
    a("s_sub_u32 s%d, s3, 14" % sT); a("s_min_u32 s3, s3, s%d" % sT)
    a("s_sub_u32 s%d, s3, 14" % sT); a("s_min_u32 s3, s3, s%d" % sT)
    a("s_mul_i32 s%d, s%d, 224" % (sT2, sW))
    a("v_lshlrev_b32 v%d, 4, v%d" % (GA, P_))
    a("v_cmp_eq_u32 vcc, 3, v%d" % RR)
    a("v_lshlrev_b32 v45, 5, v%d" % P_)
    a("v_mov_b32 v46, 0x100")
    a("v_cndmask_b32 v45, v%d, v45, vcc" % GA)
    a("v_cndmask_b32_e64 v46, v46, 16, vcc")
    a("v_lshl_add_u32 v50, v%d, 9, v45" % RR)
    a("v_add_u32 v50, s%d, v50" % sREG); a("v_add_u32 v%d, s%d, v%d" % (GA, sREG, GA))
    a("v_add_u32 v51, v50, v46")
    a("s_movk_i32 s12, 0x78")
    a("v_lshrrev_b32 v45, 2, v%d" % P_)
    a("v_lshlrev_b32 v46, 1, v45"); a("v_bfe_u32 v46, s12, v46, 2")
    a("v_xor_b32 v46, v46, v%d" % RR)
    a("v_lshrrev_b32 v47, 1, v46"); a("v_and_b32 v48, 3, v%d" % P_); a("v_xor_b32 v47, v47, v48")
    a("v_lshlrev_b32 v47, 4, v47"); a("v_lshl_add_u32 v47, v46, 6, v47")
    a("v_mul_u32_u24 v45, %d, v45" % WREG); a("v_add_u32 v%d, v45, v47" % XR)
    a("s_lshl_b32 s41, s%d, 1" % sW); a("s_lshr_b32 s41, s12, s41"); a("s_and_b32 s41, s41, 3")
    def common(qexpr_ops):
        for s in qexpr_ops: a(s)
        a("v_xor_b32 v46, s41, v46")
        a("v_lshrrev_b32 v47, 1, v46"); a("v_xor_b32 v47, v47, v%d" % RR); a("v_lshlrev_b32 v47, 4, v47")
        a("v_lshl_add_u32 v47, v46, 6, v47"); a("v_add_u32 v47, s%d, v47" % sREG)
    common(["v_and_b32 v46, 3, v%d" % P_])
    a("v_lshrrev_b32 v46, 2, v%d" % P_); a("v_subrev_u32 v46, s3, v46")
    for c in range(3):
        if c: a("v_add_u32 v46, 4, v46")
        a("v_add_u32 v48, 14, v46"); a("v_min_u32 v48, v48, v46")
        a("v_lshl_add_u32 v%d, v48, 10, v47" % (LWY+c)); a("v_lshl_add_u32 v%d, v48, 8, v47" % (LWZ+c))
    common(["v_bfe_u32 v46, v%d, 1, 2" % P_])
    a("v_and_b32 v46, 1, v%d" % P_); a("v_lshl_add_u32 v47, v46, 3, v47")
    a("v_lshrrev_b32 v46, 3, v%d" % P_); a("v_add_u32 v46, 12, v46"); a("v_subrev_u32 v46, s3, v46")
    a("v_add_u32 v48, 14, v46"); a("v_min_u32 v48, v48, v46")
    a("v_lshl_add_u32 v%d, v48, 10, v47" % (LWY+3)); a("v_lshl_add_u32 v%d, v48, 8, v47" % (LWZ+3))
    if part == 1: return L[:]
    del L[:]
    a("s_lshl_b32 s41, s15, 5")
    a("v_lshrrev_b32 v45, 2, v%d" % LN_); a("v_mul_u32_u24 v45, 224, v45"); a("v_and_b32 v46, 3, v%d" % LN_)
    a("v_add_u32 v45, s%d, v45" % sREG)
    a("v_lshl_add_u32 v%d, v46, %d, v45" % (TR1, 3 if cfg.nocf else 4)); a("v_add_u32 v%d, s41, v%d" % (TR1, TR1))
    a("s_mul_i32 s12, s15, 192"); a("s_sub_u32 s12, 192, s12")
    a("v_lshl_add_u32 v%d, v46, 3, v45" % TR2); a("v_add_u32 v%d, s12, v%d" % (TR2, TR2))
    return L
def late_addr():
    L = []
    a = lambda s, **k: L.append(O(s, **k))
    P_, RR = 16, 17
    ST, OS, OW, OR = 20, 21, 22, 16
    a("v_mbcnt_lo_u32_b32 v17, -1, 0"); a("v_mbcnt_hi_u32_b32 v17, -1, v17")
    a("v_and_b32 v16, 15, v17"); a("v_lshrrev_b32 v17, 4, v17")
    a("v_lshrrev_b32 v18, 2, v%d" % P_); a("v_and_b32 v19, 3, v%d" % P_); a("v_lshl_add_u32 v18, v18, 5, v19")
    a("v_mul_u32_u24 v18, 896, v18"); a("v_lshl_add_u32 v18, v%d, 4, v18" % RR)
    a("s_lshl_b32 s41, s15, 5"); a("s_add_u32 s12, s41, s%d" % sT2)
    a("v_add_u32 v%d, s12, v18" % ST)
    a("s_lshr_b32 s13, s%d, 1" % sW)
    a("s_mul_i32 s12, s13, 448"); a("s_mul_i32 s%d, s15, 3584" % sPAR); a("s_add_u32 s12, s12, 192")
    a("v_add_u32 v%d, s12, v18" % OS)
    a("v_lshlrev_b32 v18, 5, v%d" % P_)
    a("v_lshl_add_u32 v19, v%d, 3, v18" % RR); a("v_add_u32 v%d, s%d, v19" % (OW, sREG))
    a("v_and_b32 v19, 1, v%d" % RR); a("v_lshl_add_u32 v18, v19, 4, v18")
    a("v_lshrrev_b32 v19, 1, v%d" % RR); a("v_mul_u32_u24 v19, %d, v19" % WREG); a("v_add_u32 v18, v18, v19")
    a("s_mul_i32 s12, s13, %d" % (2*WREG)); a("s_lshl_b32 s42, s15, 9"); a("s_add_u32 s12, s12, s42")
    a("v_add_u32 v%d, s12, v18" % OR)
    return L
def gbtable():
    GA = 52
    L = [WAIT(v="gb")]
    for i in range(8):
        L += [O("v_lshlrev_b32 v%d, 16, v%d" % (56+2*i, 136+i)), O("v_and_b32 v%d, s%d, v%d" % (57+2*i, sMASK, 136+i))]
        if i == 3: L += [O("ds_write_b128 v50, v[56:59] offset:%d" % GTAB), O("ds_write_b128 v51, v[60:63] offset:%d" % GTAB)]
    L += [O("ds_write_b128 v50, v[64:67] offset:%d" % (GTAB+2048)), O("ds_write_b128 v51, v[68:71] offset:%d" % (GTAB+2048))]
    for v in range(7):
        L.append(O("ds_read_b128 %s, v%d offset:%d" % (vr(GE+4*v, 4), GA, GTAB+256*v)))
        L.append(O("ds_read_b128 %s, v%d offset:%d" % (vr(BE+4*v, 4), GA, GTAB+2048+256*v), tag="gbr" if v == 6 else None))
    return L

def half(n):
    j, x = divmod(n, 2)
    return j, cfg.horder.get(j, (0, 1))[x]
def build():
    wn[0] = 0; xn[0] = 0; stampn[0] = 0; del stampnames[:]; m0state[0] = None; TR2late[0] = False
    code = []; trace = []
    def emit(L): code.extend(L); trace.extend(L)
    emit(prologue())
    fb = [0]
    def xread(tile, j):
        return O("ds_read_b128 %s, v%d offset:%d" % (vr(F[fb[0] & 1], 4), XR, xoff(tile, j % 14)), tag="xf", sem=("X", tile, j % 14))
    pre = {}
    def units(seq, nxt):
        mf = []; fixed = {}; starts = []
        for k, u in enumerate(seq):
            tile, j = u[0], u[1]
            g = len(mf); starts.append(g)
            if (tile, j) in pre: cur = pre[(tile, j)]
            else: cur = F[fb[0] & 1]; fb[0] += 1
            n = seq[k+1] if k+1 < len(seq) else nxt
            acc = ACC[tile] if tile < 4 else ACC[2]
            ts = u[3] if len(u) > 3 else range(7)
            for t in ts: mf.append(mfma(acc, j, t, cur, None if len(u) < 3 or u[2] is None else u[2][t], tile))
            if n is not None and (n[0], n[1]) not in pre:
                fixed.setdefault(g, []).append(xread(n[0], n[1]))
                fixed.setdefault(len(mf)-1, []).append(WAIT(l="xf"))
        return mf, fixed, starts
    st8 = dict(ri=0, li=0, th=0, vis=0, wi=0)
    done = set(); waited = set()
    def simple(tok):
        if tok[0] in "xw" and "+" not in tok:
            out = []
            for o in (xdma if tok[0] == "x" else wdma)(int(tok[1:])):
                for tg in o.needs:
                    if tg.startswith("tr") and tg not in waited: waited.add(tg); out.append(WAIT(l=tg))
                out.append(o)
            return out
        if tok[0] == "t" and "+" not in tok:
            j, h = half(st8["th"]); st8["th"] += 1
            return [WAIT(v=wland(j, h))] + trreads(j, h)
        if tok == "y": return [WAIT(l=0)]
        if tok == "-": return []
        if tok == "T":
            return [O("s_mov_b32 s%d, %d" % (SO+2, NB)), O("s_mov_b32 s%d, 0x20000" % (SO+3)),
                    O("v_and_b32 v124, 1, v40"), O("v_mul_u32_u24 v125, %d, v124" % (128*896-4)), O("v_mul_u32_u24 v124, %d, v124" % (448*896-4)),
                    O("buffer_load_dword v125, v125, s[%d:%d], s%d offen" % (SO, SO+3, sOO)),
                    O("buffer_load_dword v124, v124, s[%d:%d], 0 offen" % (SWd, SWd+3))]
        if tok == "|": return [O("@SPLIT", kind="L")]
        if tok == "J": return [O("    s_branch L_main", kind="L"), O(".p2align 12", kind="L"), O(".fill %d, 4, 0xbf810000" % (cfg.joff//4), kind="L"), O("L_main:")]
        if tok == "H":
            hn = st8.setdefault("hn", 0); st8["hn"] += 1
            L = [O("    s_mov_b64 vcc, 1", kind="L")]
            for k in range(4):
                L += [O("@H%d    s_cmp_eq_u32 s%d, %d" % (4*hn+k, sW, k), kind="L"), O("@H%d    s_cbranch_scc1 L_pad%d" % (4*hn+k, 4*hn+k), kind="L")]
            return L + [O("L_padret%d:" % hn), O("s_mov_b64 vcc, 0")]
        if tok == "I":
            return [O("s_lshl_b32 s43, s%d, 2" % sW), O("v_mov_b32 v124, s43"), O("v_mov_b32 v125, 0"), O("v_mov_b32 v126, 1"),
                    O("ds_write_b32 v124, v125 offset:%d" % FLAGO), WAIT(l=0), O("s_barrier")]
        if tok == "S":
            st8["fvis"] = st8["wi"]//4
            return [WAIT(l=0), O("ds_write_b32 v124, v126 offset:%d" % FLAGO)]
        if tok == "Q": return [O("ds_read_b128 v[140:143], v125 offset:%d" % FLAGO, tag="fl")]
        if tok == "K":
            st8["vis"] = st8["fvis"]
            return [O("L_chk:"), WAIT(l="fl"), O("v_and_b32 v140, v140, v141"), O("v_and_b32 v142, v142, v143"), O("v_and_b32 v140, v140, v142"), O("s_nop 0"),
                    O("v_readfirstlane_b32 s43, v140"), O("s_cmp_eq_u32 s43, 1", tag="scc:k"), O("s_cbranch_scc1 L_ok", needs=["scc:k"]),
                    O("    ds_read_b128 v[140:143], v125 offset:%d" % FLAGO, kind="L"), O("    s_waitcnt lgkmcnt(0)", kind="L"), O("    s_branch L_chk", kind="L"), O("L_ok:")]
        if tok == "Z":
            st8["vis"] = st8["wi"]//4
            return [WAIT(l=0), O("s_barrier")]
        if tok[0] == "d" and "+" not in tok:
            out = []
            for _ in range(int(tok[1:] or 1)):
                i, c = divmod(st8["wi"], 4); st8["wi"] += 1; assert i < st8["li"]
                out.append(lnwrites(i)[c])
            return out
        if tok[0] == "s" and "+" not in tok: return stamp(tok)
        if "+" in tok: return [o for t in tok.split("+") for o in simple(t)]
        if tok[0] == "F":
            j = int(tok[1:]); assert st8["vis"] >= 4; out = []
            for t in range(4):
                pre[(t, j)] = wf(j + cfg.fo, t)
                out.append(O("ds_read_b128 %s, v%d offset:%d" % (pre[(t, j)], XR, xoff(t, j)), sem=("X", t, j)))
            return out
        if tok == "P": return [O("buffer_load_dword v136, v131, s[%d:%d], s14 offen" % (SWd, SWd+3))]
        raise Exception(tok)
    nz = 0
    for tok in cfg.early.split():
        head, _, spr = tok.partition(":")
        spr = spr.split(",") if spr else []
        if tok == "G": emit(gbload())
        elif tok == "E": emit([O(o.text.replace("s11", "s15"), tag=o.tag, needs=o.needs) for o in codepf()])
        elif tok == "P": emit([O("buffer_load_dword v136, v131, s[%d:%d], s14 offen" % (SWd, SWd+3))])
        elif tok == "A": emit(addr_math(1))
        elif tok == "A2": emit(addr_math(2) + wsetup())
        elif tok == "B": emit(stamp("mb")); emit(gbtable())
        elif head == "C":
            li = st8["li"]
            emit(stamp("c%d" % li))
            A = ln_code(li); out = []
            items = []
            for k, t in enumerate(spr):
                t, _, pct = t.partition("@")
                nops = [i for i, o in enumerate(A) if o.text == "s_nop 0"]
                items.append((nops[int(pct[1:])] if pct[:1] == "n" else (int(pct)*len(A))//100 if pct else (k+1)*len(A)//(len(spr)+1), t))
            k = 0
            for idx, o in enumerate(A):
                ins = []
                while k < len(items) and idx >= items[k][0]: ins += simple(items[k][1]); k += 1
                out += ins
                if o.text == "s_nop 0" and ins: continue
                out.append(o)
            assert k == len(items)
            emit(out); emit(stamp("n%d" % li))
            st8["li"] += 1
        elif tok == "Z":
            bf = all((t, j) in done or (t, j) in pre for t in range(4) for j in range(2))
            emit([WAIT(l=0), O("s_barrier", tag="Bfree" if bf else "gbfree")]); st8["vis"] = st8["wi"]//4; st8["bf"] = bf
        elif head[0] == "U":
            tl, js = head[1:].split("@"); js = [int(x) for x in js.split("-")]
            seq = [(int(c), j) for j in range(js[0], js[-1]+1) for c in tl]
            for u in seq:
                assert u[0] < st8["vis"] and (u[1] == 0 or (u[0], u[1]-1) in done), tok
                done.add(u)
            emit(stamp("u%d" % js[0]))
            emit([xread(*seq[0]), WAIT(l=0)])
            mf, fixed, starts = units(seq, None)
            for k, u in enumerate(seq):
                if k and u[1] != seq[k-1][1]: fixed[starts[k]-1] = [WAIT(l=0)]
            segs = ",".join(spr).split("/"); n = 7*len(tl)
            for si in range(js[-1]-js[0]+1):
                stream = []
                for t in (segs[si].split(",") if si < len(segs) and segs[si] else []):
                    t, _, gp = t.partition("@")
                    ops = [o for o in simple(t)]
                    if ops and gp: ops[0].at = int(gp)
                    stream += ops
                emit(weave(mf[si*n:(si+1)*n], {g-si*n: v for g, v in fixed.items() if si*n <= g < (si+1)*n}, stream, 0, n-3))
        else: emit(simple(tok))
    assert st8["wi"] == 28 and st8["li"] == 8 and xn[0] == 32 and st8["vis"] >= 5
    th = st8["th"]
    emit(stamp("mp"))
    def canissue():
        n = wn[0]; rd = set(half(x) for x in range(th))
        while n < 105:
            j, ii = divmod(n, 7); i = worder(j)[ii]
            if any(x not in rd for x in wneeds(j, i)): break
            n += 1
        return n - wn[0]
    order = [3, 0, 1, 2]
    seq = [(t, j) for j in range(14) for t in order if (t, j) not in done]
    assert th >= 2*seq[0][1] + 2
    emit([xread(*seq[0]), WAIT(l=0)])
    S2 = [4, 5, 6, 7]
    mf, fixed, starts = units(seq, (S2[0], 1))
    first = {}
    for k, u in enumerate(seq): first.setdefault(u[1], starts[k])
    def used(g):
        u = 0
        for o in fixed.get(g, []):
            if o.kind == "V" and u < 1: u = 1
            u += cost(o)
        return u
    def fx(g, ops, front=False):
        if front: fixed[g] = ops + fixed.get(g, [])
        else: fixed.setdefault(g, []).extend(ops)
    put = fx
    def putdma(g, d, gprep):
        pend = []; firstd = True
        for o in d:
            if o.kind != "G":
                if o.text != "s_nop 0": pend.append(o)
                continue
            while used(g) > 0: g += 1
            if pend:
                if firstd and gprep is not None:
                    gp = gprep
                    for p in pend:
                        while used(gp) >= 3 and gp < g-1: gp += 1
                        put(gp, [p])
                else: put(g-1, pend)
            put(g, [o]); pend = []; g += 1; firstd = False
        return g
    def puttr(g, ops, gend):
        ops = list(ops); assert gend >= g
        load = {x: used(x) for x in range(g, gend+1)}; cnt = {x: 0 for x in load}
        for _ in ops:
            x = min(load, key=lambda x: (max(load[x]+2-3, 0), x)); load[x] += 2; cnt[x] += 1
        last = g
        for x in range(g, gend+1):
            for _ in range(cnt[x]): put(x, [ops.pop(0)]); last = x
        return last + 1
    def putseq(gw, ops):
        for o in ops:
            while used(gw) + (1 if o.kind == "V" and used(gw) < 1 else 0) >= 3: gw += 1
            put(gw, [o])
        return gw
    d0 = wdma(canissue())
    k0 = next((i for i, x in enumerate(d0) if x.kind == "G"), 0)
    emit(d0[:k0])
    g = putdma(1, d0[k0:], None)
    while th < 28:
        k, h = half(th); second = th % 2; th += 1
        yt = first[k] - cfg.lead - (0 if second else 14)
        D = first[k] - 1 - (0 if second else cfg.minp)
        y = min(max(yt, g + 7 + cfg.lat), D)
        gs = max(min(g, y - cfg.lat - 4), y - 11, 0)
        while used(gs) > 0 and gs < y - cfg.lat - 6: gs += 1
        put(gs, [WAIT(v=wland(k, h))])
        ge = puttr(gs, trreads(k, h), y - cfg.lat)
        put(y, [WAIT(l="tr%dh%d" % (k, h))])
        nb = wn[0]
        g = putdma(max(g, y+1), wdma(canissue()), max(ge, g))
        if nb < 105 and wn[0] == 105: glast = g
    assert wn[0] == 105
    gm = putseq(glast, late_addr())
    for j in sorted(first):
        if first[j] > 0: put(first[j]-1, stamp("p%d" % j))
    Q = lambda a, k: ACC[a] + 4*k
    HOLD = {3: [Q(3, 1), Q(3, 3), Q(3, 5)], 0: [Q(0, 1), Q(0, 3), Q(0, 5)], 1: [Q(1, 1), Q(1, 3), Q(1, 5)],
            2: [Q(0, 0), Q(0, 2), Q(0, 4)], 4: [Q(1, 0), Q(1, 2), Q(1, 4)], 5: [Q(1, 1), Q(1, 3), Q(1, 5)],
            6: [Q(0, 1), Q(0, 3), Q(0, 5)], 7: [Q(0, 0), Q(0, 2), Q(0, 4)]}
    OPK = 18; OT = Q(0, 6)
    def oddw(tile, src): return O("ds_write_b64 v%d, %s offset:%d" % (OW, vr(src, 2), ODDO + 512*tile), cost=3, needs=["tr13h0", "tr13h1"], sem=("OW", tile))
    def store(tile, P):
        return [O("s_add_u32 s%d, s%d, %d" % (sO2, sOO, 3584*tile), sem=("SO", ("ST", tile))),
                O("buffer_store_dwordx4 %s, v%d, s[%d:%d], s%d offen offset:%d%s" % (vr(HOLD[tile][P], 4), ST, SO, SO+3, sO2, 64*P, cfg.spol), sem=("ST", tile, P))]
    def pair_inplace(tile, P):
        x0, x1 = ACC[tile]+8*P, ACC[tile]+8*P+4
        return [cvt(x1+3, x1+2), cvt(x1+2, x1), cvt(x1, x0), cvt(x1+1, x0+2)]
    def odd_inplace(tile):
        x = ACC[tile]+24
        return [cvt(x, x), cvt(x+1, x+2)], oddw(tile, x)
    def pkcvt(tile, t):
        d = OPK if t == 6 else HOLD[tile][t >> 1] + 2*(t & 1)
        return [cvt(d, ACC[2]+4*t), cvt(d+1, ACC[2]+4*t+2)]
    E = first[13]
    assert gm < E + 8
    for k in (3, 4, 5): put(E+k, [O("s_nop 0")])
    putseq(E+8, pair_inplace(3, 0) + pair_inplace(3, 1) + pair_inplace(3, 2))
    putseq(E+15, pair_inplace(0, 0) + pair_inplace(0, 1) + pair_inplace(0, 2))
    sx = store(3, 0); put(E+21, sx[:1]); put(E+22, sx[1:])
    put(E+23, [O("s_nop 1")]); put(E+24, [O("s_nop 1")])
    for t in range(3): put(E+25+t, pkcvt(2, t))
    emit(weave(mf, fixed, [], 0, 0))
    emit(stamp("mq"))
    plan = cfg.plan
    om = [0]
    def oddso(m): return [O("s_add_u32 s%d, s%d, %d" % (sO2, sPAR, 7168*m), sem=("SO", None)), O("s_add_u32 s%d, s%d, s%d" % (sO2, sO2, sOO), sem=("SO", ("OS", m)))]
    def oddst(m): return O("buffer_store_dwordx4 %s, v%d, s[%d:%d], s%d offen%s" % (vr(OT, 4), OS, SO, SO+3, sO2, cfg.spol), sem=("OS", m))
    pw = lnwrites(7)
    for bi, tile in enumerate(S2):
        prev = 2 if bi == 0 else S2[bi-1]
        mf, fixed, _ = units([(tile, j) for j in range(1, 15 if bi < 3 else 15 - cfg.nl)], (S2[bi+1], 1) if bi < 3 else None)
        for t in range(3, 7): fx(t-2, pkcvt(prev, t))
        fx(8, [oddw(prev, OPK)], front=True)
        if bi == 0:
            gq = 9
            for tl in (3, 0, 1):
                c, o = odd_inplace(tl); gq = putseq(gq, c) + 1
                while used(gq) > 0: gq += 1
                fx(gq, [o]); gq += 1
            putseq(gq, pair_inplace(1, 0) + pair_inplace(1, 1) + pair_inplace(1, 2))
        items = plan[bi]; n = len(items)
        lo = 5 if bi == 0 else 10
        for k, it in enumerate(items):
            g = lo + ((90 if bi < 3 else cfg.lhi)-lo)*k//n
            while used(g) > 0 or used(g-1) > 2 or (it == "o" and used(g-2) > 1): g += 1
            if it == "o":
                m = om[0]; om[0] += 1
                gr = g - 9
                while used(gr) > 1: gr -= 1
                bar = min(b for b in cfg.bars if (3 if b == 0 else S2[b-1]) >= 2*m+1)
                fx(gr, [O("ds_read_b128 %s, v%d offset:%d" % (vr(OT, 4), OR, ODDO + 1024*m), needs=["bar%d" % bar], tag="od")], front=True)
                fx(g-2, oddso(m), front=True); fx(g-1, [WAIT(l="od")], front=True); fx(g, [oddst(m)])
            elif it == "w": fx(g, [pw.pop(0)])
            else:
                s = store(*it); fx(g-1, s[:1], front=True); fx(g, s[1:])
                if it == (3, 2): g32 = g
        if bi == 0:
            gs = max(g32 + 3, 45)
            fx(gs, [WAIT(v=wland(14, 1))], front=True)
            puttr(gs, trreads(14, 0) + trreads(14, 1), 84)
            fixed[90] = [WAIT(l=0)]
        if bi in cfg.bars:
            fixed[90] = [WAIT(l=0)]
            fx(91, [O("s_barrier", tag="bar%d" % bi)], front=True)
            if not pw: t7vis = True
        if bi < 3:
            fx(92, [O("s_nop 0")]); fx(93, [O("s_nop 0")]); fx(94, [O("s_nop 1")])
            for t in range(3): fx(95+t, pkcvt(tile, t))
        else:
            assert t7vis
            NL = cfg.nl; j0 = 15 - NL; G0 = 7*(14 - NL)
            XF = [24, 28, 32, Q(1, 6), Q(1, 0), Q(1, 2), Q(1, 4), Q(1, 1), Q(1, 3), Q(1, 5)][:NL]
            rd = [O("ds_read_b128 %s, v%d offset:%d" % (vr(XF[k], 4), XR, xoff(tile, (j0+k) % 14)), tag="xl", sem=("X", tile, (j0+k) % 14)) for k in range(NL)]
            puttr(max(5, G0 - 2*NL - 6), rd, G0 - 5)
            fx(G0-1, [WAIT(l="xl")])
            for ts in ([6], [0, 1], [2, 3], [4, 5]):
                for k in range(NL):
                    for t in ts: mf.append(mfma(ACC[2], j0+k, t, XF[k], None, tile))
            a6 = G0 + NL; a0_ = a6 + 2*NL; a1_ = a0_ + 2*NL
            fx(a6, [O("s_nop 1")]); fx(a6+1, [O("s_nop 1")]); fx(a6+2, [O("s_nop 0")] + pkcvt(tile, 6)); fx(a6+3, [oddw(tile, OPK)])
            fx(a6+6, [WAIT(l=0), O("s_barrier")]); fx(a6+7, [O("ds_read_b128 %s, v%d offset:%d" % (vr(OT, 4), OR, ODDO + 3072), tag="od")])
            fx(a0_, [O("s_nop 1")]); fx(a0_+1, [O("s_nop 1")]); fx(a0_+2, [O("s_nop 0")] + pkcvt(tile, 0)); fx(a0_+3, store(tile, 0)[:1] + pkcvt(tile, 1)); fx(a0_+4, store(tile, 0)[1:])
            go = a0_+5 if NL < 8 else a6+13
            fx(go, oddso(3)); fx(go+1, [WAIT(l="od")]); fx(go+2, [oddst(3)])
            fx(a1_, [O("s_nop 1")]); fx(a1_+1, [O("s_nop 1")]); fx(a1_+2, [O("s_nop 0")] + pkcvt(tile, 2)); fx(a1_+3, store(tile, 1)[:1] + pkcvt(tile, 3)); fx(a1_+4, store(tile, 1)[1:])
        emit(weave(mf, fixed, [], 0, 0))
        emit(stamp("m%d" % (bi+4)))
    lt = S2[3]
    Tl = [O("s_nop 6")] + pkcvt(lt, 4) + pkcvt(lt, 5) + store(lt, 2)[1:]
    assert om[0] == 3 and st8["vis"] >= 7
    emit(Tl)
    if cfg.stamps:
        emit(stamp("z1")); emit([O("s_waitcnt vmcnt(0)")]); emit(stamp("z2"))
        S = [O("s_waitcnt lgkmcnt(0)"), O("s_mov_b32 s50, 0x10000000"), O("s_mov_b32 s51, 0x20000"), O("v_mov_b32 v40, 0")]
        for i in range(stampn[0]): S.append(O("v_writelane_b32 v40, s%d, %d" % (52+2*i, i)))
        S += [O("s_lshl_b32 s3, s2, 2"), O("s_add_u32 s3, s3, s%d" % sW), O("s_lshl_b32 s3, s3, 8"),
              O("v_mbcnt_lo_u32_b32 v41, -1, 0"), O("v_mbcnt_hi_u32_b32 v41, -1, v41"), O("v_lshlrev_b32 v41, 2, v41"),
              O("buffer_store_dword v40, v41, s[48:51], s3 offen sc1")]
        emit(S)
    emit([O("L_end:"), O("s_endpgm")])
    errs = resolve_and_verify(trace) + semcheck(trace)
    for e in errs[:40]: print("ERR", e, file=sys.stderr)
    if errs: raise Exception("verify failed: %d" % len(errs))
    return code

def render(code, kname):
    hdr = open('cdna_kernels/%s.s.ref' % NAME).read().split('\n')
    L = [l for l in hdr if l.startswith(';') and '@launch' not in l]
    L += ["; @launch grid=(256,1,1) block=(256,1,1) lds=163840", '.amdgcn_target "amdgcn-amd-amdhsa--gfx950"', ".text",
          ".globl %s" % kname, ".p2align 8", ".type %s,@function" % kname, "%s:" % kname]
    L += code
    if cfg.cpf: L += [".fill 3000, 4, 0xbf810000"]
    L += ['.section .rodata,"a"', ".p2align 6", ".amdhsa_kernel %s" % kname, "  .amdhsa_next_free_vgpr 512", "  .amdhsa_next_free_sgpr 102",
          "  .amdhsa_accum_offset 256", "  .amdhsa_group_segment_fixed_size 0", "  .amdhsa_kernarg_size 56", "  .amdhsa_user_sgpr_count 2",
          "  .amdhsa_user_sgpr_kernarg_segment_ptr 1", "  .amdhsa_system_sgpr_workgroup_id_x 1", ".end_amdhsa_kernel"]
    return '\n'.join(L) + '\n'
def addrs(lines, kname):
    import subprocess
    lab = []
    for i, l in enumerate(lines): lab += ["Lq%d:" % i, l]
    open("_a.s", "w").write(render(lab, kname))
    subprocess.run(["clang", "-x", "assembler", "-target", "amdgcn-amd-amdhsa", "-mcpu=gfx950", "-c", "_a.s", "-o", "_a.o"], check=True)
    out = subprocess.run(["llvm-objdump", "-t", "_a.o"], capture_output=True, text=True).stdout
    A = {}
    for l in out.splitlines():
        p = l.split()
        if p and p[-1].startswith("Lq"): A[int(p[-1][2:])] = int(p[0], 16)
    return [A[i] for i in range(len(lines))]
def write(path, kname=NAME+"_kernel"):
    code = build()
    if cfg.nostore: code = [o for o in code if not (o.sem and o.sem[0] in ("ST", "OS"))]
    lines = [("" if o.kind == "L" else "    ") + o.render() for o in code]
    if cfg.alt:
        import re as _re
        global stampnames
        names1 = list(stampnames)
        save = {k: getattr(cfg, k) for k in cfg.alt}
        for k, v in cfg.alt.items(): setattr(cfg, k, v)
        l2 = [("" if o.kind == "L" else "    ") + o.render() for o in build()]
        for k, v in save.items(): setattr(cfg, k, v)
        assert names1 == stampnames, (names1, stampnames)
        i = lines.index("@SPLIT"); assert lines[:i+1] == l2[:i+1]
        l2 = [_re.sub(r"\bL_(chk|ok|end)\b", r"L_\g<1>2", x) for x in l2[i+1:]]
        lines = lines[:i] + ["    s_bitcmp1_b32 s2, %d" % cfg.gbit, "    s_cbranch_scc1 L_alt"] + lines[i+1:] + [".p2align 6", "L_alt:"] + l2
    lines = [l for l in lines if l != "@SPLIT"]
    if any(l.startswith("@H") for l in lines):
        nh = sum(1 for l in lines if l.startswith("L_padret"))
        main = lines.index("L_main:")
        npad = 0
        for k in range(4*nh):
            tmp = [(l[3:] if l.startswith("@H") else l) for l in lines] + ["L_pad%d:" % x for x in range(npad, 4*nh)]
            A = addrs(tmp, kname)
            bnd = (A[main]//4096 + k + cfg.padskip)*4096
            j = next((i for i in range(main+1, len(lines)) if A[i] >= bnd), None)
            if j is None: break
            i = next((i for i in range(j, len(lines)) if "v_mfma" in lines[i-1] and "v_mfma" in lines[i]), None)
            if i is None or A[i] >= bnd + 56: i = next(i for i in range(j, len(lines)) if not lines[i].lstrip().startswith(("s_cselect", "s_cbranch", "L_", ".", "@H", "s_mov_b64 vcc")))
            assert i > lines.index("L_padret%d:" % (nh-1)) + 1
            lines[i:i] = ["L_pad%d:" % k, "    s_cbranch_vccnz L_padret%d" % (k//4)]; npad += 1
        lines = [(l[3:] if int(l[2]) < npad else "    s_nop 0") if l.startswith("@H") else l for l in lines]
        vl = [i for i, l in enumerate(lines) if "vcc" in l and "vccnz" not in l]
        assert lines[vl[-1]].strip() == "s_mov_b64 vcc, 0" and vl[-1] < lines.index("L_pad0:"), "vcc must be 0 at every pad"
        print("pads:", npad, file=sys.stderr)
    open(path, 'w').write(render(lines, kname))
if __name__ == "__main__":
    write("v13.s")
```

```python
import gen14, sys
from final2 import BASE as B0, gz, X4n
BASE = dict(B0)
tail = gz[len("G x12 "):]
def make(path, **kw):
    c = gen14.Cfg(); gen14.cfg = c
    for k, v in dict(BASE, **kw).items(): setattr(c, k, v)
    gen14.write(path)
if __name__ == "__main__":
    make("u_a.s", early="E G x12 T " + tail)
    make("u_b.s", early="x4 E G x8 T " + tail)
    make("u_c.s", early="x8 E G T x4 " + tail)
    make("u_d.s", early="x12 E G T " + tail)
    make("u_e.s", early="x8 G T x4 " + tail, pffirst=True)
    make("u_f.s", early="x10 E G x2 " + tail)
```

```python
import sys, struct
from gen_core import *
NAME = "standalone__layernorm_linear__sampling"
def f2u(f): return struct.unpack('<I', struct.pack('<f', f))[0]
NB = 32768*896

class Cfg:
    stamps = False
    sites = "m"
    early = "G x12 A A2 x4 B C:x2@60 x2 d4 C:x2@60 x2 d4 C:x2@60 x2 d4 C:x2@60 x2 d4 C:w1@60 w2 d4 C:w1@60 w2 d4 Z C:w1@60 w2 d4 C:w3@50,w2@60,ta@70,tb@85"
    imgoff = [0, 7168]*8
    worder = {}
    horder = {}
    xpol = " nt"
    spol = " sc1"
    cpf = 4
    plan = None
    cyc = False
    inw = True
    pace = 14
    endv = 2
    fo = 3
    lead = 7
    e13 = 14
    diag = 0
    diagq = 0
    bars = (0, 2)
    hwid = True
    twopass = True
    alt = None
    gbit = 7
    cpl = 168
    sbar = 0
    joff = 0
    padskip = 1
    padoff = 0
    parkd = ()
    eager = 0
    nocf = False
    nl = 4
    lhi = 62
    lpol = None
    w64 = False
    wlate = False
    nostore = False
    nobar2 = False
    gw = 8
    gwstep = 2
    minp = 12
    lat = 3
    tro = 5
    ybar = 4
    nobar = False
    ywr = 8
    trn = 6
cfg = Cfg()

XR, ST, OW, OR, OS, TR1, TR2 = 0, 20, 22, 16, 21, 5, 23
F = [8, 12]
T = 16
VO = 16
ACC = {0: 36, 1: 64, 2: 92, 3: 228}
LWY, LWZ, RA, RB, VL, SS, SQ = 120, 1, 128, 129, 130, 132, 134
PARK = [24, 28, 32, 6]
U = 144; GE = 172; BE = 200; EPS = 127
RAW = [228, 242, 106, 92, 78, 64, 50, 36]
sW, sMASK, sWO, sWLIM, sREG, sXO, sOO, sT, sRET, sT2, sO2, sPAR, sINV = 32, 33, 34, 35, 36, 37, 38, 39, 40, 45, 46, 47, 44
SX, SG, SWd, SO = 16, 20, 24, 28
WREG = 40960
IMG = {"A": 0, "B": 7168}
YO = 15872; ZO = YO + 14336
T7O = 7168; ODDO = 10752; FLAGO = 15616
GTAB = 7168
def wf(j, t, half=None, tmp=None):
    f = 7*{13: 0, 14: 13}.get(j, j) + t
    p, r = ("a", 4*f) if f < 64 else ("v", 120 + 4*(f-64))
    if tmp is not None: p, r = "v", tmp
    if half is None: return "%s[%d:%d]" % (p, r, r+3)
    return "%s[%d:%d]" % (p, r+2*half, r+2*half+1)
def vr(a, n): return "v[%d:%d]" % (a, a+n-1)
O = Op
stampn = [0]; stampnames = []
def stamp(site="m"):
    if not cfg.stamps or site[0] not in cfg.sites + "z": return []
    i = stampn[0]; stampn[0] += 1; stampnames.append(site)
    assert 52+2*i+1 <= 101
    return [O("%s s[%d:%d]" % ("s_memtime" if cfg.cyc else "s_memrealtime", 52+2*i, 53+2*i), kind="S", cost=0.01)]
def mfma(acc, j, t, fb, tmp=None, tile=None):
    a = vr(acc+4*t, 4)
    if tile >= 4: return O("v_mfma_f32_16x16x32_bf16 %s, %s, %s, %s" % (a, wf(j, t), vr(fb, 4), "0" if j == 1 else a), sem=("M", tile, j % 14, t))
    return O("v_mfma_f32_16x16x32_bf16 %s, %s, %s, %s" % (a, wf(j, t, None, tmp), fb if isinstance(fb, str) else vr(fb, 4), "0" if j == 0 else a), sem=("M", tile, j, t))
m0state = [None]; TR2late = [False]
def setm0(off):
    if m0state[0] == off: return []
    m0state[0] = off
    return [O("s_add_u32 m0, s%d, %d" % (sREG, off))]
xn = [0]; wn = [0]
def xdma(n):
    L = []
    for _ in range(n):
        tl, c = divmod(xn[0], 4); xn[0] += 1
        if c == 0 and tl > 0: L.append(O("s_add_u32 s%d, s%d, 3584" % (sXO, sXO)))
        if c < 3: L.append(O("buffer_load_dwordx4 %s, v%d, s[%d:%d], s%d offen offset:%d%s" % (vr(RAW[tl]+4*c, 4), RA, SX, SX+3, sXO, 256*c, cfg.xpol), tag="x%d_%d" % (tl, c)))
        else: L.append(O("buffer_load_dwordx2 %s, v%d, s[%d:%d], s%d offen offset:768%s" % (vr(RAW[tl]+12, 2), RB, SX, SX+3, sXO, cfg.xpol), tag="x%d_%d" % (tl, c)))
    return L
def ioff(j): return cfg.imgoff[j]
def worder(j): return cfg.worder.get(j, list(range(7)))
def wland(j, h):
    o = worder(j); mem = range(0, 4) if h == 0 else range(3, 7)
    return "w%d_%d" % (j, max(mem, key=o.index))
def wneeds(j, i):
    a = ioff(j) + 1024*i; needs = []
    for k in range(j):
        for h in range(2):
            lo = ioff(k) + 3584*h
            if a < lo + 3584 and lo < a + 1024: needs.append((k, h))
    return needs
def wdma(n):
    L = []
    for _ in range(n):
        j, ii = divmod(wn[0], 7); wn[0] += 1
        i = worder(j)[ii]
        m0 = ioff(j) + (3072 if i >= 3 else 0)
        pre = setm0(m0)
        if ii == 0 and j > 0:
            pre.append(O("s_add_u32 s%d, s%d, 28672" % (sWO, sWO), sem=("ADV", "w", 0.5)))
            pre.append(O("s_cmp_ge_u32 s%d, s%d" % (sWO, sWLIM), tag="scc:w"))
            pre.append(O("s_cselect_b32 s%d, s%d, s%d" % (sWO, sT2, sWO), needs=["scc:w"], sem=("ADV", "w", 0.5)))
        if len(pre) == 1: pre.append(O("s_nop 0"))
        L += pre
        needs = ["tr%dh%d" % x for x in wneeds(j, i)]
        a = ioff(j) + 1024*i
        if GTAB <= a < GTAB + 4096: needs.append("gbr")
        L.append(O("buffer_load_dwordx4 v%d, s[%d:%d], s%d offen offset:%d lds" % (VO+i, SWd, SWd+3, sWO, 1024*(i-3 if i >= 3 else i)), tag="w%d_%d" % (j, i), needs=needs, sem=("DM", m0, "w", j)))
    return L
def trreads(j, h, ts=range(7), tmp=None, tag=None):
    L = []; ts = list(ts)
    for k, t in enumerate(ts):
        off = ioff(j) + h*3584 + ((32*t if cfg.nocf else 64*(t >> 1) + 8*(t & 1)) if t < 6 else 0)
        tg = tag or "tr%dh%d" % (j, h)
        L.append(O("ds_read_b64_tr_b16 %s, v%d offset:%d" % (wf(j, t, h, None if tmp is None else tmp+4*k), TR1 if t < 6 else (6 if TR2late[0] else TR2), off),
                   tag=(tg if k == len(ts)-1 else tg + "#%d" % t), needs=["w%d_%d" % (j, i) for i in (range(0, 4) if h == 0 else range(3, 7))], sem=("W", j % 14, t, h)))
    return L
def dpp(r, n): return O("v_add_f32_dpp v%d, v%d, v%d row_ror:%d row_mask:0xf bank_mask:0xf" % (r, r, r, n))
def ln_code1(li):
    S, Q = SS, SQ; R, N = SQ+1, SS+1
    RW = RAW[li]
    dst = [RW, RW+4, RW+8, RW+12] if li < 7 and li not in cfg.parkd else PARK
    p = lambda a: vr(a, 2)
    A = []
    for i in range(14):
        if i % 4 == 0: A.append(WAIT(v="x%d_%d" % (li, i//4)))
        if i == 12: A += stamp("r%d" % li)
        A += [O("v_lshlrev_b32 v%d, 16, v%d" % (U+2*i, RW+i)), O("v_and_b32 v%d, s%d, v%d" % (U+2*i+1, sMASK, RW+i))]
        if i == 1: A += [O("v_pk_add_f32 %s, %s, %s" % (p(S), p(U), p(U+2))), O("v_pk_mul_f32 %s, %s, %s" % (p(Q), p(U), p(U)))]
        if i >= 2:
            k = i-1
            if k >= 2: A.append(O("v_pk_add_f32 %s, %s, %s" % (p(S), p(S), p(U+2*k))))
            A.append(O("v_pk_fma_f32 %s, %s, %s, %s" % (p(Q), p(U+2*k), p(U+2*k), p(Q))))
    A += [O("v_pk_add_f32 %s, %s, %s" % (p(S), p(S), p(U+26))), O("v_pk_fma_f32 %s, %s, %s, %s" % (p(Q), p(U+26), p(U+26), p(Q)))]
    A += [O("v_add_f32 v%d, v%d, v%d" % (S, S, S+1)), O("v_add_f32 v%d, v%d, v%d" % (Q, Q, Q+1)), O("s_nop 0")]
    for n in (8, 4, 2, 1):
        A += [dpp(S, n), dpp(Q, n)] + ([O("s_nop 0")] if n != 1 else [])
    A += [O("v_mul_f32 v%d, 0x%08x, v%d" % (S, f2u(1.0/448), S)),
          O("v_mul_f32 v%d, v%d, v%d" % (N, S, S)),
          O("v_fma_f32 v%d, v%d, s%d, -v%d" % (Q, Q, sINV, N)),
          O("v_max_f32 v%d, 0, v%d" % (Q, Q)),
          O("v_add_f32 v%d, 0x%08x, v%d" % (Q, f2u(1e-5), Q)),
          O("v_rsq_f32 v%d, v%d" % (R, Q)),
          O("s_nop 0"),
          O("v_mul_f32_e64 v%d, -v%d, v%d" % (N, S, R))]
    if li == 0: A.append(WAIT(l="gbr"))
    for c in range(4):
        n = 4 if c < 3 else 2
        for i in range(4*c, 4*c+n):
            A.append(O("v_pk_fma_f32 %s, %s, %s, %s op_sel:[0,1,1] op_sel_hi:[1,1,1]" % (p(U+2*i), p(U+2*i), p(Q), p(S))))
        for i in range(4*c, 4*c+n):
            A.append(O("v_pk_fma_f32 %s, %s, %s, %s" % (p(U+2*i), p(U+2*i), p(GE+2*i), p(BE+2*i))))
        for i in range(n):
            A.append(O("v_cvt_pk_bf16_f32 v%d, v%d, v%d" % (dst[c]+i, U+8*c+2*i, U+8*c+2*i+1)))
    return A
def ln_code3(li):
    S, Q = SS, SQ; R, N = SQ+1, SS+1
    C = 136
    RW = RAW[li]
    dst = [RW, RW+4, RW+8, RW+12] if li < 7 and li not in cfg.parkd else PARK
    p = lambda a: vr(a, 2)
    sub = lambda i: O("v_pk_add_f32 %s, %s, %s op_sel_hi:[1,0] neg_lo:[0,1] neg_hi:[0,1]" % (p(U+2*i), p(U+2*i), p(C)))
    def acc(k):
        if k == 0: return [O("v_pk_mul_f32 %s, %s, %s" % (p(Q), p(U), p(U)))]
        return [O("v_pk_add_f32 %s, %s, %s" % (p(S), p(U) if k == 1 else p(S), p(U+2*k))), O("v_pk_fma_f32 %s, %s, %s, %s" % (p(Q), p(U+2*k), p(U+2*k), p(Q)))]
    A = []
    for i in range(14):
        if i % 4 == 0: A.append(WAIT(v="x%d_%d" % (li, i//4)))
        if i == 12: A += stamp("r%d" % li)
        A += [O("v_lshlrev_b32 v%d, 16, v%d" % (U+2*i, RW+i)), O("v_and_b32 v%d, s%d, v%d" % (U+2*i+1, sMASK, RW+i))]
        if i == 1: A.append(O("v_mov_b32_dpp v%d, v%d row_newbcast:0 row_mask:0xf bank_mask:0xf" % (C, U)))
        if i >= 2: A.append(sub(i-2))
        if i >= 3: A += acc(i-3)
    A += [sub(12)] + acc(11) + [sub(13)] + acc(12) + acc(13)
    A += [O("v_add_f32 v%d, v%d, v%d" % (S, S, S+1)), O("v_add_f32 v%d, v%d, v%d" % (Q, Q, Q+1)), O("s_nop 0")]
    for n in (8, 4, 2, 1):
        A += [dpp(S, n), dpp(Q, n)] + ([O("s_nop 0")] if n != 1 else [])
    A += [O("v_mul_f32 v%d, s%d, v%d" % (S, sINV, S)),
          O("v_mul_f32 v%d, s%d, v%d" % (Q, sINV, Q)),
          O("v_add_f32 v%d, v%d, v%d" % (N, C, S)),
          O("v_fma_f32 v%d, -v%d, v%d, v%d" % (Q, S, S, Q)),
          O("v_cvt_pk_bf16_f32 v%d, v%d, v%d" % (N, N, N)),
          O("v_max_f32 v%d, 0, v%d" % (Q, Q)),
          O("v_and_b32 v%d, s%d, v%d" % (N, sMASK, N)),
          O("v_add_f32 v%d, v%d, v%d" % (Q, EPS, Q)),
          O("v_rsq_f32 v%d, v%d" % (R, Q)),
          O("v_sub_f32 v%d, v%d, v%d" % (N, C, N)),
          O("v_mul_f32 v%d, v%d, v%d" % (N, N, R))]
    if li == 0: A.append(WAIT(l="gbr"))
    for c in range(4):
        n = 4 if c < 3 else 2
        for i in range(4*c, 4*c+n):
            A.append(O("v_pk_fma_f32 %s, %s, %s, %s op_sel:[0,1,1] op_sel_hi:[1,1,1]" % (p(U+2*i), p(U+2*i), p(Q), p(S))))
        for i in range(4*c, 4*c+n):
            A.append(O("v_pk_fma_f32 %s, %s, %s, %s" % (p(U+2*i), p(U+2*i), p(GE+2*i), p(BE+2*i))))
        for i in range(n):
            A.append(O("v_cvt_pk_bf16_f32 v%d, v%d, v%d" % (dst[c]+i, U+8*c+2*i, U+8*c+2*i+1)))
    return A
def ln_code(li):
    if not cfg.twopass: return ln_code1(li)
    if cfg.twopass == 3: return ln_code3(li)
    S, Q = SS, SQ; R, N = SQ+1, SS+1
    S2 = 136
    RW = RAW[li]
    dst = [RW, RW+4, RW+8, RW+12] if li < 7 and li not in cfg.parkd else PARK
    p = lambda a: vr(a, 2)
    A = []
    for i in range(14):
        if i % 4 == 0: A.append(WAIT(v="x%d_%d" % (li, i//4)))
        if i == 12: A += stamp("r%d" % li)
        A += [O("v_lshlrev_b32 v%d, 16, v%d" % (U+2*i, RW+i)), O("v_and_b32 v%d, s%d, v%d" % (U+2*i+1, sMASK, RW+i))]
        if i == 2: A.append(O("v_pk_add_f32 %s, %s, %s" % (p(S), p(U), p(U+2))))
        if i >= 3: A.append(O("v_pk_add_f32 %s, %s, %s" % (p(S), p(S), p(U+2*(i-1)))))
    A += [O("v_pk_add_f32 %s, %s, %s" % (p(S), p(S), p(U+26))), O("v_add_f32 v%d, v%d, v%d" % (S, S, S+1))]
    for n in (8, 4, 2, 1): A += [O("s_nop 1"), dpp(S, n)]
    A += [O("v_mul_f32 v%d, 0x%08x, v%d" % (S, f2u(-1.0/448), S))]
    sub = lambda i: O("v_pk_add_f32 %s, %s, %s op_sel_hi:[1,0]" % (p(U+2*i), p(U+2*i), p(S)))
    def sq(i):
        q = Q if i % 2 == 0 else S2
        if i < 2: return O("v_pk_mul_f32 %s, %s, %s" % (p(q), p(U+2*i), p(U+2*i)))
        return O("v_pk_fma_f32 %s, %s, %s, %s" % (p(q), p(U+2*i), p(U+2*i), p(q)))
    A += [sub(0), sub(1)]
    for i in range(2, 14): A += [sub(i), sq(i-2)]
    A += [sq(12), sq(13)]
    A += [O("v_cvt_pk_bf16_f32 v%d, v%d, v%d" % (N, S, S)), O("v_pk_add_f32 %s, %s, %s" % (p(Q), p(Q), p(S2))),
          O("v_and_b32 v%d, s%d, v%d" % (N, sMASK, N)), O("v_add_f32 v%d, v%d, v%d" % (Q, Q, Q+1)),
          O("v_sub_f32 v%d, v%d, v%d" % (N, N, S)), O("s_nop 0"), dpp(Q, 8)]
    for n in (4, 2, 1): A += [O("s_nop 1"), dpp(Q, n)]
    A += [O("v_fma_f32 v%d, v%d, s%d, v%d" % (Q, Q, sINV, EPS)),
          O("v_rsq_f32 v%d, v%d" % (R, Q)),
          O("s_nop 0"),
          O("v_mul_f32 v%d, v%d, v%d" % (N, N, R))]
    if li == 0: A.append(WAIT(l="gbr"))
    for c in range(4):
        n = 4 if c < 3 else 2
        for i in range(4*c, 4*c+n):
            A.append(O("v_pk_fma_f32 %s, %s, %s, %s op_sel:[0,1,1] op_sel_hi:[1,1,1]" % (p(U+2*i), p(U+2*i), p(Q), p(S))))
        for i in range(4*c, 4*c+n):
            A.append(O("v_pk_fma_f32 %s, %s, %s, %s" % (p(U+2*i), p(U+2*i), p(GE+2*i), p(BE+2*i))))
        for i in range(n):
            A.append(O("v_cvt_pk_bf16_f32 v%d, v%d, v%d" % (dst[c]+i, U+8*c+2*i, U+8*c+2*i+1)))
    return A
def lnwrites(i):
    lw, off = (LWY, YO + 256*i) if i < 4 else (LWZ, ZO + 3584*(i-4))
    src = [RAW[i], RAW[i]+4, RAW[i]+8, RAW[i]+12]; nd = []
    if i in cfg.parkd: src = PARK
    if i == 7: off = T7O; src = PARK; nd = ["tr13h0"]
    if i == 7 and cfg.w64:
        return [O("ds_write_b64 v%d, %s offset:%d" % (lw+c//2, vr(src[c//2]+2*(c & 1), 2), off+8*(c & 1)), cost=3, needs=nd) for c in range(7)]
    return [O("ds_write_b128 v%d, %s offset:%d" % (lw+c, vr(src[c], 4), off), cost=5, needs=nd) for c in range(3)] + [O("ds_write_b64 v%d, %s offset:%d" % (lw+3, vr(src[3], 2), off), cost=3, needs=nd)]
def xoff(tile, j):
    if tile == 7: return T7O + 256*j
    return YO + 1024*j + 256*tile if tile < 4 else ZO + 3584*(tile-4) + 256*j

def cost(op):
    if op.cost: return op.cost
    return {"V": 1, "S": 1, "W": 1, "D": 2, "G": 3, "K": 1, "L": 0}[op.kind]
def weave(mf, fixed, stream, g0, g1):
    n = len(mf)
    for ex in range(0, 400):
        extra = ex * 0.02
        gaps = [list(fixed.get(g, [])) for g in range(n)]
        si = 0; credit = 0.0
        for g in range(g0, g1+1):
            used = 0; hasV = False
            for o in gaps[g]:
                if o.kind == "V" and used < 1: used = 1
                used += cost(o); hasV |= o.kind == "V"
            credit += extra
            while si < len(stream):
                o = stream[si]
                if o.at is not None and o.at > g: break
                u = used
                if o.kind == "V" and u < 1: u = 1
                if o.kind in ("D", "G") and hasV: break
                u += cost(o)
                over = max(0, u-3.1) - max(0, used-3.1)
                if over > 0:
                    if used < 0.5: pass
                    elif credit >= over: credit -= over
                    else: break
                gaps[g].append(o); used = u; hasV |= o.kind == "V"; si += 1
        if si == len(stream): break
    else:
        raise Exception("weave failed")
    out = []; tot = 0
    for g in range(n):
        out.append(mf[g]); out += gaps[g]
        u = 0
        for o in gaps[g]:
            if o.kind == "V" and u < 1: u = 1
            u += cost(o)
        tot += max(4, 1+u)
    print("weave: n=%d extra=%.2f est cycles=%d (ideal %d)" % (n, extra, tot*4, n*16), file=sys.stderr)
    return out
def cvt(dst, a): return O("v_cvt_pk_bf16_f32 v%d, v%d, v%d" % (dst, a, a+1), sem=("C",))

def prologue():
    L = []
    a = lambda s, **k: L.append(O(s, **k))
    L += stamp("z")
    if cfg.diag: a("s_memrealtime s[98:99]")
    a("s_load_dwordx2 s[%d:%d], s[0:1], 0" % (SX, SX+1))
    a("s_load_dwordx4 s[4:7], s[0:1], 8")
    a("s_load_dwordx2 s[%d:%d], s[0:1], 24" % (SWd, SWd+1))
    a("s_load_dwordx2 s[%d:%d], s[0:1], 32" % (SO, SO+1))
    if cfg.stamps: a("s_load_dwordx2 s[48:49], s[0:1], 48")
    a("s_cmp_ge_u32 s2, 256", tag="scc:e"); a("s_cbranch_scc1 L_end", needs=["scc:e"])
    LN_ = 40
    a("v_lshrrev_b32 v43, 6, v0")
    a("v_and_b32 v%d, 63, v0" % LN_)
    a("v_readfirstlane_b32 s%d, v43" % sW)
    a("s_lshr_b32 s3, s2, 3")
    if cfg.cpf:
        nl = -(-cfg.cpl // (4*cfg.cpf))
        a("s_getpc_b64 s[12:13]")
        if cfg.hwid:
            assert cfg.cpf == 16
            a("s_getreg_b32 s11, hwreg(HW_REG_HW_ID, 8, 2)"); a("s_getreg_b32 s14, hwreg(HW_REG_HW_ID, 13, 2)")
            a("s_lshl2_add_u32 s11, s11, s14"); a("s_lshl2_add_u32 s11, s11, s%d" % sW)
        else:
            a("s_and_b32 s11, s3, %d" % (cfg.cpf-1)); a("s_lshl_b32 s11, s11, 2"); a("s_add_u32 s11, s11, s%d" % sW)
        a("s_mul_i32 s11, s11, %d" % (nl*128)); a("s_add_u32 s12, s12, s11", tag="scc:c"); a("s_addc_u32 s13, s13, 0", needs=["scc:c"])
        a("v_min_u32 v48, %d, v%d" % (nl-1, LN_)); a("v_lshlrev_b32 v48, 7, v48")
        a("v_mov_b32 v49, s13"); a("v_add_co_u32 v48, vcc, s12, v48")
    a("v_lshlrev_b32 v%d, 4, v%d" % (VL, LN_))
    a("s_mul_i32 s%d, s2, %d" % (sOO, 128*896))
    if cfg.cpf:
        a("v_addc_co_u32 v49, vcc, 0, v49, vcc")
        a("global_load_dword v44, v[48:49], off")
    a("s_mov_b32 s%d, %d" % (SX+2, NB)); a("s_mov_b32 s%d, 0x20000" % (SX+3))
    a("s_mul_i32 s%d, s%d, 28672" % (sXO, sW))
    a("s_add_u32 s%d, s%d, s%d" % (sXO, sXO, sOO))
    a("s_mul_i32 s%d, s%d, %d" % (sREG, sW, WREG))
    a("s_movk_i32 s%d, 896" % (SG+2)); a("s_mov_b32 s%d, 0x20000" % (SG+3))
    a("s_movk_i32 s10, 896"); a("s_mov_b32 s11, 0x20000")
    a("s_mov_b32 s%d, %d" % (SWd+2, 448*896)); a("s_mov_b32 s%d, 0x20000" % (SWd+3))
    a("v_and_b32 v41, 15, v%d" % LN_); a("v_lshrrev_b32 v42, 4, v%d" % LN_)
    a("v_mul_u32_u24 v45, 896, v42")
    a("v_lshl_add_u32 v%d, v41, 4, v45" % RA); a("v_lshl_add_u32 v%d, v41, 3, v45" % RB)
    a("s_waitcnt lgkmcnt(0)")
    return L
def gbload():
    return [O("s_mov_b32 s%d, s4" % SG), O("s_mov_b32 s%d, s5" % (SG+1)), O("s_mov_b32 s8, s6"), O("s_mov_b32 s9, s7"),
            O("buffer_load_dwordx4 v[136:139], v%d, s[%d:%d], 0 offen" % (VL, SG, SG+3)),
            O("buffer_load_dwordx4 v[140:143], v%d, s[8:11], 0 offen" % VL, tag="gb")]
def wsetup():
    L = []
    a = lambda s, **k: L.append(O(s, **k))
    LN_ = 40
    a("s_mul_i32 s%d, s3, 28672" % sWO)
    a("s_add_u32 s%d, s%d, s%d" % (sWO, sWO, sT2))
    a("s_add_u32 s%d, s%d, %d" % (sWLIM, sT2, 14*28672))
    a("s_lshr_b32 s14, s2, 3"); a("s_lshl_b32 s14, s14, 2"); a("s_add_u32 s14, s14, s%d" % sW); a("s_mul_i32 s14, s14, 3200")
    a("v_min_u32 v131, 24, v%d" % LN_); a("v_lshlrev_b32 v131, 7, v131")
    a("s_movk_i32 s12, 672"); a("s_movk_i32 s13, 896")
    a("v_mul_u32_u24 v45, 4682, v%d" % LN_)
    for i in range(7):
        const = (3072 if i >= 3 else 0) - (10752 if i >= 4 else 0)
        if i: a("v_add_u32 v46, %d, v45" % (64*i*4682)); a("v_lshrrev_b32 v46, 16, v46")
        else: a("v_lshrrev_b32 v46, 16, v45")
        a("v_and_b32 v47, 12, v46")
        a("v_mad_u32_u24 v%d, v46, s12, v%d" % (VO+i, VL))
        a("v_mad_u32_u24 v%d, v47, s13, v%d" % (VO+i, VO+i))
        if i == 3:
            a("v_lshrrev_b32 v47, 4, v46"); a("v_mul_u32_u24 v47, 10752, v47"); a("v_sub_u32 v%d, v%d, v47" % (VO+i, VO+i))
        if const: a("v_add_u32 v%d, %d, v%d" % (VO+i, const & 0xffffffff, VO+i))
    return L
FTAB = 0x1e
def addr_math(part):
    L = []
    a = lambda s, **k: L.append(O(s, **k))
    LN_, P_, RR, GA = 40, 41, 42, 52
    a("s_mov_b32 s%d, %d" % (SO+2, NB)); a("s_mov_b32 s%d, 0x20000" % (SO+3))
    a("s_mov_b32 s%d, 0xffff0000" % sMASK)
    a("s_and_b32 s15, s%d, 1" % sW)
    a("s_mov_b32 s%d, 0x%08x" % (sINV, f2u(1.0/448)))
    a("v_mov_b32 v%d, 0x%08x" % (EPS, f2u(1e-5)))
    a("s_sub_u32 s%d, s3, 14" % sT); a("s_min_u32 s3, s3, s%d" % sT)
    a("s_sub_u32 s%d, s3, 14" % sT); a("s_min_u32 s3, s3, s%d" % sT)
    a("s_mul_i32 s%d, s%d, 224" % (sT2, sW))
    a("v_lshlrev_b32 v%d, 4, v%d" % (GA, P_))
    a("v_cmp_eq_u32 vcc, 3, v%d" % RR)
    a("v_lshlrev_b32 v45, 5, v%d" % P_)
    a("v_mov_b32 v46, 0x100")
    a("v_cndmask_b32 v45, v%d, v45, vcc" % GA)
    a("v_cndmask_b32_e64 v46, v46, 16, vcc")
    a("v_lshl_add_u32 v50, v%d, 9, v45" % RR)
    a("v_add_u32 v50, s%d, v50" % sREG); a("v_add_u32 v%d, s%d, v%d" % (GA, sREG, GA))
    a("v_add_u32 v51, v50, v46")
    a("s_movk_i32 s12, 0x78")
    a("v_lshrrev_b32 v45, 2, v%d" % P_)
    a("v_lshlrev_b32 v46, 1, v45"); a("v_bfe_u32 v46, s12, v46, 2")
    a("v_xor_b32 v46, v46, v%d" % RR)
    a("v_lshrrev_b32 v47, 1, v46"); a("v_and_b32 v48, 3, v%d" % P_); a("v_xor_b32 v47, v47, v48")
    a("v_lshlrev_b32 v47, 4, v47"); a("v_lshl_add_u32 v47, v46, 6, v47")
    a("v_mul_u32_u24 v45, %d, v45" % WREG); a("v_add_u32 v%d, v45, v47" % XR)
    a("s_lshl_b32 s41, s%d, 1" % sW); a("s_lshr_b32 s41, s12, s41"); a("s_and_b32 s41, s41, 3")
    def common(qexpr_ops):
        for s in qexpr_ops: a(s)
        a("v_xor_b32 v46, s41, v46")
        a("v_lshrrev_b32 v47, 1, v46"); a("v_xor_b32 v47, v47, v%d" % RR); a("v_lshlrev_b32 v47, 4, v47")
        a("v_lshl_add_u32 v47, v46, 6, v47"); a("v_add_u32 v47, s%d, v47" % sREG)
    common(["v_and_b32 v46, 3, v%d" % P_])
    a("v_lshrrev_b32 v46, 2, v%d" % P_); a("v_subrev_u32 v46, s3, v46")
    for c in range(3):
        if c: a("v_add_u32 v46, 4, v46")
        a("v_add_u32 v48, 14, v46"); a("v_min_u32 v48, v48, v46")
        a("v_lshl_add_u32 v%d, v48, 10, v47" % (LWY+c)); a("v_lshl_add_u32 v%d, v48, 8, v47" % (LWZ+c))
    common(["v_bfe_u32 v46, v%d, 1, 2" % P_])
    a("v_and_b32 v46, 1, v%d" % P_); a("v_lshl_add_u32 v47, v46, 3, v47")
    a("v_lshrrev_b32 v46, 3, v%d" % P_); a("v_add_u32 v46, 12, v46"); a("v_subrev_u32 v46, s3, v46")
    a("v_add_u32 v48, 14, v46"); a("v_min_u32 v48, v48, v46")
    a("v_lshl_add_u32 v%d, v48, 10, v47" % (LWY+3)); a("v_lshl_add_u32 v%d, v48, 8, v47" % (LWZ+3))
    if part == 1: return L[:]
    del L[:]
    a("s_lshl_b32 s41, s15, 5")
    a("v_lshrrev_b32 v45, 2, v%d" % LN_); a("v_mul_u32_u24 v45, 224, v45"); a("v_and_b32 v46, 3, v%d" % LN_)
    a("v_add_u32 v45, s%d, v45" % sREG)
    a("v_lshl_add_u32 v%d, v46, %d, v45" % (TR1, 3 if cfg.nocf else 4)); a("v_add_u32 v%d, s41, v%d" % (TR1, TR1))
    a("s_mul_i32 s12, s15, 192"); a("s_sub_u32 s12, 192, s12")
    a("v_lshl_add_u32 v%d, v46, 3, v45" % TR2); a("v_add_u32 v%d, s12, v%d" % (TR2, TR2))
    return L
def late_addr():
    L = []
    a = lambda s, **k: L.append(O(s, **k))
    P_, RR = 16, 17
    ST, OS, OW, OR = 20, 21, 22, 16
    a("v_mbcnt_lo_u32_b32 v17, -1, 0"); a("v_mbcnt_hi_u32_b32 v17, -1, v17")
    a("v_and_b32 v16, 15, v17"); a("v_lshrrev_b32 v17, 4, v17")
    a("v_lshrrev_b32 v18, 2, v%d" % P_); a("v_and_b32 v19, 3, v%d" % P_); a("v_lshl_add_u32 v18, v18, 5, v19")
    a("v_mul_u32_u24 v18, 896, v18"); a("v_lshl_add_u32 v18, v%d, 4, v18" % RR)
    a("s_lshl_b32 s41, s15, 5"); a("s_add_u32 s12, s41, s%d" % sT2)
    a("v_add_u32 v%d, s12, v18" % ST)
    a("s_lshr_b32 s13, s%d, 1" % sW)
    a("s_mul_i32 s12, s13, 448"); a("s_mul_i32 s%d, s15, 3584" % sPAR); a("s_add_u32 s12, s12, 192")
    a("v_add_u32 v%d, s12, v18" % OS)
    a("v_lshlrev_b32 v18, 5, v%d" % P_)
    a("v_lshl_add_u32 v19, v%d, 3, v18" % RR); a("v_add_u32 v%d, s%d, v19" % (OW, sREG))
    a("v_and_b32 v19, 1, v%d" % RR); a("v_lshl_add_u32 v18, v19, 4, v18")
    a("v_lshrrev_b32 v19, 1, v%d" % RR); a("v_mul_u32_u24 v19, %d, v19" % WREG); a("v_add_u32 v18, v18, v19")
    a("s_mul_i32 s12, s13, %d" % (2*WREG)); a("s_lshl_b32 s42, s15, 9"); a("s_add_u32 s12, s12, s42")
    a("v_add_u32 v%d, s12, v18" % OR)
    return L
def gbtable():
    GA = 52
    L = [WAIT(v="gb")]
    for i in range(8):
        L += [O("v_lshlrev_b32 v%d, 16, v%d" % (56+2*i, 136+i)), O("v_and_b32 v%d, s%d, v%d" % (57+2*i, sMASK, 136+i))]
        if i == 3: L += [O("ds_write_b128 v50, v[56:59] offset:%d" % GTAB), O("ds_write_b128 v51, v[60:63] offset:%d" % GTAB)]
    L += [O("ds_write_b128 v50, v[64:67] offset:%d" % (GTAB+2048)), O("ds_write_b128 v51, v[68:71] offset:%d" % (GTAB+2048))]
    for v in range(7):
        L.append(O("ds_read_b128 %s, v%d offset:%d" % (vr(GE+4*v, 4), GA, GTAB+256*v)))
        L.append(O("ds_read_b128 %s, v%d offset:%d" % (vr(BE+4*v, 4), GA, GTAB+2048+256*v), tag="gbr" if v == 6 else None))
    return L

def spin(t, tag):
    return [O(x, kind="L") for x in ["    s_add_u32 s100, s98, %d" % t, "L_sp%s:" % tag, "    s_memrealtime s[96:97]", "    s_waitcnt lgkmcnt(0)",
            "    s_sub_u32 s101, s100, s96", "    s_cmp_gt_i32 s101, 0", "    s_cbranch_scc1 L_sp%s" % tag]]
def half(n):
    j, x = divmod(n, 2)
    return j, cfg.horder.get(j, (0, 1))[x]
def build():
    wn[0] = 0; xn[0] = 0; stampn[0] = 0; del stampnames[:]; m0state[0] = None; TR2late[0] = False
    code = []; trace = []
    def emit(L): code.extend(L); trace.extend(L)
    emit(prologue())
    fb = [0]
    def xread(tile, j):
        return O("ds_read_b128 %s, v%d offset:%d" % (vr(F[fb[0] & 1], 4), XR, xoff(tile, j % 14)), tag="xf", sem=("X", tile, j % 14))
    pre = {}
    def units(seq, nxt):
        mf = []; fixed = {}; starts = []
        for k, u in enumerate(seq):
            tile, j = u[0], u[1]
            g = len(mf); starts.append(g)
            if (tile, j) in pre: cur = pre[(tile, j)]
            else: cur = F[fb[0] & 1]; fb[0] += 1
            n = seq[k+1] if k+1 < len(seq) else nxt
            acc = ACC[tile] if tile < 4 else ACC[2]
            ts = u[3] if len(u) > 3 else range(7)
            for t in ts: mf.append(mfma(acc, j, t, cur, None if len(u) < 3 or u[2] is None else u[2][t], tile))
            if n is not None and (n[0], n[1]) not in pre:
                fixed.setdefault(g, []).append(xread(n[0], n[1]))
                fixed.setdefault(len(mf)-1, []).append(WAIT(l="xf"))
        return mf, fixed, starts
    st8 = dict(ri=0, li=0, th=0, vis=0, wi=0)
    done = set(); waited = set()
    def simple(tok):
        if tok[0] in "xw" and "+" not in tok:
            out = []
            for o in (xdma if tok[0] == "x" else wdma)(int(tok[1:])):
                for tg in o.needs:
                    if tg.startswith("tr") and tg not in waited: waited.add(tg); out.append(WAIT(l=tg))
                out.append(o)
            return out
        if tok[0] == "t" and "+" not in tok:
            j, h = half(st8["th"]); st8["th"] += 1
            return [WAIT(v=wland(j, h))] + trreads(j, h)
        if tok == "y": return [WAIT(l=0)]
        if tok == "-": return []
        if tok[0] == "Y": return spin(int(tok[1:]), tok)
        if tok == "T":
            return [O("s_mov_b32 s%d, %d" % (SO+2, NB)), O("s_mov_b32 s%d, 0x20000" % (SO+3)),
                    O("v_and_b32 v124, 1, v40"), O("v_mul_u32_u24 v125, %d, v124" % (128*896-4)), O("v_mul_u32_u24 v124, %d, v124" % (448*896-4)),
                    O("buffer_load_dword v125, v125, s[%d:%d], s%d offen" % (SO, SO+3, sOO)),
                    O("buffer_load_dword v124, v124, s[%d:%d], 0 offen" % (SWd, SWd+3))]
        if tok == "|": return [O("@SPLIT", kind="L")]
        if tok == "J": return [O("    s_branch L_main", kind="L"), O(".p2align 12", kind="L"), O(".fill %d, 4, 0xbf810000" % (cfg.joff//4), kind="L"), O("L_main:")]
        if tok == "H":
            hn = st8.setdefault("hn", 0); st8["hn"] += 1
            L = [O("    s_mov_b64 vcc, 1", kind="L")]
            for k in range(4):
                L += [O("@H%d    s_cmp_eq_u32 s%d, %d" % (4*hn+k, sW, k), kind="L"), O("@H%d    s_cbranch_scc1 L_pad%d" % (4*hn+k, 4*hn+k), kind="L")]
            return L + [O("L_padret%d:" % hn), O("s_mov_b64 vcc, 0")]
        if tok == "I":
            return [O("s_lshl_b32 s43, s%d, 2" % sW), O("v_mov_b32 v124, s43"), O("v_mov_b32 v125, 0"), O("v_mov_b32 v126, 1"),
                    O("ds_write_b32 v124, v125 offset:%d" % FLAGO), WAIT(l=0), O("s_barrier")]
        if tok == "S":
            st8["fvis"] = st8["wi"]//4
            return [WAIT(l=0), O("ds_write_b32 v124, v126 offset:%d" % FLAGO)]
        if tok == "Q": return [O("ds_read_b128 v[140:143], v125 offset:%d" % FLAGO, tag="fl")]
        if tok == "K":
            st8["vis"] = st8["fvis"]
            return [O("L_chk:"), WAIT(l="fl"), O("v_and_b32 v140, v140, v141"), O("v_and_b32 v142, v142, v143"), O("v_and_b32 v140, v140, v142"), O("s_nop 0"),
                    O("v_readfirstlane_b32 s43, v140"), O("s_cmp_eq_u32 s43, 1", tag="scc:k"), O("s_cbranch_scc1 L_ok", needs=["scc:k"]),
                    O("    ds_read_b128 v[140:143], v125 offset:%d" % FLAGO, kind="L"), O("    s_waitcnt lgkmcnt(0)", kind="L"), O("    s_branch L_chk", kind="L"), O("L_ok:")]
        if tok == "Z":
            st8["vis"] = st8["wi"]//4
            return [WAIT(l=0), O("s_barrier")]
        if tok[0] == "d" and "+" not in tok:
            out = []
            for _ in range(int(tok[1:] or 1)):
                i, c = divmod(st8["wi"], 4); st8["wi"] += 1; assert i < st8["li"]
                out.append(lnwrites(i)[c])
            return out
        if tok[0] == "s" and "+" not in tok: return stamp(tok)
        if "+" in tok: return [o for t in tok.split("+") for o in simple(t)]
        if tok[0] == "F":
            j = int(tok[1:]); assert st8["vis"] >= 4; out = []
            for t in range(4):
                pre[(t, j)] = wf(j + cfg.fo, t)
                out.append(O("ds_read_b128 %s, v%d offset:%d" % (pre[(t, j)], XR, xoff(t, j)), sem=("X", t, j)))
            return out
        if tok == "P": return [O("buffer_load_dword v136, v131, s[%d:%d], s14 offen" % (SWd, SWd+3))]
        raise Exception(tok)
    nz = 0
    for tok in cfg.early.split():
        head, _, spr = tok.partition(":")
        spr = spr.split(",") if spr else []
        if tok == "G": emit(gbload())
        elif tok == "P": emit([O("buffer_load_dword v136, v131, s[%d:%d], s14 offen" % (SWd, SWd+3))])
        elif tok == "A": emit(addr_math(1))
        elif tok == "A2": emit(addr_math(2) + wsetup())
        elif tok == "B": emit(stamp("mb")); emit(gbtable())
        elif head == "C":
            li = st8["li"]
            emit(stamp("c%d" % li))
            A = ln_code(li); out = []
            items = []
            for k, t in enumerate(spr):
                t, _, pct = t.partition("@")
                nops = [i for i, o in enumerate(A) if o.text == "s_nop 0"]
                items.append((nops[int(pct[1:])] if pct[:1] == "n" else (int(pct)*len(A))//100 if pct else (k+1)*len(A)//(len(spr)+1), t))
            k = 0
            for idx, o in enumerate(A):
                ins = []
                while k < len(items) and idx >= items[k][0]: ins += simple(items[k][1]); k += 1
                out += ins
                if o.text == "s_nop 0" and ins: continue
                out.append(o)
            assert k == len(items)
            emit(out); emit(stamp("n%d" % li))
            st8["li"] += 1
        elif tok == "Z":
            bf = all((t, j) in done or (t, j) in pre for t in range(4) for j in range(2))
            emit([WAIT(l=0), O("s_barrier", tag="Bfree" if bf else "gbfree")]); st8["vis"] = st8["wi"]//4; st8["bf"] = bf
        elif head[0] == "U":
            tl, js = head[1:].split("@"); js = [int(x) for x in js.split("-")]
            seq = [(int(c), j) for j in range(js[0], js[-1]+1) for c in tl]
            for u in seq:
                assert u[0] < st8["vis"] and (u[1] == 0 or (u[0], u[1]-1) in done), tok
                done.add(u)
            emit(stamp("u%d" % js[0]))
            emit([xread(*seq[0]), WAIT(l=0)])
            mf, fixed, starts = units(seq, None)
            for k, u in enumerate(seq):
                if k and u[1] != seq[k-1][1]: fixed[starts[k]-1] = [WAIT(l=0)]
            segs = ",".join(spr).split("/"); n = 7*len(tl)
            for si in range(js[-1]-js[0]+1):
                stream = []
                for t in (segs[si].split(",") if si < len(segs) and segs[si] else []):
                    t, _, gp = t.partition("@")
                    ops = [o for o in simple(t)]
                    if ops and gp: ops[0].at = int(gp)
                    stream += ops
                emit(weave(mf[si*n:(si+1)*n], {g-si*n: v for g, v in fixed.items() if si*n <= g < (si+1)*n}, stream, 0, n-3))
        else: emit(simple(tok))
    assert st8["wi"] == 28 and st8["li"] == 8 and xn[0] == 32 and st8["vis"] >= 5
    th = st8["th"]
    emit(stamp("mp"))
    def canissue():
        n = wn[0]; rd = set(half(x) for x in range(th))
        while n < 105:
            j, ii = divmod(n, 7); i = worder(j)[ii]
            if any(x not in rd for x in wneeds(j, i)): break
            n += 1
        return n - wn[0]
    order = [3, 0, 1, 2]
    seq = [(t, j) for j in range(14) for t in order if (t, j) not in done]
    assert th >= 2*seq[0][1] + 2
    emit([xread(*seq[0]), WAIT(l=0)])
    S2 = [4, 5, 6, 7]
    mf, fixed, starts = units(seq, (S2[0], 1))
    first = {}
    for k, u in enumerate(seq): first.setdefault(u[1], starts[k])
    def used(g):
        u = 0
        for o in fixed.get(g, []):
            if o.kind == "V" and u < 1: u = 1
            u += cost(o)
        return u
    def fx(g, ops, front=False):
        if front: fixed[g] = ops + fixed.get(g, [])
        else: fixed.setdefault(g, []).extend(ops)
    put = fx
    def putdma(g, d, gprep):
        pend = []; firstd = True
        for o in d:
            if o.kind != "G":
                if o.text != "s_nop 0": pend.append(o)
                continue
            while used(g) > 0: g += 1
            if pend:
                if firstd and gprep is not None:
                    gp = gprep
                    for p in pend:
                        while used(gp) >= 3 and gp < g-1: gp += 1
                        put(gp, [p])
                else: put(g-1, pend)
            put(g, [o]); pend = []; g += 1; firstd = False
        return g
    def puttr(g, ops, gend):
        ops = list(ops); assert gend >= g
        load = {x: used(x) for x in range(g, gend+1)}; cnt = {x: 0 for x in load}
        for _ in ops:
            x = min(load, key=lambda x: (max(load[x]+2-3, 0), x)); load[x] += 2; cnt[x] += 1
        last = g
        for x in range(g, gend+1):
            for _ in range(cnt[x]): put(x, [ops.pop(0)]); last = x
        return last + 1
    def putseq(gw, ops):
        for o in ops:
            while used(gw) + (1 if o.kind == "V" and used(gw) < 1 else 0) >= 3: gw += 1
            put(gw, [o])
        return gw
    d0 = wdma(canissue())
    k0 = next((i for i, x in enumerate(d0) if x.kind == "G"), 0)
    emit(d0[:k0])
    g = putdma(1, d0[k0:], None)
    while th < 28:
        k, h = half(th); second = th % 2; th += 1
        yt = first[k] - cfg.lead - (0 if second else 14)
        D = first[k] - 1 - (0 if second else cfg.minp)
        y = min(max(yt, g + 7 + cfg.lat), D)
        gs = max(min(g, y - cfg.lat - 4), y - 11, 0)
        while used(gs) > 0 and gs < y - cfg.lat - 6: gs += 1
        put(gs, [WAIT(v=wland(k, h))])
        ge = puttr(gs, trreads(k, h), y - cfg.lat)
        put(y, [WAIT(l="tr%dh%d" % (k, h))])
        nb = wn[0]
        g = putdma(max(g, y+1), wdma(canissue()), max(ge, g))
        if nb < 105 and wn[0] == 105: glast = g
    assert wn[0] == 105
    gm = putseq(glast, late_addr())
    for j in sorted(first):
        if first[j] > 0: put(first[j]-1, stamp("p%d" % j))
    Q = lambda a, k: ACC[a] + 4*k
    HOLD = {3: [Q(3, 1), Q(3, 3), Q(3, 5)], 0: [Q(0, 1), Q(0, 3), Q(0, 5)], 1: [Q(1, 1), Q(1, 3), Q(1, 5)],
            2: [Q(0, 0), Q(0, 2), Q(0, 4)], 4: [Q(1, 0), Q(1, 2), Q(1, 4)], 5: [Q(1, 1), Q(1, 3), Q(1, 5)],
            6: [Q(0, 1), Q(0, 3), Q(0, 5)], 7: [Q(0, 0), Q(0, 2), Q(0, 4)]}
    OPK = 18; OT = Q(0, 6)
    def oddw(tile, src): return O("ds_write_b64 v%d, %s offset:%d" % (OW, vr(src, 2), ODDO + 512*tile), cost=3, needs=["tr13h0", "tr13h1"], sem=("OW", tile))
    def store(tile, P):
        return [O("s_add_u32 s%d, s%d, %d" % (sO2, sOO, 3584*tile), sem=("SO", ("ST", tile))),
                O("buffer_store_dwordx4 %s, v%d, s[%d:%d], s%d offen offset:%d%s" % (vr(HOLD[tile][P], 4), ST, SO, SO+3, sO2, 64*P, cfg.spol), sem=("ST", tile, P))]
    def pair_inplace(tile, P):
        x0, x1 = ACC[tile]+8*P, ACC[tile]+8*P+4
        return [cvt(x1+3, x1+2), cvt(x1+2, x1), cvt(x1, x0), cvt(x1+1, x0+2)]
    def odd_inplace(tile):
        x = ACC[tile]+24
        return [cvt(x, x), cvt(x+1, x+2)], oddw(tile, x)
    def pkcvt(tile, t):
        d = OPK if t == 6 else HOLD[tile][t >> 1] + 2*(t & 1)
        return [cvt(d, ACC[2]+4*t), cvt(d+1, ACC[2]+4*t+2)]
    E = first[13]
    assert gm < E + 8
    for k in (3, 4, 5): put(E+k, [O("s_nop 0")])
    putseq(E+8, pair_inplace(3, 0) + pair_inplace(3, 1) + pair_inplace(3, 2))
    putseq(E+15, pair_inplace(0, 0) + pair_inplace(0, 1) + pair_inplace(0, 2))
    sx = store(3, 0); put(E+21, sx[:1]); put(E+22, sx[1:])
    put(E+23, [O("s_nop 1")]); put(E+24, [O("s_nop 1")])
    for t in range(3): put(E+25+t, pkcvt(2, t))
    emit(weave(mf, fixed, [], 0, 0))
    emit(stamp("mq"))
    if cfg.diagq: emit(spin(cfg.diagq, "q"))
    plan = cfg.plan
    om = [0]
    def oddso(m): return [O("s_add_u32 s%d, s%d, %d" % (sO2, sPAR, 7168*m), sem=("SO", None)), O("s_add_u32 s%d, s%d, s%d" % (sO2, sO2, sOO), sem=("SO", ("OS", m)))]
    def oddst(m): return O("buffer_store_dwordx4 %s, v%d, s[%d:%d], s%d offen%s" % (vr(OT, 4), OS, SO, SO+3, sO2, cfg.spol), sem=("OS", m))
    pw = lnwrites(7)
    for bi, tile in enumerate(S2):
        prev = 2 if bi == 0 else S2[bi-1]
        mf, fixed, _ = units([(tile, j) for j in range(1, 15 if bi < 3 else 15 - cfg.nl)], (S2[bi+1], 1) if bi < 3 else None)
        for t in range(3, 7): fx(t-2, pkcvt(prev, t))
        fx(8, [oddw(prev, OPK)], front=True)
        if bi == 0:
            gq = 9
            for tl in (3, 0, 1):
                c, o = odd_inplace(tl); gq = putseq(gq, c) + 1
                while used(gq) > 0: gq += 1
                fx(gq, [o]); gq += 1
            putseq(gq, pair_inplace(1, 0) + pair_inplace(1, 1) + pair_inplace(1, 2))
        items = plan[bi]; n = len(items)
        lo = 5 if bi == 0 else 10
        for k, it in enumerate(items):
            g = lo + ((90 if bi < 3 else cfg.lhi)-lo)*k//n
            while used(g) > 0 or used(g-1) > 2 or (it == "o" and used(g-2) > 1): g += 1
            if it == "o":
                m = om[0]; om[0] += 1
                gr = g - 9
                while used(gr) > 1: gr -= 1
                bar = min(b for b in cfg.bars if (3 if b == 0 else S2[b-1]) >= 2*m+1)
                fx(gr, [O("ds_read_b128 %s, v%d offset:%d" % (vr(OT, 4), OR, ODDO + 1024*m), needs=["bar%d" % bar], tag="od")], front=True)
                fx(g-2, oddso(m), front=True); fx(g-1, [WAIT(l="od")], front=True); fx(g, [oddst(m)])
            elif it == "w": fx(g, [pw.pop(0)])
            else:
                s = store(*it); fx(g-1, s[:1], front=True); fx(g, s[1:])
                if it == (3, 2): g32 = g
        if bi == 0:
            gs = max(g32 + 3, 45)
            fx(gs, [WAIT(v=wland(14, 1))], front=True)
            puttr(gs, trreads(14, 0) + trreads(14, 1), 84)
            fixed[90] = [WAIT(l=0)]
        if bi in cfg.bars:
            fixed[90] = [WAIT(l=0)]
            fx(91, [O("s_barrier", tag="bar%d" % bi)], front=True)
            if not pw: t7vis = True
        if bi < 3:
            fx(92, [O("s_nop 0")]); fx(93, [O("s_nop 0")]); fx(94, [O("s_nop 1")])
            for t in range(3): fx(95+t, pkcvt(tile, t))
        else:
            assert t7vis
            NL = cfg.nl; j0 = 15 - NL; G0 = 7*(14 - NL)
            XF = [24, 28, 32, Q(1, 6), Q(1, 0), Q(1, 2), Q(1, 4), Q(1, 1), Q(1, 3), Q(1, 5)][:NL]
            rd = [O("ds_read_b128 %s, v%d offset:%d" % (vr(XF[k], 4), XR, xoff(tile, (j0+k) % 14)), tag="xl", sem=("X", tile, (j0+k) % 14)) for k in range(NL)]
            puttr(max(5, G0 - 2*NL - 6), rd, G0 - 5)
            fx(G0-1, [WAIT(l="xl")])
            for ts in ([6], [0, 1], [2, 3], [4, 5]):
                for k in range(NL):
                    for t in ts: mf.append(mfma(ACC[2], j0+k, t, XF[k], None, tile))
            a6 = G0 + NL; a0_ = a6 + 2*NL; a1_ = a0_ + 2*NL
            fx(a6, [O("s_nop 1")]); fx(a6+1, [O("s_nop 1")]); fx(a6+2, [O("s_nop 0")] + pkcvt(tile, 6)); fx(a6+3, [oddw(tile, OPK)])
            fx(a6+6, [WAIT(l=0), O("s_barrier")]); fx(a6+7, [O("ds_read_b128 %s, v%d offset:%d" % (vr(OT, 4), OR, ODDO + 3072), tag="od")])
            fx(a0_, [O("s_nop 1")]); fx(a0_+1, [O("s_nop 1")]); fx(a0_+2, [O("s_nop 0")] + pkcvt(tile, 0)); fx(a0_+3, store(tile, 0)[:1] + pkcvt(tile, 1)); fx(a0_+4, store(tile, 0)[1:])
            go = a0_+5 if NL < 8 else a6+13
            fx(go, oddso(3)); fx(go+1, [WAIT(l="od")]); fx(go+2, [oddst(3)])
            fx(a1_, [O("s_nop 1")]); fx(a1_+1, [O("s_nop 1")]); fx(a1_+2, [O("s_nop 0")] + pkcvt(tile, 2)); fx(a1_+3, store(tile, 1)[:1] + pkcvt(tile, 3)); fx(a1_+4, store(tile, 1)[1:])
        emit(weave(mf, fixed, [], 0, 0))
        emit(stamp("m%d" % (bi+4)))
    lt = S2[3]
    Tl = [O("s_nop 6")] + pkcvt(lt, 4) + pkcvt(lt, 5) + store(lt, 2)[1:]
    assert om[0] == 3 and st8["vis"] >= 7
    emit(Tl)
    if cfg.diag > 1: emit([O("s_waitcnt vmcnt(0)")] + spin(cfg.diag, "end"))
    if cfg.stamps:
        emit(stamp("z1")); emit([O("s_waitcnt vmcnt(0)")]); emit(stamp("z2"))
        S = [O("s_waitcnt lgkmcnt(0)"), O("s_mov_b32 s50, 0x10000000"), O("s_mov_b32 s51, 0x20000"), O("v_mov_b32 v40, 0")]
        for i in range(stampn[0]): S.append(O("v_writelane_b32 v40, s%d, %d" % (52+2*i, i)))
        S += [O("s_lshl_b32 s3, s2, 2"), O("s_add_u32 s3, s3, s%d" % sW), O("s_lshl_b32 s3, s3, 8"),
              O("v_mbcnt_lo_u32_b32 v41, -1, 0"), O("v_mbcnt_hi_u32_b32 v41, -1, v41"), O("v_lshlrev_b32 v41, 2, v41"),
              O("buffer_store_dword v40, v41, s[48:51], s3 offen sc1")]
        emit(S)
    emit([O("L_end:"), O("s_endpgm")])
    errs = resolve_and_verify(trace) + semcheck(trace)
    for e in errs[:40]: print("ERR", e, file=sys.stderr)
    if errs: raise Exception("verify failed: %d" % len(errs))
    return code

def render(code, kname):
    hdr = open('cdna_kernels/%s.s.ref' % NAME).read().split('\n')
    L = [l for l in hdr if l.startswith(';') and '@launch' not in l]
    L += ["; @launch grid=(256,1,1) block=(256,1,1) lds=163840", '.amdgcn_target "amdgcn-amd-amdhsa--gfx950"', ".text",
          ".globl %s" % kname, ".p2align 8", ".type %s,@function" % kname, "%s:" % kname]
    L += code
    if cfg.cpf: L += [".fill 3000, 4, 0xbf810000"]
    L += ['.section .rodata,"a"', ".p2align 6", ".amdhsa_kernel %s" % kname, "  .amdhsa_next_free_vgpr 512", "  .amdhsa_next_free_sgpr 102",
          "  .amdhsa_accum_offset 256", "  .amdhsa_group_segment_fixed_size 0", "  .amdhsa_kernarg_size 56", "  .amdhsa_user_sgpr_count 2",
          "  .amdhsa_user_sgpr_kernarg_segment_ptr 1", "  .amdhsa_system_sgpr_workgroup_id_x 1", ".end_amdhsa_kernel"]
    return '\n'.join(L) + '\n'
def addrs(lines, kname):
    import subprocess
    lab = []
    for i, l in enumerate(lines): lab += ["Lq%d:" % i, l]
    open("_a.s", "w").write(render(lab, kname))
    subprocess.run(["clang", "-x", "assembler", "-target", "amdgcn-amd-amdhsa", "-mcpu=gfx950", "-c", "_a.s", "-o", "_a.o"], check=True)
    out = subprocess.run(["llvm-objdump", "-t", "_a.o"], capture_output=True, text=True).stdout
    A = {}
    for l in out.splitlines():
        p = l.split()
        if p and p[-1].startswith("Lq"): A[int(p[-1][2:])] = int(p[0], 16)
    return [A[i] for i in range(len(lines))]
def write(path, kname=NAME+"_kernel"):
    code = build()
    if cfg.nostore: code = [o for o in code if not (o.sem and o.sem[0] in ("ST", "OS"))]
    lines = [("" if o.kind == "L" else "    ") + o.render() for o in code]
    if cfg.alt:
        import re as _re
        global stampnames
        names1 = list(stampnames)
        save = {k: getattr(cfg, k) for k in cfg.alt}
        for k, v in cfg.alt.items(): setattr(cfg, k, v)
        l2 = [("" if o.kind == "L" else "    ") + o.render() for o in build()]
        for k, v in save.items(): setattr(cfg, k, v)
        assert names1 == stampnames, (names1, stampnames)
        i = lines.index("@SPLIT"); assert lines[:i+1] == l2[:i+1]
        l2 = [_re.sub(r"\bL_(chk|ok|end)\b", r"L_\g<1>2", x) for x in l2[i+1:]]
        lines = lines[:i] + ["    s_bitcmp1_b32 s2, %d" % cfg.gbit, "    s_cbranch_scc1 L_alt"] + lines[i+1:] + [".p2align 6", "L_alt:"] + l2
    lines = [l for l in lines if l != "@SPLIT"]
    if any(l.startswith("@H") for l in lines):
        nh = sum(1 for l in lines if l.startswith("L_padret"))
        main = lines.index("L_main:")
        npad = 0
        for k in range(4*nh):
            tmp = [(l[3:] if l.startswith("@H") else l) for l in lines] + ["L_pad%d:" % x for x in range(npad, 4*nh)]
            A = addrs(tmp, kname)
            bnd = (A[main]//4096 + k + cfg.padskip)*4096
            j = next((i for i in range(main+1, len(lines)) if A[i] >= bnd), None)
            if j is None: break
            i = next((i for i in range(j, len(lines)) if "v_mfma" in lines[i-1] and "v_mfma" in lines[i]), None)
            if i is None or A[i] >= bnd + 56: i = next(i for i in range(j, len(lines)) if not lines[i].lstrip().startswith(("s_cselect", "s_cbranch", "L_", ".", "@H", "s_mov_b64 vcc")))
            assert i > lines.index("L_padret%d:" % (nh-1)) + 1
            lines[i:i] = ["L_pad%d:" % k, "    s_cbranch_vccnz L_padret%d" % (k//4)]; npad += 1
        lines = [(l[3:] if int(l[2]) < npad else "    s_nop 0") if l.startswith("@H") else l for l in lines]
        vl = [i for i, l in enumerate(lines) if "vcc" in l and "vccnz" not in l]
        assert lines[vl[-1]].strip() == "s_mov_b64 vcc, 0" and vl[-1] < lines.index("L_pad0:"), "vcc must be 0 at every pad"
        print("pads:", npad, file=sys.stderr)
    open(path, 'w').write(render(lines, kname))
if __name__ == "__main__":
    write("v13.s")
```

```python
from final2 import *
e = gz.replace("G x12 A", "G x12 T A")
make("d_a.s", early=e)
make("d_end.s", early=e, diag=3000)
make("d_mp.s", early=e + " Y1000", diag=1)
make("d_mq.s", early=e, diag=1, diagq=1500)
make("d_c0.s", early=e.replace(" B ", " B Y500 "), diag=1)
make("d_st.s", early="Y500 " + e, diag=1)
```

```python
import sys, struct
from gen_core import *
NAME = "standalone__layernorm_linear__sampling"
def f2u(f): return struct.unpack('<I', struct.pack('<f', f))[0]
NB = 32768*896

class Cfg:
    stamps = False
    sites = "m"
    early = "G x12 A A2 x4 B C:x2@60 x2 d4 C:x2@60 x2 d4 C:x2@60 x2 d4 C:x2@60 x2 d4 C:w1@60 w2 d4 C:w1@60 w2 d4 Z C:w1@60 w2 d4 C:w3@50,w2@60,ta@70,tb@85"
    imgoff = [0, 7168]*8
    worder = {}
    horder = {}
    xpol = " nt"
    spol = " sc1"
    cpf = 4
    plan = None
    cyc = False
    inw = True
    pace = 14
    endv = 2
    fo = 3
    lead = 7
    e13 = 14
    nogb = False
    barg = {}
    diag = 0
    diagq = 0
    bars = (0, 2)
    hwid = True
    twopass = True
    alt = None
    gbit = 7
    cpl = 168
    sbar = 0
    joff = 0
    padskip = 1
    padoff = 0
    parkd = ()
    eager = 0
    nocf = False
    nl = 4
    lhi = 62
    lpol = None
    w64 = False
    wlate = False
    nostore = False
    nobar2 = False
    gw = 8
    gwstep = 2
    minp = 12
    lat = 3
    tro = 5
    ybar = 4
    nobar = False
    ywr = 8
    trn = 6
cfg = Cfg()

XR, ST, OW, OR, OS, TR1, TR2 = 0, 20, 22, 16, 21, 5, 23
F = [8, 12]
T = 16
VO = 16
ACC = {0: 36, 1: 64, 2: 92, 3: 228}
LWY, LWZ, RA, RB, VL, SS, SQ = 120, 1, 128, 129, 130, 132, 134
PARK = [24, 28, 32, 6]
U = 144; GE = 172; BE = 200; EPS = 127
RAW = [228, 242, 106, 92, 78, 64, 50, 36]
sW, sMASK, sWO, sWLIM, sREG, sXO, sOO, sT, sRET, sT2, sO2, sPAR, sINV = 32, 33, 34, 35, 36, 37, 38, 39, 40, 45, 46, 47, 44
SX, SG, SWd, SO = 16, 20, 24, 28
WREG = 40960
IMG = {"A": 0, "B": 7168}
YO = 15872; ZO = YO + 14336
T7O = 7168; ODDO = 10752; FLAGO = 15616
GTAB = 7168
def wf(j, t, half=None, tmp=None):
    f = 7*{13: 0, 14: 13}.get(j, j) + t
    p, r = ("a", 4*f) if f < 64 else ("v", 120 + 4*(f-64))
    if tmp is not None: p, r = "v", tmp
    if half is None: return "%s[%d:%d]" % (p, r, r+3)
    return "%s[%d:%d]" % (p, r+2*half, r+2*half+1)
def vr(a, n): return "v[%d:%d]" % (a, a+n-1)
O = Op
stampn = [0]; stampnames = []
def stamp(site="m"):
    if not cfg.stamps or site[0] not in cfg.sites + "z": return []
    i = stampn[0]; stampn[0] += 1; stampnames.append(site)
    assert 52+2*i+1 <= 101
    return [O("%s s[%d:%d]" % ("s_memtime" if cfg.cyc else "s_memrealtime", 52+2*i, 53+2*i), kind="S", cost=0.01)]
def mfma(acc, j, t, fb, tmp=None, tile=None):
    a = vr(acc+4*t, 4)
    if tile >= 4: return O("v_mfma_f32_16x16x32_bf16 %s, %s, %s, %s" % (a, wf(j, t), vr(fb, 4), "0" if j == 1 else a), sem=("M", tile, j % 14, t))
    return O("v_mfma_f32_16x16x32_bf16 %s, %s, %s, %s" % (a, wf(j, t, None, tmp), fb if isinstance(fb, str) else vr(fb, 4), "0" if j == 0 else a), sem=("M", tile, j, t))
m0state = [None]; TR2late = [False]
def setm0(off):
    if m0state[0] == off: return []
    m0state[0] = off
    return [O("s_add_u32 m0, s%d, %d" % (sREG, off))]
xn = [0]; wn = [0]
def xdma(n):
    L = []
    for _ in range(n):
        tl, c = divmod(xn[0], 4); xn[0] += 1
        if c == 0 and tl > 0: L.append(O("s_add_u32 s%d, s%d, 3584" % (sXO, sXO)))
        if c < 3: L.append(O("buffer_load_dwordx4 %s, v%d, s[%d:%d], s%d offen offset:%d%s" % (vr(RAW[tl]+4*c, 4), RA, SX, SX+3, sXO, 256*c, cfg.xpol), tag="x%d_%d" % (tl, c)))
        else: L.append(O("buffer_load_dwordx2 %s, v%d, s[%d:%d], s%d offen offset:768%s" % (vr(RAW[tl]+12, 2), RB, SX, SX+3, sXO, cfg.xpol), tag="x%d_%d" % (tl, c)))
    return L
def ioff(j): return cfg.imgoff[j]
def worder(j): return cfg.worder.get(j, list(range(7)))
def wland(j, h):
    o = worder(j); mem = range(0, 4) if h == 0 else range(3, 7)
    return "w%d_%d" % (j, max(mem, key=o.index))
def wneeds(j, i):
    a = ioff(j) + 1024*i; needs = []
    for k in range(j):
        for h in range(2):
            lo = ioff(k) + 3584*h
            if a < lo + 3584 and lo < a + 1024: needs.append((k, h))
    return needs
def wdma(n):
    L = []
    for _ in range(n):
        j, ii = divmod(wn[0], 7); wn[0] += 1
        i = worder(j)[ii]
        m0 = ioff(j) + (3072 if i >= 3 else 0)
        pre = setm0(m0)
        if ii == 0 and j > 0:
            pre.append(O("s_add_u32 s%d, s%d, 28672" % (sWO, sWO), sem=("ADV", "w", 0.5)))
            pre.append(O("s_cmp_ge_u32 s%d, s%d" % (sWO, sWLIM), tag="scc:w"))
            pre.append(O("s_cselect_b32 s%d, s%d, s%d" % (sWO, sT2, sWO), needs=["scc:w"], sem=("ADV", "w", 0.5)))
        if len(pre) == 1: pre.append(O("s_nop 0"))
        L += pre
        needs = ["tr%dh%d" % x for x in wneeds(j, i)]
        a = ioff(j) + 1024*i
        if GTAB <= a < GTAB + 4096: needs.append("gbr")
        L.append(O("buffer_load_dwordx4 v%d, s[%d:%d], s%d offen offset:%d lds" % (VO+i, SWd, SWd+3, sWO, 1024*(i-3 if i >= 3 else i)), tag="w%d_%d" % (j, i), needs=needs, sem=("DM", m0, "w", j)))
    return L
def trreads(j, h, ts=range(7), tmp=None, tag=None):
    L = []; ts = list(ts)
    for k, t in enumerate(ts):
        off = ioff(j) + h*3584 + ((32*t if cfg.nocf else 64*(t >> 1) + 8*(t & 1)) if t < 6 else 0)
        tg = tag or "tr%dh%d" % (j, h)
        L.append(O("ds_read_b64_tr_b16 %s, v%d offset:%d" % (wf(j, t, h, None if tmp is None else tmp+4*k), TR1 if t < 6 else (6 if TR2late[0] else TR2), off),
                   tag=(tg if k == len(ts)-1 else tg + "#%d" % t), needs=["w%d_%d" % (j, i) for i in (range(0, 4) if h == 0 else range(3, 7))], sem=("W", j % 14, t, h)))
    return L
def dpp(r, n): return O("v_add_f32_dpp v%d, v%d, v%d row_ror:%d row_mask:0xf bank_mask:0xf" % (r, r, r, n))
def ln_code1(li):
    S, Q = SS, SQ; R, N = SQ+1, SS+1
    RW = RAW[li]
    dst = [RW, RW+4, RW+8, RW+12] if li < 7 and li not in cfg.parkd else PARK
    p = lambda a: vr(a, 2)
    A = []
    for i in range(14):
        if i % 4 == 0: A.append(WAIT(v="x%d_%d" % (li, i//4)))
        if i == 12: A += stamp("r%d" % li)
        A += [O("v_lshlrev_b32 v%d, 16, v%d" % (U+2*i, RW+i)), O("v_and_b32 v%d, s%d, v%d" % (U+2*i+1, sMASK, RW+i))]
        if i == 1: A += [O("v_pk_add_f32 %s, %s, %s" % (p(S), p(U), p(U+2))), O("v_pk_mul_f32 %s, %s, %s" % (p(Q), p(U), p(U)))]
        if i >= 2:
            k = i-1
            if k >= 2: A.append(O("v_pk_add_f32 %s, %s, %s" % (p(S), p(S), p(U+2*k))))
            A.append(O("v_pk_fma_f32 %s, %s, %s, %s" % (p(Q), p(U+2*k), p(U+2*k), p(Q))))
    A += [O("v_pk_add_f32 %s, %s, %s" % (p(S), p(S), p(U+26))), O("v_pk_fma_f32 %s, %s, %s, %s" % (p(Q), p(U+26), p(U+26), p(Q)))]
    A += [O("v_add_f32 v%d, v%d, v%d" % (S, S, S+1)), O("v_add_f32 v%d, v%d, v%d" % (Q, Q, Q+1)), O("s_nop 0")]
    for n in (8, 4, 2, 1):
        A += [dpp(S, n), dpp(Q, n)] + ([O("s_nop 0")] if n != 1 else [])
    A += [O("v_mul_f32 v%d, 0x%08x, v%d" % (S, f2u(1.0/448), S)),
          O("v_mul_f32 v%d, v%d, v%d" % (N, S, S)),
          O("v_fma_f32 v%d, v%d, s%d, -v%d" % (Q, Q, sINV, N)),
          O("v_max_f32 v%d, 0, v%d" % (Q, Q)),
          O("v_add_f32 v%d, 0x%08x, v%d" % (Q, f2u(1e-5), Q)),
          O("v_rsq_f32 v%d, v%d" % (R, Q)),
          O("s_nop 0"),
          O("v_mul_f32_e64 v%d, -v%d, v%d" % (N, S, R))]
    if li == 0: A.append(WAIT(l="gbr"))
    for c in range(4):
        n = 4 if c < 3 else 2
        for i in range(4*c, 4*c+n):
            A.append(O("v_pk_fma_f32 %s, %s, %s, %s op_sel:[0,1,1] op_sel_hi:[1,1,1]" % (p(U+2*i), p(U+2*i), p(Q), p(S))))
        for i in range(4*c, 4*c+n):
            A.append(O("v_pk_fma_f32 %s, %s, %s, %s" % (p(U+2*i), p(U+2*i), p(GE+2*i), p(BE+2*i))))
        for i in range(n):
            A.append(O("v_cvt_pk_bf16_f32 v%d, v%d, v%d" % (dst[c]+i, U+8*c+2*i, U+8*c+2*i+1)))
    return A
def ln_code3(li):
    S, Q = SS, SQ; R, N = SQ+1, SS+1
    C = 136
    RW = RAW[li]
    dst = [RW, RW+4, RW+8, RW+12] if li < 7 and li not in cfg.parkd else PARK
    p = lambda a: vr(a, 2)
    sub = lambda i: O("v_pk_add_f32 %s, %s, %s op_sel_hi:[1,0] neg_lo:[0,1] neg_hi:[0,1]" % (p(U+2*i), p(U+2*i), p(C)))
    def acc(k):
        if k == 0: return [O("v_pk_mul_f32 %s, %s, %s" % (p(Q), p(U), p(U)))]
        return [O("v_pk_add_f32 %s, %s, %s" % (p(S), p(U) if k == 1 else p(S), p(U+2*k))), O("v_pk_fma_f32 %s, %s, %s, %s" % (p(Q), p(U+2*k), p(U+2*k), p(Q)))]
    A = []
    for i in range(14):
        if i % 4 == 0: A.append(WAIT(v="x%d_%d" % (li, i//4)))
        if i == 12: A += stamp("r%d" % li)
        A += [O("v_lshlrev_b32 v%d, 16, v%d" % (U+2*i, RW+i)), O("v_and_b32 v%d, s%d, v%d" % (U+2*i+1, sMASK, RW+i))]
        if i == 1: A.append(O("v_mov_b32_dpp v%d, v%d row_newbcast:0 row_mask:0xf bank_mask:0xf" % (C, U)))
        if i >= 2: A.append(sub(i-2))
        if i >= 3: A += acc(i-3)
    A += [sub(12)] + acc(11) + [sub(13)] + acc(12) + acc(13)
    A += [O("v_add_f32 v%d, v%d, v%d" % (S, S, S+1)), O("v_add_f32 v%d, v%d, v%d" % (Q, Q, Q+1)), O("s_nop 0")]
    for n in (8, 4, 2, 1):
        A += [dpp(S, n), dpp(Q, n)] + ([O("s_nop 0")] if n != 1 else [])
    A += [O("v_mul_f32 v%d, s%d, v%d" % (S, sINV, S)),
          O("v_mul_f32 v%d, s%d, v%d" % (Q, sINV, Q)),
          O("v_add_f32 v%d, v%d, v%d" % (N, C, S)),
          O("v_fma_f32 v%d, -v%d, v%d, v%d" % (Q, S, S, Q)),
          O("v_cvt_pk_bf16_f32 v%d, v%d, v%d" % (N, N, N)),
          O("v_max_f32 v%d, 0, v%d" % (Q, Q)),
          O("v_and_b32 v%d, s%d, v%d" % (N, sMASK, N)),
          O("v_add_f32 v%d, v%d, v%d" % (Q, EPS, Q)),
          O("v_rsq_f32 v%d, v%d" % (R, Q)),
          O("v_sub_f32 v%d, v%d, v%d" % (N, C, N)),
          O("v_mul_f32 v%d, v%d, v%d" % (N, N, R))]
    if li == 0: A.append(WAIT(l="gbr"))
    for c in range(4):
        n = 4 if c < 3 else 2
        for i in range(4*c, 4*c+n):
            A.append(O("v_pk_fma_f32 %s, %s, %s, %s op_sel:[0,1,1] op_sel_hi:[1,1,1]" % (p(U+2*i), p(U+2*i), p(Q), p(S))))
        for i in range(4*c, 4*c+n):
            A.append(O("v_pk_fma_f32 %s, %s, %s, %s" % (p(U+2*i), p(U+2*i), p(GE+2*i), p(BE+2*i))))
        for i in range(n):
            A.append(O("v_cvt_pk_bf16_f32 v%d, v%d, v%d" % (dst[c]+i, U+8*c+2*i, U+8*c+2*i+1)))
    return A
def ln_code(li):
    if not cfg.twopass: return ln_code1(li)
    if cfg.twopass == 3: return ln_code3(li)
    S, Q = SS, SQ; R, N = SQ+1, SS+1
    S2 = 136
    RW = RAW[li]
    dst = [RW, RW+4, RW+8, RW+12] if li < 7 and li not in cfg.parkd else PARK
    p = lambda a: vr(a, 2)
    A = []
    for i in range(14):
        if i % 4 == 0: A.append(WAIT(v="x%d_%d" % (li, i//4)))
        if i == 12: A += stamp("r%d" % li)
        A += [O("v_lshlrev_b32 v%d, 16, v%d" % (U+2*i, RW+i)), O("v_and_b32 v%d, s%d, v%d" % (U+2*i+1, sMASK, RW+i))]
        if i == 2: A.append(O("v_pk_add_f32 %s, %s, %s" % (p(S), p(U), p(U+2))))
        if i >= 3: A.append(O("v_pk_add_f32 %s, %s, %s" % (p(S), p(S), p(U+2*(i-1)))))
    A += [O("v_pk_add_f32 %s, %s, %s" % (p(S), p(S), p(U+26))), O("v_add_f32 v%d, v%d, v%d" % (S, S, S+1))]
    for n in (8, 4, 2, 1): A += [O("s_nop 1"), dpp(S, n)]
    A += [O("v_mul_f32 v%d, 0x%08x, v%d" % (S, f2u(-1.0/448), S))]
    sub = lambda i: O("v_pk_add_f32 %s, %s, %s op_sel_hi:[1,0]" % (p(U+2*i), p(U+2*i), p(S)))
    def sq(i):
        q = Q if i % 2 == 0 else S2
        if i < 2: return O("v_pk_mul_f32 %s, %s, %s" % (p(q), p(U+2*i), p(U+2*i)))
        return O("v_pk_fma_f32 %s, %s, %s, %s" % (p(q), p(U+2*i), p(U+2*i), p(q)))
    A += [sub(0), sub(1)]
    for i in range(2, 14): A += [sub(i), sq(i-2)]
    A += [sq(12), sq(13)]
    A += [O("v_cvt_pk_bf16_f32 v%d, v%d, v%d" % (N, S, S)), O("v_pk_add_f32 %s, %s, %s" % (p(Q), p(Q), p(S2))),
          O("v_and_b32 v%d, s%d, v%d" % (N, sMASK, N)), O("v_add_f32 v%d, v%d, v%d" % (Q, Q, Q+1)),
          O("v_sub_f32 v%d, v%d, v%d" % (N, N, S)), O("s_nop 0"), dpp(Q, 8)]
    for n in (4, 2, 1): A += [O("s_nop 1"), dpp(Q, n)]
    A += [O("v_fma_f32 v%d, v%d, s%d, v%d" % (Q, Q, sINV, EPS)),
          O("v_rsq_f32 v%d, v%d" % (R, Q)),
          O("s_nop 0"),
          O("v_mul_f32 v%d, v%d, v%d" % (N, N, R))]
    if li == 0: A.append(WAIT(l="gbr"))
    for c in range(4):
        n = 4 if c < 3 else 2
        for i in range(4*c, 4*c+n):
            A.append(O("v_pk_fma_f32 %s, %s, %s, %s op_sel:[0,1,1] op_sel_hi:[1,1,1]" % (p(U+2*i), p(U+2*i), p(Q), p(S))))
        for i in range(4*c, 4*c+n):
            A.append(O("v_pk_fma_f32 %s, %s, %s, %s" % (p(U+2*i), p(U+2*i), p(GE+2*i), p(BE+2*i))))
        for i in range(n):
            A.append(O("v_cvt_pk_bf16_f32 v%d, v%d, v%d" % (dst[c]+i, U+8*c+2*i, U+8*c+2*i+1)))
    return A
def lnwrites(i):
    lw, off = (LWY, YO + 256*i) if i < 4 else (LWZ, ZO + 3584*(i-4))
    src = [RAW[i], RAW[i]+4, RAW[i]+8, RAW[i]+12]; nd = []
    if i in cfg.parkd: src = PARK
    if i == 7: off = T7O; src = PARK; nd = ["tr13h0"]
    if i == 7 and cfg.w64:
        return [O("ds_write_b64 v%d, %s offset:%d" % (lw+c//2, vr(src[c//2]+2*(c & 1), 2), off+8*(c & 1)), cost=3, needs=nd) for c in range(7)]
    return [O("ds_write_b128 v%d, %s offset:%d" % (lw+c, vr(src[c], 4), off), cost=5, needs=nd) for c in range(3)] + [O("ds_write_b64 v%d, %s offset:%d" % (lw+3, vr(src[3], 2), off), cost=3, needs=nd)]
def xoff(tile, j):
    if tile == 7: return T7O + 256*j
    return YO + 1024*j + 256*tile if tile < 4 else ZO + 3584*(tile-4) + 256*j

def cost(op):
    if op.cost: return op.cost
    return {"V": 1, "S": 1, "W": 1, "D": 2, "G": 3, "K": 1, "L": 0}[op.kind]
def weave(mf, fixed, stream, g0, g1):
    n = len(mf)
    for ex in range(0, 400):
        extra = ex * 0.02
        gaps = [list(fixed.get(g, [])) for g in range(n)]
        si = 0; credit = 0.0
        for g in range(g0, g1+1):
            used = 0; hasV = False
            for o in gaps[g]:
                if o.kind == "V" and used < 1: used = 1
                used += cost(o); hasV |= o.kind == "V"
            credit += extra
            while si < len(stream):
                o = stream[si]
                if o.at is not None and o.at > g: break
                u = used
                if o.kind == "V" and u < 1: u = 1
                if o.kind in ("D", "G") and hasV: break
                u += cost(o)
                over = max(0, u-3.1) - max(0, used-3.1)
                if over > 0:
                    if used < 0.5: pass
                    elif credit >= over: credit -= over
                    else: break
                gaps[g].append(o); used = u; hasV |= o.kind == "V"; si += 1
        if si == len(stream): break
    else:
        raise Exception("weave failed")
    out = []; tot = 0
    for g in range(n):
        out.append(mf[g]); out += gaps[g]
        u = 0
        for o in gaps[g]:
            if o.kind == "V" and u < 1: u = 1
            u += cost(o)
        tot += max(4, 1+u)
    print("weave: n=%d extra=%.2f est cycles=%d (ideal %d)" % (n, extra, tot*4, n*16), file=sys.stderr)
    return out
def cvt(dst, a): return O("v_cvt_pk_bf16_f32 v%d, v%d, v%d" % (dst, a, a+1), sem=("C",))

def prologue():
    L = []
    a = lambda s, **k: L.append(O(s, **k))
    L += stamp("z")
    if cfg.diag: a("s_memrealtime s[98:99]")
    a("s_load_dwordx2 s[%d:%d], s[0:1], 0" % (SX, SX+1))
    a("s_load_dwordx4 s[4:7], s[0:1], 8")
    a("s_load_dwordx2 s[%d:%d], s[0:1], 24" % (SWd, SWd+1))
    a("s_load_dwordx2 s[%d:%d], s[0:1], 32" % (SO, SO+1))
    if cfg.stamps: a("s_load_dwordx2 s[48:49], s[0:1], 48")
    a("s_cmp_ge_u32 s2, 256", tag="scc:e"); a("s_cbranch_scc1 L_end", needs=["scc:e"])
    LN_ = 40
    a("v_lshrrev_b32 v43, 6, v0")
    a("v_and_b32 v%d, 63, v0" % LN_)
    a("v_readfirstlane_b32 s%d, v43" % sW)
    a("s_lshr_b32 s3, s2, 3")
    if cfg.cpf:
        nl = -(-cfg.cpl // (4*cfg.cpf))
        a("; pull this kernel's code into L2, a slice per wave"); a("s_getpc_b64 s[12:13]")
        if cfg.hwid:
            assert cfg.cpf == 16
            a("s_getreg_b32 s11, hwreg(HW_REG_HW_ID, 8, 2)"); a("s_getreg_b32 s14, hwreg(HW_REG_HW_ID, 13, 2)")
            a("s_lshl2_add_u32 s11, s11, s14"); a("s_lshl2_add_u32 s11, s11, s%d" % sW)
        else:
            a("s_and_b32 s11, s3, %d" % (cfg.cpf-1)); a("s_lshl_b32 s11, s11, 2"); a("s_add_u32 s11, s11, s%d" % sW)
        a("s_mul_i32 s11, s11, %d" % (nl*128)); a("s_add_u32 s12, s12, s11", tag="scc:c"); a("s_addc_u32 s13, s13, 0", needs=["scc:c"])
        a("v_min_u32 v48, %d, v%d" % (nl-1, LN_)); a("v_lshlrev_b32 v48, 7, v48")
        a("v_mov_b32 v49, s13"); a("v_add_co_u32 v48, vcc, s12, v48")
    a("v_lshlrev_b32 v%d, 4, v%d" % (VL, LN_))
    a("s_mul_i32 s%d, s2, %d" % (sOO, 128*896))
    if cfg.cpf:
        a("v_addc_co_u32 v49, vcc, 0, v49, vcc")
        a("global_load_dword v44, v[48:49], off")
    a("s_mov_b32 s%d, %d" % (SX+2, NB)); a("s_mov_b32 s%d, 0x20000" % (SX+3))
    a("s_mul_i32 s%d, s%d, 28672" % (sXO, sW))
    a("s_add_u32 s%d, s%d, s%d" % (sXO, sXO, sOO))
    a("s_mul_i32 s%d, s%d, %d" % (sREG, sW, WREG))
    a("s_movk_i32 s%d, 896" % (SG+2)); a("s_mov_b32 s%d, 0x20000" % (SG+3))
    a("s_movk_i32 s10, 896"); a("s_mov_b32 s11, 0x20000")
    a("s_mov_b32 s%d, %d" % (SWd+2, 448*896)); a("s_mov_b32 s%d, 0x20000" % (SWd+3))
    a("v_and_b32 v41, 15, v%d" % LN_); a("v_lshrrev_b32 v42, 4, v%d" % LN_)
    a("v_mul_u32_u24 v45, 896, v42")
    a("v_lshl_add_u32 v%d, v41, 4, v45" % RA); a("v_lshl_add_u32 v%d, v41, 3, v45" % RB)
    a("s_waitcnt lgkmcnt(0)")
    return L
def gbload():
    return [O("s_mov_b32 s%d, s4" % SG), O("s_mov_b32 s%d, s5" % (SG+1)), O("s_mov_b32 s8, s6"), O("s_mov_b32 s9, s7"),
            O("buffer_load_dwordx4 v[136:139], v%d, s[%d:%d], 0 offen" % (VL, SG, SG+3)),
            O("buffer_load_dwordx4 v[140:143], v%d, s[8:11], 0 offen" % VL, tag="gb")]
def wsetup():
    L = []
    a = lambda s, **k: L.append(O(s, **k))
    LN_ = 40
    a("s_mul_i32 s%d, s3, 28672" % sWO)
    a("s_add_u32 s%d, s%d, s%d" % (sWO, sWO, sT2))
    a("s_add_u32 s%d, s%d, %d" % (sWLIM, sT2, 14*28672))
    a("s_lshr_b32 s14, s2, 3"); a("s_lshl_b32 s14, s14, 2"); a("s_add_u32 s14, s14, s%d" % sW); a("s_mul_i32 s14, s14, 3200")
    a("v_min_u32 v131, 24, v%d" % LN_); a("v_lshlrev_b32 v131, 7, v131")
    a("s_movk_i32 s12, 672"); a("s_movk_i32 s13, 896")
    a("v_mul_u32_u24 v45, 4682, v%d" % LN_)
    for i in range(7):
        const = (3072 if i >= 3 else 0) - (10752 if i >= 4 else 0)
        if i: a("v_add_u32 v46, %d, v45" % (64*i*4682)); a("v_lshrrev_b32 v46, 16, v46")
        else: a("v_lshrrev_b32 v46, 16, v45")
        a("v_and_b32 v47, 12, v46")
        a("v_mad_u32_u24 v%d, v46, s12, v%d" % (VO+i, VL))
        a("v_mad_u32_u24 v%d, v47, s13, v%d" % (VO+i, VO+i))
        if i == 3:
            a("v_lshrrev_b32 v47, 4, v46"); a("v_mul_u32_u24 v47, 10752, v47"); a("v_sub_u32 v%d, v%d, v47" % (VO+i, VO+i))
        if const: a("v_add_u32 v%d, %d, v%d" % (VO+i, const & 0xffffffff, VO+i))
    return L
FTAB = 0x1e
def addr_math(part):
    L = []
    a = lambda s, **k: L.append(O(s, **k))
    LN_, P_, RR, GA = 40, 41, 42, 52
    a("s_mov_b32 s%d, %d" % (SO+2, NB)); a("s_mov_b32 s%d, 0x20000" % (SO+3))
    a("s_mov_b32 s%d, 0xffff0000" % sMASK)
    a("s_and_b32 s15, s%d, 1" % sW)
    a("s_mov_b32 s%d, 0x%08x" % (sINV, f2u(1.0/448)))
    a("v_mov_b32 v%d, 0x%08x" % (EPS, f2u(1e-5)))
    a("s_sub_u32 s%d, s3, 14" % sT); a("s_min_u32 s3, s3, s%d" % sT)
    a("s_sub_u32 s%d, s3, 14" % sT); a("s_min_u32 s3, s3, s%d" % sT)
    a("s_mul_i32 s%d, s%d, 224" % (sT2, sW))
    a("v_lshlrev_b32 v%d, 4, v%d" % (GA, P_))
    a("v_cmp_eq_u32 vcc, 3, v%d" % RR)
    a("v_lshlrev_b32 v45, 5, v%d" % P_)
    a("v_mov_b32 v46, 0x100")
    a("v_cndmask_b32 v45, v%d, v45, vcc" % GA)
    a("v_cndmask_b32_e64 v46, v46, 16, vcc")
    a("v_lshl_add_u32 v50, v%d, 9, v45" % RR)
    a("v_add_u32 v50, s%d, v50" % sREG); a("v_add_u32 v%d, s%d, v%d" % (GA, sREG, GA))
    a("v_add_u32 v51, v50, v46")
    a("s_movk_i32 s12, 0x78")
    a("v_lshrrev_b32 v45, 2, v%d" % P_)
    a("v_lshlrev_b32 v46, 1, v45"); a("v_bfe_u32 v46, s12, v46, 2")
    a("v_xor_b32 v46, v46, v%d" % RR)
    a("v_lshrrev_b32 v47, 1, v46"); a("v_and_b32 v48, 3, v%d" % P_); a("v_xor_b32 v47, v47, v48")
    a("v_lshlrev_b32 v47, 4, v47"); a("v_lshl_add_u32 v47, v46, 6, v47")
    a("v_mul_u32_u24 v45, %d, v45" % WREG); a("v_add_u32 v%d, v45, v47" % XR)
    a("s_lshl_b32 s41, s%d, 1" % sW); a("s_lshr_b32 s41, s12, s41"); a("s_and_b32 s41, s41, 3")
    def common(qexpr_ops):
        for s in qexpr_ops: a(s)
        a("v_xor_b32 v46, s41, v46")
        a("v_lshrrev_b32 v47, 1, v46"); a("v_xor_b32 v47, v47, v%d" % RR); a("v_lshlrev_b32 v47, 4, v47")
        a("v_lshl_add_u32 v47, v46, 6, v47"); a("v_add_u32 v47, s%d, v47" % sREG)
    common(["v_and_b32 v46, 3, v%d" % P_])
    a("v_lshrrev_b32 v46, 2, v%d" % P_); a("v_subrev_u32 v46, s3, v46")
    for c in range(3):
        if c: a("v_add_u32 v46, 4, v46")
        a("v_add_u32 v48, 14, v46"); a("v_min_u32 v48, v48, v46")
        a("v_lshl_add_u32 v%d, v48, 10, v47" % (LWY+c)); a("v_lshl_add_u32 v%d, v48, 8, v47" % (LWZ+c))
    common(["v_bfe_u32 v46, v%d, 1, 2" % P_])
    a("v_and_b32 v46, 1, v%d" % P_); a("v_lshl_add_u32 v47, v46, 3, v47")
    a("v_lshrrev_b32 v46, 3, v%d" % P_); a("v_add_u32 v46, 12, v46"); a("v_subrev_u32 v46, s3, v46")
    a("v_add_u32 v48, 14, v46"); a("v_min_u32 v48, v48, v46")
    a("v_lshl_add_u32 v%d, v48, 10, v47" % (LWY+3)); a("v_lshl_add_u32 v%d, v48, 8, v47" % (LWZ+3))
    if part == 1: return L[:]
    del L[:]
    a("s_lshl_b32 s41, s15, 5")
    a("v_lshrrev_b32 v45, 2, v%d" % LN_); a("v_mul_u32_u24 v45, 224, v45"); a("v_and_b32 v46, 3, v%d" % LN_)
    a("v_add_u32 v45, s%d, v45" % sREG)
    a("v_lshl_add_u32 v%d, v46, %d, v45" % (TR1, 3 if cfg.nocf else 4)); a("v_add_u32 v%d, s41, v%d" % (TR1, TR1))
    a("s_mul_i32 s12, s15, 192"); a("s_sub_u32 s12, 192, s12")
    a("v_lshl_add_u32 v%d, v46, 3, v45" % TR2); a("v_add_u32 v%d, s12, v%d" % (TR2, TR2))
    return L
def late_addr():
    L = []
    a = lambda s, **k: L.append(O(s, **k))
    P_, RR = 16, 17
    ST, OS, OW, OR = 20, 21, 22, 16
    a("v_mbcnt_lo_u32_b32 v17, -1, 0"); a("v_mbcnt_hi_u32_b32 v17, -1, v17")
    a("v_and_b32 v16, 15, v17"); a("v_lshrrev_b32 v17, 4, v17")
    a("v_lshrrev_b32 v18, 2, v%d" % P_); a("v_and_b32 v19, 3, v%d" % P_); a("v_lshl_add_u32 v18, v18, 5, v19")
    a("v_mul_u32_u24 v18, 896, v18"); a("v_lshl_add_u32 v18, v%d, 4, v18" % RR)
    a("s_lshl_b32 s41, s15, 5"); a("s_add_u32 s12, s41, s%d" % sT2)
    a("v_add_u32 v%d, s12, v18" % ST)
    a("s_lshr_b32 s13, s%d, 1" % sW)
    a("s_mul_i32 s12, s13, 448"); a("s_mul_i32 s%d, s15, 3584" % sPAR); a("s_add_u32 s12, s12, 192")
    a("v_add_u32 v%d, s12, v18" % OS)
    a("v_lshlrev_b32 v18, 5, v%d" % P_)
    a("v_lshl_add_u32 v19, v%d, 3, v18" % RR); a("v_add_u32 v%d, s%d, v19" % (OW, sREG))
    a("v_and_b32 v19, 1, v%d" % RR); a("v_lshl_add_u32 v18, v19, 4, v18")
    a("v_lshrrev_b32 v19, 1, v%d" % RR); a("v_mul_u32_u24 v19, %d, v19" % WREG); a("v_add_u32 v18, v18, v19")
    a("s_mul_i32 s12, s13, %d" % (2*WREG)); a("s_lshl_b32 s42, s15, 9"); a("s_add_u32 s12, s12, s42")
    a("v_add_u32 v%d, s12, v18" % OR)
    return L
def gbtable():
    GA = 52
    L = [WAIT(v="gb")]
    for i in range(8):
        L += [O("v_lshlrev_b32 v%d, 16, v%d" % (56+2*i, 136+i)), O("v_and_b32 v%d, s%d, v%d" % (57+2*i, sMASK, 136+i))]
        if i == 3: L += [O("ds_write_b128 v50, v[56:59] offset:%d" % GTAB), O("ds_write_b128 v51, v[60:63] offset:%d" % GTAB)]
    L += [O("ds_write_b128 v50, v[64:67] offset:%d" % (GTAB+2048)), O("ds_write_b128 v51, v[68:71] offset:%d" % (GTAB+2048))]
    for v in range(7):
        L.append(O("ds_read_b128 %s, v%d offset:%d" % (vr(GE+4*v, 4), GA, GTAB+256*v)))
        L.append(O("ds_read_b128 %s, v%d offset:%d" % (vr(BE+4*v, 4), GA, GTAB+2048+256*v), tag="gbr" if v == 6 else None))
    return L

def spin(t, tag):
    return [O(x, kind="L") for x in ["    s_add_u32 s100, s98, %d" % t, "L_sp%s:" % tag, "    s_memrealtime s[96:97]", "    s_waitcnt lgkmcnt(0)",
            "    s_sub_u32 s101, s100, s96", "    s_cmp_gt_i32 s101, 0", "    s_cbranch_scc1 L_sp%s" % tag]]
def half(n):
    j, x = divmod(n, 2)
    return j, cfg.horder.get(j, (0, 1))[x]
def build():
    wn[0] = 0; xn[0] = 0; stampn[0] = 0; del stampnames[:]; m0state[0] = None; TR2late[0] = False
    code = []; trace = []
    def emit(L): code.extend(L); trace.extend(L)
    emit(prologue())
    fb = [0]
    def xread(tile, j):
        return O("ds_read_b128 %s, v%d offset:%d" % (vr(F[fb[0] & 1], 4), XR, xoff(tile, j % 14)), tag="xf", sem=("X", tile, j % 14))
    pre = {}
    def units(seq, nxt):
        mf = []; fixed = {}; starts = []
        for k, u in enumerate(seq):
            tile, j = u[0], u[1]
            g = len(mf); starts.append(g)
            if (tile, j) in pre: cur = pre[(tile, j)]
            else: cur = F[fb[0] & 1]; fb[0] += 1
            n = seq[k+1] if k+1 < len(seq) else nxt
            acc = ACC[tile] if tile < 4 else ACC[2]
            ts = u[3] if len(u) > 3 else range(7)
            for t in ts: mf.append(mfma(acc, j, t, cur, None if len(u) < 3 or u[2] is None else u[2][t], tile))
            if n is not None and (n[0], n[1]) not in pre:
                fixed.setdefault(g, []).append(xread(n[0], n[1]))
                fixed.setdefault(len(mf)-1, []).append(WAIT(l="xf"))
        return mf, fixed, starts
    st8 = dict(ri=0, li=0, th=0, vis=0, wi=0)
    done = set(); waited = set()
    def simple(tok):
        if tok[0] in "xw" and "+" not in tok:
            out = []
            for o in (xdma if tok[0] == "x" else wdma)(int(tok[1:])):
                for tg in o.needs:
                    if tg.startswith("tr") and tg not in waited: waited.add(tg); out.append(WAIT(l=tg))
                out.append(o)
            return out
        if tok[0] == "t" and "+" not in tok:
            j, h = half(st8["th"]); st8["th"] += 1
            return [WAIT(v=wland(j, h))] + trreads(j, h)
        if tok == "y": return [WAIT(l=0)]
        if tok == "-": return []
        if tok[0] == "M" and "+" not in tok:
            out = []
            if "mi" not in st8:
                st8["mi"] = 0
                out += [O("s_lshr_b32 s94, s2, 3"), O("s_lshl2_add_u32 s94, s94, s%d" % sW), O("s_mulk_i32 s94, 3136"),
                        O("s_add_u32 s94, s%d, s94" % SWd, tag="scc:m"), O("s_addc_u32 s95, s%d, 0" % (SWd+1), needs=["scc:m"])]
            for _ in range(int(tok[1:])):
                out.append(O("s_load_dword s93, s[94:95], %d" % (64*st8["mi"]), kind="S")); st8["mi"] += 1
            assert st8["mi"] <= 49
            return out
        if tok[0] == "Y": return spin(int(tok[1:]), tok)
        if tok == "T":
            return [O("s_mov_b32 s%d, %d" % (SO+2, NB)), O("s_mov_b32 s%d, 0x20000" % (SO+3)),
                    O("v_and_b32 v124, 1, v40"), O("v_mul_u32_u24 v125, %d, v124" % (128*896-4)), O("v_mul_u32_u24 v124, %d, v124" % (448*896-4)),
                    O("buffer_load_dword v125, v125, s[%d:%d], s%d offen" % (SO, SO+3, sOO)),
                    O("buffer_load_dword v124, v124, s[%d:%d], 0 offen" % (SWd, SWd+3))]
        if tok == "|": return [O("@SPLIT", kind="L")]
        if tok == "J": return [O("    s_branch L_main", kind="L"), O(".p2align 12", kind="L"), O(".fill %d, 4, 0xbf810000" % (cfg.joff//4), kind="L"), O("L_main:")]
        if tok == "H":
            hn = st8.setdefault("hn", 0); st8["hn"] += 1
            L = [O("; touch the first instruction line of each later 4 KiB code page (sequential fetch does not run across pages)", kind="L"), O("    s_mov_b64 vcc, 1", kind="L")]
            for k in range(4):
                L += [O("@H%d    s_cmp_eq_u32 s%d, %d" % (4*hn+k, sW, k), kind="L"), O("@H%d    s_cbranch_scc1 L_pad%d" % (4*hn+k, 4*hn+k), kind="L")]
            return L + [O("L_padret%d:" % hn), O("s_mov_b64 vcc, 0")]
        if tok == "I":
            return [O("s_lshl_b32 s43, s%d, 2" % sW), O("v_mov_b32 v124, s43"), O("v_mov_b32 v125, 0"), O("v_mov_b32 v126, 1"),
                    O("ds_write_b32 v124, v125 offset:%d" % FLAGO), WAIT(l=0), O("s_barrier")]
        if tok == "S":
            st8["fvis"] = st8["wi"]//4
            return [WAIT(l=0), O("ds_write_b32 v124, v126 offset:%d" % FLAGO)]
        if tok == "Q": return [O("ds_read_b128 v[140:143], v125 offset:%d" % FLAGO, tag="fl")]
        if tok == "K":
            st8["vis"] = st8["fvis"]
            return [O("L_chk:"), WAIT(l="fl"), O("v_and_b32 v140, v140, v141"), O("v_and_b32 v142, v142, v143"), O("v_and_b32 v140, v140, v142"), O("s_nop 0"),
                    O("v_readfirstlane_b32 s43, v140"), O("s_cmp_eq_u32 s43, 1", tag="scc:k"), O("s_cbranch_scc1 L_ok", needs=["scc:k"]),
                    O("    ds_read_b128 v[140:143], v125 offset:%d" % FLAGO, kind="L"), O("    s_waitcnt lgkmcnt(0)", kind="L"), O("    s_branch L_chk", kind="L"), O("L_ok:")]
        if tok == "Z":
            st8["vis"] = st8["wi"]//4
            return [WAIT(l=0), O("s_barrier")]
        if tok[0] == "d" and "+" not in tok:
            out = []
            for _ in range(int(tok[1:] or 1)):
                i, c = divmod(st8["wi"], 4); st8["wi"] += 1; assert i < st8["li"]
                out.append(lnwrites(i)[c])
            return out
        if tok[0] == "s" and "+" not in tok: return stamp(tok)
        if "+" in tok: return [o for t in tok.split("+") for o in simple(t)]
        if tok[0] == "F":
            j = int(tok[1:]); assert st8["vis"] >= 4; out = []
            for t in range(4):
                pre[(t, j)] = wf(j + cfg.fo, t)
                out.append(O("ds_read_b128 %s, v%d offset:%d" % (pre[(t, j)], XR, xoff(t, j)), sem=("X", t, j)))
            return out
        if tok == "P": return [O("buffer_load_dword v136, v131, s[%d:%d], s14 offen" % (SWd, SWd+3))]
        raise Exception(tok)
    nz = 0
    for tok in cfg.early.split():
        head, _, spr = tok.partition(":")
        spr = spr.split(",") if spr else []
        if tok == "G": emit([O("; g, b rows", kind="L")] + gbload())
        elif tok == "P": emit([O("buffer_load_dword v136, v131, s[%d:%d], s14 offen" % (SWd, SWd+3))])
        elif tok == "A": emit([O("; per-lane LDS addresses", kind="L")] + addr_math(1))
        elif tok == "A2": emit(addr_math(2) + wsetup())
        elif tok == "B": emit(stamp("mb")); emit([O("; g, b -> fp32 in the LayerNorm lane layout (through a private LDS table)", kind="L")] + gbtable())
        elif head == "C":
            li = st8["li"]
            emit(stamp("c%d" % li)); emit([O("; LayerNorm of tile %d (4 rows per wave, 16 lanes per row)" % li, kind="L")])
            A = ln_code(li); out = []
            items = []
            for k, t in enumerate(spr):
                t, _, pct = t.partition("@")
                nops = [i for i, o in enumerate(A) if o.text == "s_nop 0"]
                items.append((nops[int(pct[1:])] if pct[:1] == "n" else (int(pct)*len(A))//100 if pct else (k+1)*len(A)//(len(spr)+1), t))
            k = 0
            for idx, o in enumerate(A):
                ins = []
                while k < len(items) and idx >= items[k][0]: ins += simple(items[k][1]); k += 1
                out += ins
                if o.text == "s_nop 0" and ins: continue
                out.append(o)
            assert k == len(items)
            emit(out); emit(stamp("n%d" % li))
            st8["li"] += 1
        elif tok == "Z":
            bf = all((t, j) in done or (t, j) in pre for t in range(4) for j in range(2))
            emit([WAIT(l=0), O("s_barrier", tag="Bfree" if bf else "gbfree")]); st8["vis"] = st8["wi"]//4; st8["bf"] = bf
        elif head[0] == "U":
            tl, js = head[1:].split("@"); js = [int(x) for x in js.split("-")]
            seq = [(int(c), j) for j in range(js[0], js[-1]+1) for c in tl]
            for u in seq:
                assert u[0] < st8["vis"] and (u[1] == 0 or (u[0], u[1]-1) in done), tok
                done.add(u)
            emit(stamp("u%d" % js[0]))
            emit([xread(*seq[0]), WAIT(l=0)])
            mf, fixed, starts = units(seq, None)
            for k, u in enumerate(seq):
                if k and u[1] != seq[k-1][1]: fixed[starts[k]-1] = [WAIT(l=0)]
            segs = ",".join(spr).split("/"); n = 7*len(tl)
            for si in range(js[-1]-js[0]+1):
                stream = []
                for t in (segs[si].split(",") if si < len(segs) and segs[si] else []):
                    t, _, gp = t.partition("@")
                    ops = [o for o in simple(t)]
                    if ops and gp: ops[0].at = int(gp)
                    stream += ops
                emit(weave(mf[si*n:(si+1)*n], {g-si*n: v for g, v in fixed.items() if si*n <= g < (si+1)*n}, stream, 0, n-3))
        else: emit(simple(tok))
    assert st8["wi"] == 28 and st8["li"] == 8 and xn[0] == 32 and st8["vis"] >= 5
    th = st8["th"]
    emit(stamp("mp")); emit([O("; stage 1", kind="L")])
    def canissue():
        n = wn[0]; rd = set(half(x) for x in range(th))
        while n < 105:
            j, ii = divmod(n, 7); i = worder(j)[ii]
            if any(x not in rd for x in wneeds(j, i)): break
            n += 1
        return n - wn[0]
    order = [3, 0, 1, 2]
    seq = [(t, j) for j in range(14) for t in order if (t, j) not in done]
    assert th >= 2*seq[0][1] + 2
    emit([xread(*seq[0]), WAIT(l=0)])
    S2 = [4, 5, 6, 7]
    mf, fixed, starts = units(seq, (S2[0], 1))
    first = {}
    for k, u in enumerate(seq): first.setdefault(u[1], starts[k])
    def used(g):
        u = 0
        for o in fixed.get(g, []):
            if o.kind == "V" and u < 1: u = 1
            u += cost(o)
        return u
    def fx(g, ops, front=False):
        if front: fixed[g] = ops + fixed.get(g, [])
        else: fixed.setdefault(g, []).extend(ops)
    put = fx
    def putdma(g, d, gprep):
        pend = []; firstd = True
        for o in d:
            if o.kind != "G":
                if o.text != "s_nop 0": pend.append(o)
                continue
            while used(g) > 0: g += 1
            if pend:
                if firstd and gprep is not None:
                    gp = gprep
                    for p in pend:
                        while used(gp) >= 3 and gp < g-1: gp += 1
                        put(gp, [p])
                else: put(g-1, pend)
            put(g, [o]); pend = []; g += 1; firstd = False
        return g
    def puttr(g, ops, gend):
        ops = list(ops); assert gend >= g
        load = {x: used(x) for x in range(g, gend+1)}; cnt = {x: 0 for x in load}
        for _ in ops:
            x = min(load, key=lambda x: (max(load[x]+2-3, 0), x)); load[x] += 2; cnt[x] += 1
        last = g
        for x in range(g, gend+1):
            for _ in range(cnt[x]): put(x, [ops.pop(0)]); last = x
        return last + 1
    def putseq(gw, ops):
        for o in ops:
            while used(gw) + (1 if o.kind == "V" and used(gw) < 1 else 0) >= 3: gw += 1
            put(gw, [o])
        return gw
    d0 = wdma(canissue())
    k0 = next((i for i, x in enumerate(d0) if x.kind == "G"), 0)
    emit(d0[:k0])
    g = putdma(1, d0[k0:], None)
    while th < 28:
        k, h = half(th); second = th % 2; th += 1
        yt = first[k] - cfg.lead - (0 if second else 14)
        D = first[k] - 1 - (0 if second else cfg.minp)
        y = min(max(yt, g + 7 + cfg.lat), D)
        gs = max(min(g, y - cfg.lat - 4), y - 11, 0)
        while used(gs) > 0 and gs < y - cfg.lat - 6: gs += 1
        put(gs, [WAIT(v=wland(k, h))])
        ge = puttr(gs, trreads(k, h), y - cfg.lat)
        put(y, [WAIT(l="tr%dh%d" % (k, h))])
        nb = wn[0]
        g = putdma(max(g, y+1), wdma(canissue()), max(ge, g))
        if nb < 105 and wn[0] == 105: glast = g
    assert wn[0] == 105
    gm = putseq(glast, late_addr())
    for j in sorted(first):
        if first[j] > 0: put(first[j]-1, stamp("p%d" % j))
    Q = lambda a, k: ACC[a] + 4*k
    HOLD = {3: [Q(3, 1), Q(3, 3), Q(3, 5)], 0: [Q(0, 1), Q(0, 3), Q(0, 5)], 1: [Q(1, 1), Q(1, 3), Q(1, 5)],
            2: [Q(0, 0), Q(0, 2), Q(0, 4)], 4: [Q(1, 0), Q(1, 2), Q(1, 4)], 5: [Q(1, 1), Q(1, 3), Q(1, 5)],
            6: [Q(0, 1), Q(0, 3), Q(0, 5)], 7: [Q(0, 0), Q(0, 2), Q(0, 4)]}
    OPK = 18; OT = Q(0, 6)
    def oddw(tile, src): return O("ds_write_b64 v%d, %s offset:%d" % (OW, vr(src, 2), ODDO + 512*tile), cost=3, needs=["tr13h0", "tr13h1"], sem=("OW", tile))
    def store(tile, P):
        return [O("s_add_u32 s%d, s%d, %d" % (sO2, sOO, 3584*tile), sem=("SO", ("ST", tile))),
                O("buffer_store_dwordx4 %s, v%d, s[%d:%d], s%d offen offset:%d%s" % (vr(HOLD[tile][P], 4), ST, SO, SO+3, sO2, 64*P, cfg.spol), sem=("ST", tile, P))]
    def pair_inplace(tile, P):
        x0, x1 = ACC[tile]+8*P, ACC[tile]+8*P+4
        return [cvt(x1+3, x1+2), cvt(x1+2, x1), cvt(x1, x0), cvt(x1+1, x0+2)]
    def odd_inplace(tile):
        x = ACC[tile]+24
        return [cvt(x, x), cvt(x+1, x+2)], oddw(tile, x)
    def pkcvt(tile, t):
        d = OPK if t == 6 else HOLD[tile][t >> 1] + 2*(t & 1)
        return [cvt(d, ACC[2]+4*t), cvt(d+1, ACC[2]+4*t+2)]
    E = first[13]
    assert gm < E + 8
    for k in (3, 4, 5): put(E+k, [O("s_nop 0")])
    putseq(E+8, pair_inplace(3, 0) + pair_inplace(3, 1) + pair_inplace(3, 2))
    putseq(E+15, pair_inplace(0, 0) + pair_inplace(0, 1) + pair_inplace(0, 2))
    sx = store(3, 0); put(E+21, sx[:1]); put(E+22, sx[1:])
    put(E+23, [O("s_nop 1")]); put(E+24, [O("s_nop 1")])
    for t in range(3): put(E+25+t, pkcvt(2, t))
    emit(weave(mf, fixed, [], 0, 0))
    emit(stamp("mq"))
    if cfg.diagq: emit(spin(cfg.diagq, "q"))
    plan = cfg.plan
    om = [0]
    def oddso(m): return [O("s_add_u32 s%d, s%d, %d" % (sO2, sPAR, 7168*m), sem=("SO", None)), O("s_add_u32 s%d, s%d, s%d" % (sO2, sO2, sOO), sem=("SO", ("OS", m)))]
    def oddst(m): return O("buffer_store_dwordx4 %s, v%d, s[%d:%d], s%d offen%s" % (vr(OT, 4), OS, SO, SO+3, sO2, cfg.spol), sem=("OS", m))
    pw = lnwrites(7)
    for bi, tile in enumerate(S2):
        prev = 2 if bi == 0 else S2[bi-1]
        mf, fixed, _ = units([(tile, j) for j in range(1, 15 if bi < 3 else 15 - cfg.nl)], (S2[bi+1], 1) if bi < 3 else None)
        for t in range(3, 7): fx(t-2, pkcvt(prev, t))
        fx(8, [oddw(prev, OPK)], front=True)
        if bi == 0:
            gq = 9
            for tl in (3, 0, 1):
                c, o = odd_inplace(tl); gq = putseq(gq, c) + 1
                while used(gq) > 0: gq += 1
                fx(gq, [o]); gq += 1
            putseq(gq, pair_inplace(1, 0) + pair_inplace(1, 1) + pair_inplace(1, 2))
        items = plan[bi]; n = len(items)
        lo = 5 if bi == 0 else 10
        for k, it in enumerate(items):
            g = lo + ((90 if bi < 3 else cfg.lhi)-lo)*k//n
            while used(g) > 0 or used(g-1) > 2 or (it == "o" and used(g-2) > 1): g += 1
            if it == "o":
                m = om[0]; om[0] += 1
                gr = g - 9
                while used(gr) > 1: gr -= 1
                bar = min(b for b in cfg.bars if (3 if b == 0 else S2[b-1]) >= 2*m+1)
                fx(gr, [O("ds_read_b128 %s, v%d offset:%d" % (vr(OT, 4), OR, ODDO + 1024*m), needs=["bar%d" % bar], tag="od")], front=True)
                fx(g-2, oddso(m), front=True); fx(g-1, [WAIT(l="od")], front=True); fx(g, [oddst(m)])
            elif it == "w": fx(g, [pw.pop(0)])
            else:
                s = store(*it); fx(g-1, s[:1], front=True); fx(g, s[1:])
                if it == (3, 2): g32 = g
        if bi == 0:
            gs = max(g32 + 3, 45)
            fx(gs, [WAIT(v=wland(14, 1))], front=True)
            puttr(gs, trreads(14, 0) + trreads(14, 1), 84)
            fixed[90] = [WAIT(l=0)]
        if bi in cfg.bars:
            gb_ = cfg.barg.get(bi, 91)
            fixed[gb_-1] = [WAIT(l=0)] + [o for o in fixed[gb_-1] if o.kind != "W"]
            fx(gb_, [O("s_barrier", tag="bar%d" % bi)], front=True)
            assert gb_ % 7 == 0 and all(g_ < gb_-1 for g_, v in fixed.items() for o in v if o.text.startswith("ds_write"))
            if not pw: t7vis = True
        if bi < 3:
            fx(92, [O("s_nop 0")]); fx(93, [O("s_nop 0")]); fx(94, [O("s_nop 1")])
            for t in range(3): fx(95+t, pkcvt(tile, t))
        else:
            assert t7vis
            NL = cfg.nl; j0 = 15 - NL; G0 = 7*(14 - NL)
            XF = [24, 28, 32, Q(1, 6), Q(1, 0), Q(1, 2), Q(1, 4), Q(1, 1), Q(1, 3), Q(1, 5)][:NL]
            rd = [O("ds_read_b128 %s, v%d offset:%d" % (vr(XF[k], 4), XR, xoff(tile, (j0+k) % 14)), tag="xl", sem=("X", tile, (j0+k) % 14)) for k in range(NL)]
            puttr(max(5, G0 - 2*NL - 6), rd, G0 - 5)
            fx(G0-1, [WAIT(l="xl")])
            for ts in ([6], [0, 1], [2, 3], [4, 5]):
                for k in range(NL):
                    for t in ts: mf.append(mfma(ACC[2], j0+k, t, XF[k], None, tile))
            a6 = G0 + NL; a0_ = a6 + 2*NL; a1_ = a0_ + 2*NL
            fx(a6, [O("s_nop 1")]); fx(a6+1, [O("s_nop 1")]); fx(a6+2, [O("s_nop 0")] + pkcvt(tile, 6)); fx(a6+3, [oddw(tile, OPK)])
            fx(a6+6, [WAIT(l=0), O("s_barrier")]); fx(a6+7, [O("ds_read_b128 %s, v%d offset:%d" % (vr(OT, 4), OR, ODDO + 3072), tag="od")])
            fx(a0_, [O("s_nop 1")]); fx(a0_+1, [O("s_nop 1")]); fx(a0_+2, [O("s_nop 0")] + pkcvt(tile, 0)); fx(a0_+3, store(tile, 0)[:1] + pkcvt(tile, 1)); fx(a0_+4, store(tile, 0)[1:])
            go = a0_+5 if NL < 8 else a6+13
            fx(go, oddso(3)); fx(go+1, [WAIT(l="od")]); fx(go+2, [oddst(3)])
            fx(a1_, [O("s_nop 1")]); fx(a1_+1, [O("s_nop 1")]); fx(a1_+2, [O("s_nop 0")] + pkcvt(tile, 2)); fx(a1_+3, store(tile, 1)[:1] + pkcvt(tile, 3)); fx(a1_+4, store(tile, 1)[1:])
        emit([O("; stage 2, tile %d" % tile, kind="L")])
        emit(weave(mf, fixed, [], 0, 0))
        emit(stamp("m%d" % (bi+4)))
    lt = S2[3]
    Tl = [O("s_nop 6")] + pkcvt(lt, 4) + pkcvt(lt, 5) + store(lt, 2)[1:]
    assert om[0] == 3 and st8["vis"] >= 7
    emit(Tl)
    if cfg.diag > 1: emit([O("s_waitcnt vmcnt(0)")] + spin(cfg.diag, "end"))
    if cfg.stamps:
        emit(stamp("z1")); emit([O("s_waitcnt vmcnt(0)")]); emit(stamp("z2"))
        S = [O("s_waitcnt lgkmcnt(0)"), O("s_mov_b32 s50, 0x10000000"), O("s_mov_b32 s51, 0x20000"), O("v_mov_b32 v40, 0")]
        for i in range(stampn[0]): S.append(O("v_writelane_b32 v40, s%d, %d" % (52+2*i, i)))
        S += [O("s_lshl_b32 s3, s2, 2"), O("s_add_u32 s3, s3, s%d" % sW), O("s_lshl_b32 s3, s3, 8"),
              O("v_mbcnt_lo_u32_b32 v41, -1, 0"), O("v_mbcnt_hi_u32_b32 v41, -1, v41"), O("v_lshlrev_b32 v41, 2, v41"),
              O("buffer_store_dword v40, v41, s[48:51], s3 offen sc1")]
        emit(S)
    emit([O("L_end:"), O("s_endpgm")])
    errs = resolve_and_verify(trace) + semcheck(trace)
    for e in errs[:40]: print("ERR", e, file=sys.stderr)
    if errs: raise Exception("verify failed: %d" % len(errs))
    return code

DOC = """; ---------------------------------------------------------------------------------------------
; Wave w owns output columns [112w, 112w+112) = 7 MFMA 16x16x32 tiles and keeps its slice of w
;  early  : x rows stream from HBM into registers; LayerNorm (shifted single pass in fp32, g and b
;           applied) -> bf16 B-fragments in LDS.  All reads of x finish before any store starts.
;  stage 1: w streams L2 -> LDS (LDS-DMA, two images per wave) -> ds_read_b64_tr_b16 -> registers,
; The k-step order is rotated per workgroup so the CUs of an XCD do not all miss on the same lines.
; ---------------------------------------------------------------------------------------------"""
def render(code, kname):
    hdr = open('cdna_kernels/%s.s.ref' % NAME).read().split('\n')
    L = [l for l in hdr if l.startswith(';') and '@launch' not in l]
    L += ["; @launch grid=(256,1,1) block=(256,1,1) lds=163840"] + DOC.split("\n") + ['.amdgcn_target "amdgcn-amd-amdhsa--gfx950"', ".text",
          ".globl %s" % kname, ".p2align 8", ".type %s,@function" % kname, "%s:" % kname]
    L += code
    if cfg.cpf: L += [".fill 3000, 4, 0xbf810000"]
    L += ['.section .rodata,"a"', ".p2align 6", ".amdhsa_kernel %s" % kname, "  .amdhsa_next_free_vgpr 512", "  .amdhsa_next_free_sgpr 102",
          "  .amdhsa_accum_offset 256", "  .amdhsa_group_segment_fixed_size 0", "  .amdhsa_kernarg_size 56", "  .amdhsa_user_sgpr_count 2",
          "  .amdhsa_user_sgpr_kernarg_segment_ptr 1", "  .amdhsa_system_sgpr_workgroup_id_x 1", ".end_amdhsa_kernel"]
    return '\n'.join(L) + '\n'
def addrs(lines, kname):
    import subprocess
    lab = []
    for i, l in enumerate(lines): lab += ["Lq%d:" % i, l]
    open("_a.s", "w").write(render(lab, kname))
    subprocess.run(["clang", "-x", "assembler", "-target", "amdgcn-amd-amdhsa", "-mcpu=gfx950", "-c", "_a.s", "-o", "_a.o"], check=True)
    out = subprocess.run(["llvm-objdump", "-t", "_a.o"], capture_output=True, text=True).stdout
    A = {}
    for l in out.splitlines():
        p = l.split()
        if p and p[-1].startswith("Lq"): A[int(p[-1][2:])] = int(p[0], 16)
    return [A[i] for i in range(len(lines))]
def write(path, kname=NAME+"_kernel"):
    code = build()
    if cfg.nostore: code = [o for o in code if not (o.sem and o.sem[0] in ("ST", "OS"))]
    if cfg.nogb: code = [o for o in code if not o.text.startswith(("buffer_load_dwordx4 v[136:139]", "buffer_load_dwordx4 v[140:143]"))]
    lines = [("" if o.kind == "L" else "    ") + o.render() for o in code]
    if cfg.alt:
        import re as _re
        global stampnames
        names1 = list(stampnames)
        save = {k: getattr(cfg, k) for k in cfg.alt}
        for k, v in cfg.alt.items(): setattr(cfg, k, v)
        l2 = [("" if o.kind == "L" else "    ") + o.render() for o in build()]
        for k, v in save.items(): setattr(cfg, k, v)
        assert names1 == stampnames, (names1, stampnames)
        i = lines.index("@SPLIT"); assert lines[:i+1] == l2[:i+1]
        l2 = [_re.sub(r"\bL_(chk|ok|end)\b", r"L_\g<1>2", x) for x in l2[i+1:]]
        lines = lines[:i] + ["    s_bitcmp1_b32 s2, %d" % cfg.gbit, "    s_cbranch_scc1 L_alt"] + lines[i+1:] + [".p2align 6", "L_alt:"] + l2
    lines = [l for l in lines if l != "@SPLIT"]
    if any(l.startswith("@H") for l in lines):
        nh = sum(1 for l in lines if l.startswith("L_padret"))
        main = lines.index("L_main:")
        npad = 0
        for k in range(4*nh):
            tmp = [(l[3:] if l.startswith("@H") else l) for l in lines] + ["L_pad%d:" % x for x in range(npad, 4*nh)]
            A = addrs(tmp, kname)
            bnd = (A[main]//4096 + k + cfg.padskip)*4096
            j = next((i for i in range(main+1, len(lines)) if A[i] >= bnd), None)
            if j is None: break
            i = next((i for i in range(j, len(lines)) if "v_mfma" in lines[i-1] and "v_mfma" in lines[i]), None)
            if i is None or A[i] >= bnd + 56: i = next(i for i in range(j, len(lines)) if not lines[i].lstrip().startswith(("s_cselect", "s_cbranch", "L_", ".", "@H", "s_mov_b64 vcc")))
            assert i > lines.index("L_padret%d:" % (nh-1)) + 1
            lines[i:i] = ["L_pad%d:" % k, "    s_cbranch_vccnz L_padret%d" % (k//4)]; npad += 1
        lines = [(l[3:] if int(l[2]) < npad else "    s_nop 0") if l.startswith("@H") else l for l in lines]
        vl = [i for i, l in enumerate(lines) if "vcc" in l and "vccnz" not in l]
        assert lines[vl[-1]].strip() == "s_mov_b64 vcc, 0" and vl[-1] < lines.index("L_pad0:"), "vcc must be 0 at every pad"
        print("pads:", npad, file=sys.stderr)
    open(path, 'w').write(render(lines, kname))
if __name__ == "__main__":
    write("v13.s")
```

```python
import sys, importlib, re
def multi(mod, variants, out):
    hdr = None; bodies = []; specs = []
    mod0 = mod
    for nm, kw in variants:
        kw = dict(kw); mod = kw.pop("mod", mod0)
        c = mod.Cfg(); mod.cfg = c
        for k, v in kw.items(): setattr(c, k, v)
        mod.write("_v.s", nm + "_kernel")
        t = open("_v.s").read()
        a = t.index(".amdgcn_target"); b = t.index(".text")
        hdr = t[:t.index("; @launch")]
        body = t[b:]
        body = re.sub(r"\bL_(\w+)", r"L_%s_\1" % nm, body)
        bodies.append(body); specs.append(nm + "_kernel:256:256:163840")
        open("%s.%s.names" % (out, nm), "w").write(" ".join(mod.stampnames))
    s = hdr + "".join("; @launch kernel=%s_kernel grid=(256,1,1) block=(256,1,1) lds=163840\n" % nm for nm, _ in variants)
    s += '.amdgcn_target "amdgcn-amd-amdhsa--gfx950"\n' + "".join(bodies)
    open(out + ".s", "w").write(s)
    open(out + ".specs", "w").write(" ".join(specs))
```

```python
import gen13
from final2 import BASE, gz, X4n
from multi import multi
wt = gz[gz.index("C:w1@n2"):]
l7 = wt[wt.index("C:w1@12"):]
def E(init, blocks, w=None):
    b = list(blocks)
    return "G x12 A A2 %sB " % init + b[0] + b[1] + "J " + b[2] + "H " + "".join(b[3:]) + (w or wt)
Xa = "C:x1@25,x1@n0,x1@n3,x1@90 d4 "
Xb = "C:x1@n3,x1@85 d4 x2 "
X5 = "C:x1@25,x1@n0,x1@n3,x1@85 d4 x1 "
X3 = "C:x1@n0,x1@85 d4 x1 "
V = [("a", gz),
     ("b", E("x4 ", [Xa]*4)),
     ("c", E("x4 ", [Xb]*4)),
     ("d", E("x2 ", [X5, X5, X4n, X4n])),
     ("e", E("x6 ", [X4n, X4n, X3, X3])),
     ("f", E("x4 ", [X5, X5, X5, "C:x1@25,w1@85 d4 w1 "], "C:w1@n2 d4 w1 C:w1@n2 d4 C:w1@n0 d4 w1 " + l7)),
     ("g", E("x4 ", [X4n]*4, "C:w1@n2 d4 w2 C:w1@n2 d4 w1 C:w1@n0,w1@80 d4 w1 " + l7.replace("w1@12,", ""))),
     ("h", E("x4 ", [X4n]*4, "C d4 w1 C:w1@n2 d4 w1 C:w1@n0,w1@80 d4 w1 " + l7.replace("w1@12,", "w1@8,w1@16,"))),
]
multi(gen13, [(k, dict(BASE, early=v)) for k, v in V], "m50")
```

```python
import gen13
from final2 import BASE, gz, X4n
from multi import multi
X5 = "C:x1@25,x1@n0,x1@n3,x1@85 d4 x1 "
l7 = "C:w1@12,w1@24,w1@36,w1@46,w1@n0,w1@n3,ta@66,w1@74,w1@80,w1@86,tb@90,w1@97 Z"
l7b = "C:w1@12,w1@24,w1@36,w1@46,w1@n0,w1@n3,w1@74 Z"
w3 = "C:w1@n2 d4 w1 C:w1@n2 d4 w1 C:w1@n0,w1@80 d4 w1 "
V = [("a", dict(early=gz)),
     ("b", dict(early="G x12 A A2 w4 B C:w1@n0,w1@n3,w1@85 d4 x2 " + X5 + "J " + X5 + "H " + X4n + "ta tb " + X4n + "C:w1@n2 d4 w2 C:w2@n0,w1@80 d4 w1 " + l7, eager=15)),
     ("c", dict(early="G x12 A A2 w4 B C:w1@n0,w1@n3,w1@85 d4 x2 " + X5 + "J " + X5 + "H " + X4n + "ta tb " + X4n + "C:w1@n2 d4 w2 C:w2@n0,w1@80 d4 w1 " + l7b)),
     ("d", dict(early="G x8 A A2 w7 x2 B C:x2@n0,x1@n3,x1@85 d4 x2 " + X4n + "J " + X4n + "H " + X4n + "ta tb " + X4n + "C:w1@n2 d4 w2 C:w2@n0,w1@80 d4 w1 " + l7b)),
]
multi(gen13, [(k, dict(BASE, **v)) for k, v in V] + [(k+"t", dict(BASE, stamps=True, sites="rm", **v)) for k, v in V], "m55")
```
